```python
import torch

def _softmax(x, axis=-1):
    return torch.softmax(x, dim=axis)
def _gelu(x):
    return torch.nn.functional.gelu(x, approximate="tanh")
def _silu(x):
    return torch.nn.functional.silu(x)
def _sigmoid(x):
    return torch.sigmoid(x)
def _layernorm(x, axis=-1, eps=1e-5):
    m = x.mean(dim=axis, keepdim=True)
    v = x.var(dim=axis, keepdim=True, unbiased=False)
    return (x - m) / torch.sqrt(v + eps)
def _scatter_add(tgt, idx, src, axis=0):
    return tgt.clone().index_add_(axis, idx, src)
def _segment_sum(src, seg, n):
    out = torch.zeros((n,) + src.shape[1:], dtype=src.dtype)
    return out.index_add_(0, seg, src)
def _pad(x, pw):
    flat = tuple(v for pair in reversed(pw) for v in pair)
    return torch.nn.functional.pad(x, flat)

kernel_name = 'gated_mix__sliding_block__mixer_token_mlp__prompt'

def setup_inputs():

    _w = (lambda a: (lambda t: t.to(torch.bfloat16) if t.is_floating_point() else t)(torch.as_tensor(a)))
    def _A_setup():
        B, S, D = 1, 2048, 512
        return {
            "x": _w((lambda *s: torch.randn(*s, dtype=torch.bfloat16) * 0.05)(B, S, D)),
            "wqkv": _w((lambda *s: torch.randn(*s, dtype=torch.bfloat16) * 0.8)(D, 3 * D)),
            "wo": _w((lambda *s: torch.randn(*s, dtype=torch.bfloat16) * 0.05)(D, D)),
        }
    _A_in = _A_setup()

    def _B_setup():
        B, S, D, F = 1, 2048, 512, 1376
        return {
            "x": _w((lambda *s: torch.randn(*s, dtype=torch.bfloat16) * 0.05)(B, S, D)),
            "w1": _w((lambda *s: torch.randn(*s, dtype=torch.bfloat16) * 3.2)(S, F) * (S ** -0.5)),
            "b1": _w((lambda *s: torch.randn(*s, dtype=torch.bfloat16) * 3.2)(F) * 0.02),
            "w2": _w((lambda *s: torch.randn(*s, dtype=torch.bfloat16) * 0.1)(F, S) * (F ** -0.5)),
            "b2": _w((lambda *s: torch.randn(*s, dtype=torch.bfloat16) * 0.1)(S) * 0.02),
        }
    _B_in = _B_setup()

    return {
        "A_x": _A_in["x"],
        "A_wqkv": _A_in["wqkv"],
        "A_wo": _A_in["wo"],
        "B_x": _B_in["x"],
        "B_w1": _B_in["w1"],
        "B_b1": _B_in["b1"],
        "B_w2": _B_in["w2"],
        "B_b2": _B_in["b2"],
        "gate_w": _w((lambda *s: torch.randn(*s, dtype=torch.bfloat16) * 0.05)(512) * 16.0),
    }

def reference(A_x, A_wqkv, A_wo, B_x, B_w1, B_b1, B_w2, B_b2, gate_w):
    def _A_ref(x, wqkv, wo):
        B, S, D = x.shape
        H = 32; Dh = D // H; W = 256
        qkv = (lambda x, *d: x.permute(*d))((x @ wqkv).reshape(B, S, 3, H, Dh), 2, 0, 3, 1, 4)
        q, k, v = qkv[0], qkv[1], qkv[2]
        scores = torch.einsum("bhqd,bhkd->bhqk", q, k) * (Dh ** -0.5)
        idx = torch.arange(S)
        mask = (idx[:, None] - idx[None, :] >= 0) & (idx[:, None] - idx[None, :] < W)
        scores = torch.where(mask[None, None], scores, -1e9)
        p = _softmax(scores, axis=-1)
        o = torch.einsum("bhqk,bhkd->bhqd", p, v)
        return (lambda x, *d: x.permute(*d))(o, 0, 2, 1, 3).reshape(B, S, D) @ wo

    def _B_ref(x, w1, b1, w2, b2):
        B, S, D = x.shape
        h = _layernorm(x, axis=-1)
        u = torch.einsum("bsd,sf->bdf", h, w1) + b1
        u = _gelu(u)
        y = torch.einsum("bdf,fs->bds", u, w2) + b2
        return (lambda x, *d: x.permute(*d))(y, 0, 2, 1)

    x = A_x
    g = _sigmoid((x * gate_w).sum(-1, keepdims=True))
    a = _A_ref(x, A_wqkv, A_wo)
    b = _B_ref(x, B_w1, B_b1, B_w2, B_b2)
    return g * a + (1 - g) * b
```

```python
import math
import struct
import sys

NAME = "gated_mix__sliding_block__mixer_token_mlp__prompt"

WS_Q = 0x000000
WS_K = 0x200000
WS_V = 0x400000
WS_H = 0x600000
WS_W1 = 0x800000
WS_G = 0xE00000
WS_O = 0x1000000
WS_U = 0x1200000
WS_END = 0x1400000


def f32bits(x):
    return struct.unpack("<I", struct.pack("<f", x))[0]


class Asm:
    def __init__(self):
        self.l = []

    def __call__(self, s):
        for line in s.strip("\n").split("\n"):
            self.l.append(line)

    def text(self):
        return "\n".join(self.l) + "\n"


def vr(b, n=1):
    return f"v{b}" if n == 1 else f"v[{b}:{b+n-1}]"


def sr(b, n=1):
    return f"s{b}" if n == 1 else f"s[{b}:{b+n-1}]"


def srd(a, dst, ptr, nbytes, off=0):
    if off:
        a(f"  s_add_u32 s{dst}, s{ptr}, {off:#x}")
        a(f"  s_addc_u32 s{dst+1}, s{ptr+1}, 0")
        a(f"  s_and_b32 s{dst+1}, s{dst+1}, 0xffff")
    else:
        a(f"  s_mov_b32 s{dst}, s{ptr}")
        a(f"  s_and_b32 s{dst+1}, s{ptr+1}, 0xffff")
    a(f"  s_mov_b32 s{dst+2}, {nbytes:#x}")
    a(f"  s_mov_b32 s{dst+3}, 0x00020000")


def kd(name, vgpr, sgpr=102):
    acc = (vgpr + 3) // 4 * 4
    return f"""
.section .rodata,"a"
.p2align 6
.amdhsa_kernel {name}
  .amdhsa_next_free_vgpr {vgpr}
  .amdhsa_next_free_sgpr {sgpr}
  .amdhsa_accum_offset {acc}
  .amdhsa_group_segment_fixed_size 0
  .amdhsa_kernarg_size 96
  .amdhsa_user_sgpr_count 2
  .amdhsa_user_sgpr_kernarg_segment_ptr 1
  .amdhsa_system_sgpr_workgroup_id_x 1
.end_amdhsa_kernel
"""


MFMA = "v_mfma_f32_32x32x16_bf16"


def k1(a):
    a(f"""
.text
.globl k1_kernel
.p2align 8
.type k1_kernel,@function
k1_kernel:
  s_cmp_ge_u32 s2, 256
  s_cbranch_scc1 k1_end
  s_load_dwordx2 s[16:17], s[0:1], 0
  s_load_dwordx2 s[18:19], s[0:1], 8
  s_load_dwordx2 s[20:21], s[0:1], 32
  s_load_dwordx2 s[22:23], s[0:1], 64
  s_load_dwordx2 s[24:25], s[0:1], 88
  v_lshrrev_b32 v1, 6, v0
  v_and_b32 v2, 63, v0
  s_nop 0
  v_readfirstlane_b32 s3, v1
  s_waitcnt lgkmcnt(0)
""")
    srd(a, 4, 16, 2048 * 512 * 2)
    srd(a, 8, 18, 512 * 1536 * 2)
    srd(a, 12, 24, WS_END)
    srd(a, 28, 20, 2048 * 1376 * 2)
    srd(a, 32, 22, 512 * 2)
    a("""
  s_cmp_ge_u32 s2, 192
  s_cbranch_scc1 k1_aux
""")
    a("""
  s_and_b32 s40, s2, 7
  s_lshr_b32 s41, s2, 3
  s_and_b32 s42, s40, 3
  s_lshl_b32 s42, s42, 2
  s_and_b32 s43, s41, 3
  s_add_u32 s36, s42, s43            ; st
  s_lshr_b32 s42, s40, 2
  s_mul_i32 s42, s42, 6
  s_lshr_b32 s43, s41, 2
  s_add_u32 s37, s42, s43            ; nt
  s_lshl_b32 s38, s3, 12
""")
    VXA, VWA = 4, 8
    a("  v_lshrrev_b32 v3, 3, v2            ; l>>3")
    a("  v_and_b32 v12, 7, v2                ; l&7")
    a("  s_lshl_b32 s44, s36, 17            ; st*128*1024")
    for i in range(4):
        a(f"  s_lshl_b32 s45, s3, 5")
        a(f"  s_add_u32 s45, s45, {8*i}")
        a(f"  v_add_u32 v13, s45, v3             ; row")
        a(f"  v_lshrrev_b32 v14, 1, v13")
        a(f"  v_and_b32 v14, 7, v14")
        a(f"  v_xor_b32 v14, v14, v12            ; chunk")
        a(f"  v_lshlrev_b32 v14, 4, v14")
        a(f"  v_lshl_add_u32 v14, v13, 10, v14")
        a(f"  v_add_u32 v{VXA+i}, s44, v14")
    a("  v_lshrrev_b32 v3, 4, v2            ; l>>4")
    a("  v_and_b32 v12, 15, v2              ; p")
    a("  v_lshrrev_b32 v13, 2, v12")
    a("  v_xor_b32 v13, v13, v3")
    a("  v_lshlrev_b32 v13, 2, v13")
    a("  v_and_b32 v12, 3, v12")
    a("  v_or_b32 v13, v13, v12              ; idx16")
    a("  v_lshlrev_b32 v13, 4, v13")
    a("  s_lshl_b32 s44, s37, 8             ; n0*2")
    a("  v_add_u32 v13, s44, v13")
    a("  s_movk_i32 s46, 3072")
    for i in range(4):
        a(f"  s_lshl_b32 s45, s3, 4")
        a(f"  s_add_u32 s45, s45, {4*i}")
        a(f"  v_add_u32 v14, s45, v3             ; row")
        a(f"  v_mul_lo_u32 v14, v14, s46")
        a(f"  v_add_u32 v{VWA+i}, v14, v13")

    def issue_chunk(c):
        slot = c % 4
        a(f"  s_movk_i32 s47, {c*128}")
        a(f"  s_mov_b32 s48, {c*196608}")
        for i in range(4):
            a(f"  s_add_u32 m0, s38, {slot*32768 + i*1024}")
            a(f"  s_nop 0")
            a(f"  buffer_load_dwordx4 v{VXA+i}, s[4:7], s47 offen lds")
        for i in range(4):
            a(f"  s_add_u32 m0, s38, {slot*32768 + 16384 + i*1024}")
            a(f"  s_nop 0")
            a(f"  buffer_load_dwordx4 v{VWA+i}, s[8:11], s48 offen lds")

    for c in range(4):
        issue_chunk(c)

    VXR, VWR = 16, 24
    a("""
  s_and_b32 s49, s3, 1               ; ws
  s_lshr_b32 s50, s3, 1              ; wn
  v_and_b32 v3, 31, v2               ; l&31
  v_lshrrev_b32 v12, 5, v2           ; hi
  s_lshl_b32 s45, s49, 6
  v_add_u32 v13, s45, v3             ; row (0..127)
  v_lshrrev_b32 v14, 1, v13
  v_and_b32 v14, 7, v14              ; r3
  v_lshlrev_b32 v13, 7, v13          ; row*128
""")
    for ks in range(4):
        a(f"  v_or_b32 v15, {2*ks}, v12")
        a(f"  v_xor_b32 v15, v15, v14")
        a(f"  v_lshl_add_u32 v{VXR+2*ks}, v15, 4, v13")
        a(f"  v_add_u32 v{VXR+2*ks+1}, 0x10000, v{VXR+2*ks}")
    a("""
  v_and_b32 v3, 15, v2               ; i
  v_lshrrev_b32 v13, 2, v3           ; i>>2
  v_lshlrev_b32 v14, 11, v12         ; hi*2048
  v_lshl_add_u32 v14, v13, 8, v14    ; + (i>>2)*256
  v_bfe_u32 v15, v2, 4, 1
  v_lshl_add_u32 v14, v15, 5, v14    ; + ((l>>4)&1)*32
  v_and_b32 v15, 3, v3
  v_lshl_add_u32 v14, v15, 3, v14    ; + (i&3)*8
  v_add_u32 v14, 0x4000, v14         ; B region
  s_lshl_b32 s45, s50, 1
""")
    for b in range(2):
        a(f"  s_add_u32 s46, s45, {b}")
        a(f"  v_xor_b32 v15, s46, v13")
        a(f"  v_lshl_add_u32 v{VWR+2*b}, v15, 6, v14")
        a(f"  v_add_u32 v{VWR+2*b+1}, 0x10000, v{VWR+2*b}")

    FR = 32
    ACC = 64

    def reads(c, ks, buf):
        slot = c % 4
        half = slot >> 1
        so = (slot & 1) * 32768
        f = FR + 16 * buf
        for aa in range(2):
            a(f"  ds_read_b128 v[{f+4*aa}:{f+4*aa+3}], v{VXR+2*ks+half} offset:{so + aa*4096}")
        for b in range(2):
            a(f"  ds_read_b64_tr_b16 v[{f+8+4*b}:{f+8+4*b+1}], v{VWR+2*b+half} offset:{so + ks*4096}")
            a(f"  ds_read_b64_tr_b16 v[{f+8+4*b+2}:{f+8+4*b+3}], v{VWR+2*b+half} offset:{so + ks*4096 + 1024}")

    def mfmas(buf, first, vmode):
        f = FR + 16 * buf
        for b in range(2):
            for aa in range(2):
                d = ACC + 16 * (aa + 2 * b)
                xa = f"v[{f+4*aa}:{f+4*aa+3}]"
                wb = f"v[{f+8+4*b}:{f+8+4*b+3}]"
                c = "0" if first else f"v[{d}:{d+15}]"
                if vmode:
                    a(f"  {MFMA} v[{d}:{d+15}], {xa}, {wb}, {c}")
                else:
                    a(f"  {MFMA} v[{d}:{d+15}], {wb}, {xa}, {c}")

    def mainloop(vmode):
        a("  s_waitcnt vmcnt(24)")
        a("  s_barrier")
        reads(0, 0, 0)
        step = 0
        for c in range(8):
            for ks in range(4):
                buf = step & 1
                if ks < 3:
                    reads(c, ks + 1, buf ^ 1)
                    a("  s_waitcnt lgkmcnt(6)")
                    mfmas(buf, step == 0, vmode)
                else:
                    if c < 7:
                        j = c + 1
                        out = (min(7, j + 2) - j) * 8
                        a(f"  s_waitcnt vmcnt({out}) lgkmcnt(0)")
                        a("  s_barrier")
                        reads(j, 0, buf ^ 1)
                        if c + 4 < 8:
                            issue_chunk(c + 4)
                    else:
                        a("  s_waitcnt lgkmcnt(0)")
                    mfmas(buf, False, vmode)
                step += 1

    a("  s_cmp_ge_u32 s37, 8")
    a("  s_cbranch_scc1 k1_vpath")
    mainloop(False)
    a("""
  v_and_b32 v3, 31, v2
  v_lshrrev_b32 v12, 5, v2
  s_lshl_b32 s44, s36, 7
  s_lshl_b32 s45, s49, 6
  s_add_u32 s44, s44, s45            ; s base
  v_add_u32 v3, s44, v3
  v_lshlrev_b32 v3, 5, v3
  v_lshl_add_u32 v3, v12, 4, v3      ; s*32 + hi*16
  s_and_b32 s44, s37, 3
  s_lshl_b32 s44, s44, 3
  s_lshl_b32 s45, s50, 2
  s_add_u32 s44, s44, s45
  s_lshl_b32 s44, s44, 16            ; *2048*32
  s_lshr_b32 s45, s37, 2
  s_lshl_b32 s45, s45, 21
  s_add_u32 s44, s44, s45
  v_add_u32 v3, s44, v3
  s_nop 7
""")
    for b in range(2):
        for aa in range(2):
            d = ACC + 16 * (aa + 2 * b)
            for hh in range(2):
                t = FR + 4 * ((2 * (aa + 2 * b) + hh) % 8)
                for q in range(4):
                    a(f"  v_cvt_pk_bf16_f32 v{t+q}, v{d+8*hh+2*q}, v{d+8*hh+2*q+1}")
                a(f"  s_mov_b32 s46, {(2*b+hh)*65536}")
                a(f"  buffer_store_dwordx4 v[{t}:{t+3}], v3, s[12:15], s46 offen offset:{aa*1024}")
    a("  s_endpgm")
    a("k1_vpath:")
    mainloop(True)
    a(f"""
  v_and_b32 v3, 15, v2
  v_lshrrev_b32 v12, 5, v2
  v_lshlrev_b32 v3, 4, v3
  v_lshl_add_u32 v3, v12, 8, v3
  v_bfe_u32 v12, v2, 4, 1
  v_lshl_add_u32 v3, v12, 16, v3     ; + headsel*64*1024
  s_and_b32 s44, s37, 3
  s_lshl_b32 s44, s44, 3
  s_lshl_b32 s45, s50, 2
  s_add_u32 s44, s44, s45
  s_lshl_b32 s44, s44, 16
  s_lshl_b32 s45, s36, 2
  s_lshl_b32 s46, s49, 1
  s_add_u32 s45, s45, s46
  s_lshl_b32 s45, s45, 10
  s_add_u32 s44, s44, s45
  s_add_u32 s44, s44, {WS_V:#x}
  v_add_u32 v3, s44, v3
  s_nop 7
""")
    for b in range(2):
        for aa in range(2):
            d = ACC + 16 * (aa + 2 * b)
            for tt in range(2):
                t = FR + 4 * ((2 * (aa + 2 * b) + tt) % 8)
                for q in range(4):
                    a(f"  v_cvt_pk_bf16_f32 v{t+q}, v{d+8*tt+2*q}, v{d+8*tt+2*q+1}")
                a(f"  s_mov_b32 s46, {2*b*65536}")
                a(f"  buffer_store_dwordx4 v[{t}:{t+3}], v3, s[12:15], s46 offen offset:{aa*1024 + tt*512}")
    a("  s_endpgm")

    HOFF = 90112
    XR, GR, FX = 16, 48, 80
    a(f"""
k1_aux:
  s_sub_u32 s36, s2, 192             ; a
  v_lshrrev_b32 v3, 3, v2            ; l>>3
  v_and_b32 v4, 7, v2                ; l&7
  s_lshl_b32 s44, s36, 5
  s_lshl_b32 s45, s3, 3
  s_add_u32 s44, s44, s45
  v_add_u32 v5, s44, v3
  v_lshlrev_b32 v6, 4, v4            ; (l&7)*16
  v_lshl_add_u32 v7, v5, 10, v6      ; x voffset
""")
    for i in range(8):
        a(f"  buffer_load_dwordx4 v[{XR+4*i}:{XR+4*i+3}], v7, s[4:7], 0 offen offset:{i*128}")
    for i in range(8):
        a(f"  buffer_load_dwordx4 v[{GR+4*i}:{GR+4*i+3}], v6, s[32:35], 0 offen offset:{i*128}")
    a(f"""
  v_lshlrev_b32 v8, 4, v2            ; lane*16
  s_mul_i32 s46, s36, 88064
  s_lshl_b32 s47, s3, 10
  s_add_u32 s46, s46, s47
  s_mov_b32 s48, 0
k1_aux_dma:
  s_mov_b32 m0, s47
  s_add_u32 s48, s48, 1
  buffer_load_dwordx4 v8, s[28:31], s46 offen lds
  s_add_u32 s47, s47, 4096
  s_add_u32 s46, s46, 4096
  s_cmp_lt_u32 s48, 22
  s_cbranch_scc1 k1_aux_dma
  s_waitcnt vmcnt(22)
""")
    for i in range(32):
        a(f"  v_lshlrev_b32 v{FX+2*i}, 16, v{XR+i}")
        a(f"  v_and_b32 v{FX+2*i+1}, 0xffff0000, v{XR+i}")
    for c in range(4):
        a(f"  v_add_f32 v{9+c}, v{FX+c}, v{FX+4+c}")
    for i in range(8, 64):
        a(f"  v_add_f32 v{9+(i&3)}, v{9+(i&3)}, v{FX+i}")
    a(f"  v_mov_b32 v13, 0")
    a(f"  v_mov_b32 v14, 0")
    for i in range(32):
        a(f"  v_dot2_f32_bf16 v{13+(i&1)}, v{XR+i}, v{GR+i}, v{13+(i&1)}")
    a("""
  v_add_f32 v9, v9, v10
  v_add_f32 v11, v11, v12
  v_add_f32 v9, v9, v11
  s_nop 2
  v_add_f32 v13, v13, v14
""")

    def red8(r):
        a(f"  s_nop 1")
        a(f"  v_add_f32_dpp v{r}, v{r}, v{r} quad_perm:[1,0,3,2] row_mask:0xf bank_mask:0xf")
        a(f"  s_nop 1")
        a(f"  v_add_f32_dpp v{r}, v{r}, v{r} quad_perm:[2,3,0,1] row_mask:0xf bank_mask:0xf")
        a(f"  s_nop 1")
        a(f"  v_add_f32_dpp v{r}, v{r}, v{r} row_half_mirror row_mask:0xf bank_mask:0xf")

    red8(9)
    red8(13)
    a(f"  v_mul_f32 v9, {f32bits(1.0/512):#x}, v9     ; mean")
    for i in range(64):
        a(f"  v_sub_f32 v{FX+i}, v{FX+i}, v9")
    for c in range(4):
        a(f"  v_mul_f32 v{9+c}, v{FX+c}, v{FX+c}")
    for i in range(4, 64):
        a(f"  v_fmac_f32 v{9+(i&3)}, v{FX+i}, v{FX+i}")
    a("""
  v_add_f32 v9, v9, v10
  v_add_f32 v11, v11, v12
  v_add_f32 v9, v9, v11
""")
    red8(9)
    a(f"""
  v_mov_b32 v10, {f32bits(1e-5):#x}
  v_fmac_f32 v10, {f32bits(1.0/512):#x}, v9
  v_rsq_f32 v10, v10
  v_mul_f32 v13, {f32bits(-math.log2(math.e)):#x}, v13
  v_exp_f32 v13, v13
  s_nop 0
  v_add_f32 v13, 1.0, v13
  v_rcp_f32 v13, v13
  v_lshlrev_b32 v5, 2, v5
  v_add_u32 v5, {WS_G:#x}, v5
  buffer_store_dword v13, v5, s[12:15], 0 offen
""")
    for i in range(64):
        a(f"  v_mul_f32 v{FX+i}, v{FX+i}, v10")
    for i in range(32):
        a(f"  v_cvt_pk_bf16_f32 v{XR+i}, v{FX+2*i}, v{FX+2*i+1}")
    a(f"""
  s_lshl_b32 s45, s3, 3
  v_add_u32 v3, s45, v3
  s_movk_i32 s46, 1088
  v_mul_lo_u32 v3, v3, s46
  v_add_u32 v3, v3, v6
  v_add_u32 v3, {HOFF}, v3
""")
    for i in range(8):
        a(f"  ds_write_b128 v3, v[{XR+4*i}:{XR+4*i+3}] offset:{i*128}")
    a(f"""
  v_and_b32 v3, 15, v2               ; i
  v_lshrrev_b32 v4, 2, v3            ; i>>2
  v_lshrrev_b32 v5, 5, v2            ; hi
  v_lshl_add_u32 v4, v5, 3, v4
  v_bfe_u32 v5, v2, 4, 1
  v_lshlrev_b32 v5, 5, v5
  v_and_b32 v3, 3, v3
  v_lshl_add_u32 v5, v3, 3, v5
  s_movk_i32 s46, 1088
  v_mul_lo_u32 v6, v4, s46
  v_add_u32 v6, v6, v5
  s_lshl_b32 s45, s3, 8              ; 4w dblks * 64B
  s_add_u32 s45, s45, {HOFF}
  v_add_u32 v6, s45, v6
  s_movk_i32 s46, 2752
  v_mul_lo_u32 v7, v4, s46
  v_add_u32 v7, v7, v5
  s_lshl_b32 s45, s3, 6
  v_add_u32 v7, s45, v7
  s_lshl_b32 s44, s36, 11            ; 2a*1024
  s_lshl_b32 s45, s3, 19
  s_add_u32 s45, s45, s44
  s_add_u32 s45, s45, {WS_H:#x}
  v_add_u32 v9, s45, v8
  s_lshl_b32 s45, s3, 17
  s_add_u32 s45, s45, s44
  s_add_u32 s45, s45, {WS_W1:#x}
  v_add_u32 v10, s45, v8
  s_waitcnt vmcnt(0) lgkmcnt(0)
  s_barrier
""")
    T = 16
    n = 0
    for db in range(4):
        for t in range(2):
            off = t * 17408 + db * 64
            a(f"  ds_read_b64_tr_b16 v[{T+4*n}:{T+4*n+1}], v6 offset:{off}")
            a(f"  ds_read_b64_tr_b16 v[{T+4*n+2}:{T+4*n+3}], v6 offset:{off+4352}")
            n += 1
    m = 0
    for j in range(11):
        for t in range(2):
            off = t * 44032 + j * 256
            a(f"  ds_read_b64_tr_b16 v[{T+32+4*m}:{T+32+4*m+1}], v7 offset:{off}")
            a(f"  ds_read_b64_tr_b16 v[{T+32+4*m+2}:{T+32+4*m+3}], v7 offset:{off+11008}")
            m += 1
            if m == 4:
                a("  s_waitcnt lgkmcnt(8)")
                n = 0
                for db in range(4):
                    for t2 in range(2):
                        a(f"  s_mov_b32 s46, {db*131072}")
                        a(f"  buffer_store_dwordx4 v[{T+4*n}:{T+4*n+3}], v9, s[12:15], s46 offen offset:{t2*1024}")
                        n += 1
    a("  s_waitcnt lgkmcnt(0)")
    m = 0
    for j in range(11):
        for t in range(2):
            a(f"  s_mov_b32 s46, {j*4*131072}")
            a(f"  buffer_store_dwordx4 v[{T+32+4*m}:{T+32+4*m+3}], v10, s[12:15], s46 offen offset:{t*1024}")
            m += 1
    a("""
k1_end:
  s_endpgm
""")


def k2(a):
    a(f"""
.text
.globl k2_kernel
.p2align 8
.type k2_kernel,@function
k2_kernel:
  s_cmp_ge_u32 s2, 256
  s_cbranch_scc1 k2_end
  s_load_dwordx2 s[16:17], s[0:1], 40
  s_load_dwordx2 s[24:25], s[0:1], 88
  v_lshrrev_b32 v1, 6, v0
  v_and_b32 v2, 63, v0
  s_nop 0
  v_readfirstlane_b32 s3, v1
  s_waitcnt lgkmcnt(0)
""")
    srd(a, 4, 24, 43 * 131072, WS_W1)
    srd(a, 8, 24, WS_END)
    srd(a, 12, 24, 86 * 16 * 1024, WS_U)
    srd(a, 28, 16, 1376 * 2)
    a("""
  s_cmp_ge_u32 s3, 4
  s_cbranch_scc1 k2_attn
  s_cmp_ge_u32 s2, 176
  s_cbranch_scc1 k2_end
""")
    RING, ACC, D = 16, 144, 8
    BIAS = 208
    a(f"""
  s_and_b32 s40, s2, 7
  s_lshr_b32 s41, s2, 3
  s_and_b32 s42, s40, 3
  s_mul_i32 s42, s42, 22
  s_add_u32 s42, s42, s41            ; t
  s_lshr_b32 s36, s42, 2             ; ft
  s_lshr_b32 s43, s40, 2
  s_lshl_b32 s43, s43, 2
  s_and_b32 s42, s42, 3
  s_add_u32 s37, s43, s42            ; dt
  v_lshlrev_b32 v3, 4, v2            ; lane*16
  s_lshl_b32 s44, s36, 18            ; 2ft*128KB
  s_lshl_b32 s45, s3, 15             ; 32w*1024
  s_add_u32 s44, s44, s45
  v_add_u32 v4, s44, v3              ; A0
  v_add_u32 v5, 0x20000, v4          ; A1
  s_lshl_b32 s44, s37, 18
  s_add_u32 s44, s44, s45
  s_add_u32 s44, s44, {WS_H:#x}
  v_add_u32 v6, s44, v3              ; B0
  v_add_u32 v7, 0x20000, v6          ; B1
  s_mov_b32 s46, 0
  s_movk_i32 s47, 4096
""")

    def uload(j):
        r = RING + 16 * j
        so = "s46" if j < 4 else "s47"
        off = (j & 3) * 1024
        a(f"  buffer_load_dwordx4 v[{r}:{r+3}], v4, s[4:7], {so} offen offset:{off}")
        a(f"  buffer_load_dwordx4 v[{r+4}:{r+7}], v5, s[4:7], {so} offen offset:{off}")
        a(f"  buffer_load_dwordx4 v[{r+8}:{r+11}], v6, s[8:11], {so} offen offset:{off}")
        a(f"  buffer_load_dwordx4 v[{r+12}:{r+15}], v7, s[8:11], {so} offen offset:{off}")

    def umfma(j):
        r = RING + 16 * j
        for b in range(2):
            for aa in range(2):
                d = ACC + 16 * (aa + 2 * b)
                a(f"  {MFMA} v[{d}:{d+15}], v[{r+4*aa}:{r+4*aa+3}], v[{r+8+4*b}:{r+8+4*b+3}], v[{d}:{d+15}]")

    a(f"""
  v_lshrrev_b32 v8, 5, v2
  v_lshlrev_b32 v8, 3, v8            ; 4hi*2B
  s_lshl_b32 s44, s36, 7
  s_and_b32 s45, s3, 1
  s_lshl_b32 s45, s45, 6
  s_add_u32 s44, s44, s45
  v_add_u32 v8, s44, v8
""")
    for q in range(4):
        a(f"  buffer_load_dwordx2 v[{BIAS+2*q}:{BIAS+2*q+1}], v8, s[28:31], 0 offen offset:{q*16}")
    for j in range(D):
        uload(j)
    for i in range(64):
        a(f"  v_mov_b32 v{ACC+i}, 0")
    a(f"""
  s_mov_b32 s48, 0
  s_add_u32 s46, s46, 8192
  s_add_u32 s47, s47, 8192
k2_uloop:
""")
    for j in range(D):
        a(f"  s_waitcnt vmcnt({4*(D-1)})")
        umfma(j)
        uload(j)
    a(f"""
  s_add_u32 s46, s46, 8192
  s_add_u32 s47, s47, 8192
  s_add_u32 s48, s48, 1
  s_cmp_lt_u32 s48, 3
  s_cbranch_scc1 k2_uloop
""")
    for j in range(D):
        a(f"  s_waitcnt vmcnt({4*(D-1-j)})")
        umfma(j)
    a(f"""
  s_lshl_b32 s44, s3, 14
  v_add_u32 v8, s44, v3
  s_lshl_b32 s44, s3, 12
  v_add_u32 v9, s44, v3
  s_nop 7
  s_nop 7
""")
    for i in range(16):
        a(f"  ds_write_b128 v8, v[{ACC+4*i}:{ACC+4*i+3}] offset:{i*1024}")
    a("""
  s_waitcnt lgkmcnt(0)
  s_barrier
""")
    R = RING
    for sg in range(4):
        for q in range(4):
            a(f"  ds_read_b128 v[{R+16*sg+4*q}:{R+16*sg+4*q+3}], v9 offset:{sg*16384 + q*1024}")
    for q in range(4):
        a(f"  v_lshlrev_b32 v{ACC+4*q}, 16, v{BIAS+2*q}")
        a(f"  v_and_b32 v{ACC+4*q+1}, 0xffff0000, v{BIAS+2*q}")
        a(f"  v_lshlrev_b32 v{ACC+4*q+2}, 16, v{BIAS+2*q+1}")
        a(f"  v_and_b32 v{ACC+4*q+3}, 0xffff0000, v{BIAS+2*q+1}")
    a("  s_waitcnt lgkmcnt(0)")
    for i in range(16):
        a(f"  v_add_f32 v{R+i}, v{R+i}, v{R+16+i}")
        a(f"  v_add_f32 v{R+32+i}, v{R+32+i}, v{R+48+i}")
        a(f"  v_add_f32 v{ACC+i}, v{ACC+i}, v{R+i}")
        a(f"  v_add_f32 v{ACC+i}, v{ACC+i}, v{R+32+i}")
    k = math.sqrt(2.0 / math.pi)
    c1 = -2.0 * k * math.log2(math.e)
    c2 = c1 * 0.044715
    a(f"  s_mov_b32 s44, {f32bits(c2):#x}")
    a(f"  v_mov_b32 v10, {f32bits(c1):#x}")
    for i in range(16):
        a(f"  v_mul_f32 v{R+i}, v{ACC+i}, v{ACC+i}")
    for i in range(16):
        a(f"  v_fma_f32 v{R+i}, v{R+i}, s44, v10")
    for i in range(16):
        a(f"  v_mul_f32 v{R+i}, v{R+i}, v{ACC+i}")
    for i in range(16):
        a(f"  v_exp_f32 v{R+i}, v{R+i}")
    for i in range(16):
        a(f"  v_add_f32 v{R+i}, 1.0, v{R+i}")
    for i in range(16):
        a(f"  v_rcp_f32 v{R+i}, v{R+i}")
    for i in range(16):
        a(f"  v_mul_f32 v{R+i}, v{R+i}, v{ACC+i}")
    for i in range(8):
        a(f"  v_cvt_pk_bf16_f32 v{R+16+i}, v{R+2*i}, v{R+2*i+1}")
    a(f"""
  s_lshl_b32 s44, s36, 2
  s_and_b32 s45, s3, 1
  s_lshl_b32 s45, s45, 1
  s_add_u32 s44, s44, s45
  s_lshl_b32 s44, s44, 14            ; f16*16KB
  s_lshl_b32 s45, s37, 1
  s_lshr_b32 s46, s3, 1
  s_add_u32 s45, s45, s46
  s_lshl_b32 s45, s45, 10
  s_add_u32 s44, s44, s45
  v_add_u32 v8, s44, v3
  s_movk_i32 s46, 0x4000
  buffer_store_dwordx4 v[{R+16}:{R+19}], v8, s[12:15], 0 offen
  buffer_store_dwordx4 v[{R+20}:{R+23}], v8, s[12:15], s46 offen
  s_endpgm
""")

    S = 0
    S = 16
    KF = 160
    QF = 196
    VF = 200
    OA = 224
    NEG = 240
    GV = 241
    MX = 242
    MX2 = 243
    cscale = 0.25 * math.log2(math.e)
    a(f"""
k2_attn:
  s_sub_u32 s3, s3, 4                ; wave 0..3
  s_and_b32 s40, s2, 7               ; xcd
  s_lshr_b32 s41, s2, 3              ; idx
  s_lshl_b32 s36, s40, 2
  s_lshr_b32 s42, s41, 3
  s_add_u32 s36, s36, s42            ; head
  s_and_b32 s42, s41, 7
  s_lshl_b32 s42, s42, 3
  s_lshl_b32 s43, s3, 1
  s_add_u32 s37, s42, s43
  v_and_b32 v3, 31, v2               ; l&31
  v_lshrrev_b32 v4, 5, v2            ; hi
  v_lshlrev_b32 v5, 5, v3
  v_lshl_add_u32 v5, v4, 4, v5       ; (l&31)*32 + hi*16
  s_lshl_b32 s44, s36, 16            ; head*64KB
  v_add_u32 v5, s44, v5
  v_and_b32 v6, 15, v2
  v_lshlrev_b32 v6, 4, v6
  v_lshl_add_u32 v6, v4, 8, v6
  v_add_u32 v6, s44, v6
  v_add_u32 v6, {WS_V:#x}, v6
  v_lshlrev_b32 v7, 4, v2            ; lane*16
  s_lshl_b32 s44, s36, 10
  s_add_u32 s44, s44, {WS_O:#x}
  v_add_u32 v7, s44, v7
  v_lshlrev_b32 v8, 2, v3
  v_add_u32 v8, {WS_G:#x}, v8
  v_mov_b32 v{NEG}, {f32bits(-1e30):#x}
  s_mov_b32 s38, {f32bits(cscale):#x}
  v_lshlrev_b32 v9, 2, v4            ; 4hi
""")
    for r in range(16):
        a(f"  v_add_u32 v10, {(r&3) + 8*(r>>2)}, v9")
        a(f"  v_cmp_le_u32 s[{64+2*r}:{65+2*r}], v10, v3")
    for i in range(24):
        a(f"  v_mov_b32 v{VF+i}, 0x3f803f80")
    a(f"""
  v_cmp_gt_u32 s[50:51], 16, v3
  s_mov_b32 s39, 0
k2_unit:
  s_sub_u32 s52, 8, s37
  s_cmp_gt_u32 s37, 8
  s_cselect_b32 s52, 0, s52
  s_lshl_b32 s44, s37, 10
  buffer_load_dwordx4 v[{QF}:{QF+3}], v5, s[8:11], s44 offen
  s_lshl_b32 s45, s37, 7
  buffer_load_dword v{GV}, v8, s[8:11], s45 offen
""")
    for i in range(9):
        a(f"  s_add_u32 s45, s37, {i}")
        a(f"  s_max_u32 s45, s45, 8")
        a(f"  s_sub_u32 s45, s45, 8")
        a(f"  s_lshl_b32 s{54+i}, s45, 10")
        a(f"  s_add_u32 s45, s{54+i}, {WS_K:#x}")
        a(f"  buffer_load_dwordx4 v[{KF+4*i}:{KF+4*i+3}], v5, s[8:11], s45 offen")

    def vload(i):
        r = VF + 8 * (i % 3)
        a(f"  s_mov_b64 exec, s[50:51]")
        a(f"  buffer_load_dwordx4 v[{r}:{r+3}], v6, s[8:11], s{54+i} offen")
        a(f"  buffer_load_dwordx4 v[{r+4}:{r+7}], v6, s[8:11], s{54+i} offen offset:512")
        a(f"  s_mov_b64 exec, -1")

    for i in range(3):
        vload(i)
    for i in range(9):
        a(f"  s_waitcnt vmcnt({6 + 8 - i})")
        a(f"  {MFMA} v[{S+16*i}:{S+16*i+15}], v[{KF+4*i}:{KF+4*i+3}], v[{QF}:{QF+3}], 0")
    for i in range(16):
        a(f"  v_mov_b32 v{OA+i}, 0")
    for r in range(16):
        a(f"  v_cndmask_b32 v{S+r}, v{S+r}, v{NEG}, s[{64+2*r}:{65+2*r}]")
    a("  s_nop 7")
    for r in range(16):
        a(f"  v_cndmask_b32 v{S+128+r}, v{NEG}, v{S+128+r}, s[{64+2*r}:{65+2*r}]")
    a(f"  s_cmp_eq_u32 s52, 0")
    a(f"  s_cbranch_scc1 k2_allvalid")
    for i in range(8):
        a(f"  s_cmp_le_u32 s52, {i}")
        a(f"  s_cbranch_scc1 k2_allvalid")
        for r in range(16):
            a(f"  v_mov_b32 v{S+16*i+r}, v{NEG}")
    a("k2_allvalid:")
    a(f"  v_max3_f32 v{MX}, v{S}, v{S+1}, v{S+2}")
    a(f"  v_max3_f32 v{MX2}, v{S+3}, v{S+4}, v{S+5}")
    idx = 6
    tog = 0
    while idx < 144:
        m = MX if tog == 0 else MX2
        a(f"  v_max3_f32 v{m}, v{m}, v{S+idx}, v{S+idx+1}")
        idx += 2
        tog ^= 1
    a(f"""
  v_max_f32 v{MX}, v{MX}, v{MX2}
  v_mov_b32 v{MX2}, v{MX}
  s_nop 1
  v_permlane32_swap_b32 v{MX}, v{MX2}
  s_nop 1
  v_max_f32 v{MX}, v{MX}, v{MX2}
  v_mul_f32 v{MX}, s38, v{MX}
""")
    for i in range(9):
        b = S + 16 * i
        for r in range(16):
            a(f"  v_fma_f32 v{b+r}, v{b+r}, s38, -v{MX}")
        for r in range(16):
            a(f"  v_exp_f32 v{b+r}, v{b+r}")
        a("  s_nop 0")
        for q in range(8):
            a(f"  v_cvt_pk_bf16_f32 v{b+q}, v{b+2*q}, v{b+2*q+1}")
        r = VF + 8 * (i % 3)
        nout = 2 * (min(9, i + 3) - i - 1)
        a(f"  s_waitcnt vmcnt({nout})")
        a(f"  {MFMA} v[{OA}:{OA+15}], v[{r}:{r+3}], v[{b}:{b+3}], v[{OA}:{OA+15}]")
        a(f"  {MFMA} v[{OA}:{OA+15}], v[{r+4}:{r+7}], v[{b+4}:{b+7}], v[{OA}:{OA+15}]")
        if i + 3 < 9:
            vload(i + 3)
    a(f"""
  s_nop 7
  s_nop 7
  v_rcp_f32 v10, v{OA+8}
  s_nop 0
  v_mul_f32 v10, v10, v{GV}
""")
    for r in range(8):
        a(f"  v_mul_f32 v{OA+r}, v{OA+r}, v10")
    for q in range(4):
        a(f"  v_cvt_pk_bf16_f32 v{12+q}, v{OA+2*q}, v{OA+2*q+1}")
    a(f"""
  s_lshl_b32 s44, s37, 15
  buffer_store_dwordx4 v[12:15], v7, s[8:11], s44 offen
  s_add_u32 s37, s37, 1
  s_add_u32 s39, s39, 1
  s_cmp_lt_u32 s39, 2
  s_cbranch_scc1 k2_unit
k2_end:
  s_endpgm
""")


def k3(a):
    a(f"""
.text
.globl k3_kernel
.p2align 8
.type k3_kernel,@function
k3_kernel:
  s_cmp_ge_u32 s2, 256
  s_cbranch_scc1 k3_end
  s_load_dwordx2 s[16:17], s[0:1], 16
  s_load_dwordx2 s[18:19], s[0:1], 48
  s_load_dwordx2 s[20:21], s[0:1], 56
  s_load_dwordx2 s[22:23], s[0:1], 72
  s_load_dwordx2 s[24:25], s[0:1], 88
  v_lshrrev_b32 v1, 6, v0
  v_and_b32 v2, 63, v0
  s_nop 0
  v_readfirstlane_b32 s3, v1
  s_waitcnt lgkmcnt(0)
""")
    srd(a, 4, 16, 512 * 512 * 2)
    srd(a, 8, 18, 1376 * 2048 * 2)
    srd(a, 12, 24, 86 * 16 * 1024, WS_U)
    srd(a, 28, 24, WS_END)
    srd(a, 32, 20, 2048 * 2)
    srd(a, 52, 22, 2048 * 512 * 2)
    D = 8
    NY, NO = 22, 8
    NS = NY + NO
    DR = 16
    LF = 80
    ACC = 96
    a(f"""
  s_and_b32 s40, s2, 7               ; xcd
  s_lshr_b32 s41, s2, 3              ; idx 0..31
  s_lshl_b32 s36, s40, 2
  s_and_b32 s42, s41, 3
  s_add_u32 s36, s36, s42
  s_lshr_b32 s37, s41, 2             ; dt
  v_lshlrev_b32 v3, 4, v2            ; lane*16
  s_mul_i32 s44, s3, {22*16384}
  s_lshl_b32 s45, s37, 11
  s_add_u32 s44, s44, s45
  v_add_u32 v4, s44, v3
  s_lshl_b32 s44, s36, 16
  s_lshl_b32 s45, s3, 13
  s_add_u32 s44, s44, s45
  s_add_u32 s44, s44, {WS_O:#x}
  v_add_u32 v5, s44, v3
  v_add_u32 v6, 0x8000, v5
  v_lshrrev_b32 v7, 3, v2
  v_and_b32 v8, 7, v2
  v_bfe_u32 v9, v7, 1, 1
  v_lshlrev_b32 v9, 2, v9
  v_xor_b32 v8, v8, v9
  v_lshlrev_b32 v8, 4, v8            ; c16*16
  s_mul_i32 s44, s3, {22*16*4096}
  s_lshl_b32 s45, s36, 7
  s_add_u32 s44, s44, s45
  v_lshl_add_u32 v10, v7, 12, v8
  v_add_u32 v10, s44, v10
  v_add_u32 v11, 0x8000, v10         ; rows 8-15
  s_lshl_b32 s44, s3, 17             ; 8w*16*1024
  s_lshl_b32 s45, s37, 7
  s_add_u32 s44, s44, s45
  v_lshl_add_u32 v12, v7, 10, v8
  v_add_u32 v12, s44, v12
  v_add_u32 v13, 0x2000, v12
  s_lshl_b32 s38, s3, 14
  v_and_b32 v7, 15, v2
  v_lshrrev_b32 v8, 2, v7            ; i>>2
  v_lshrrev_b32 v9, 5, v2            ; hi
  v_lshl_add_u32 v9, v9, 2, v8       ; row
  v_lshlrev_b32 v14, 7, v9           ; row*128
  v_bfe_u32 v9, v9, 1, 1
  v_lshl_add_u32 v14, v9, 6, v14     ; + swz*64 (b=0)
  v_bfe_u32 v9, v2, 4, 1
  v_lshl_add_u32 v14, v9, 5, v14
  v_and_b32 v7, 3, v7
  v_lshl_add_u32 v14, v7, 3, v14
  v_add_u32 v14, s38, v14            ; b=0
  v_xor_b32 v15, 64, v14             ; b=1
""")

    def issue(i):
        slot = i % D
        r = DR + 8 * slot
        if i < NY:
            a(f"  s_mov_b32 s46, {i*16384}")
            a(f"  s_mov_b32 s47, {i*65536}")
            a(f"  buffer_load_dwordx4 v[{r}:{r+3}], v4, s[12:15], s46 offen")
            a(f"  buffer_load_dwordx4 v[{r+4}:{r+7}], v4, s[12:15], s46 offen offset:1024")
            a(f"  s_add_u32 m0, s38, {slot*2048}")
            a(f"  s_nop 0")
            a(f"  buffer_load_dwordx4 v10, s[8:11], s47 offen lds")
            a(f"  s_add_u32 m0, s38, {slot*2048+1024}")
            a(f"  s_nop 0")
            a(f"  buffer_load_dwordx4 v11, s[8:11], s47 offen lds")
        else:
            j = i - NY
            a(f"  s_movk_i32 s46, {j*1024}")
            a(f"  s_mov_b32 s47, {j*16384}")
            a(f"  buffer_load_dwordx4 v[{r}:{r+3}], v5, s[28:31], s46 offen")
            a(f"  buffer_load_dwordx4 v[{r+4}:{r+7}], v6, s[28:31], s46 offen")
            a(f"  s_add_u32 m0, s38, {slot*2048}")
            a(f"  s_nop 0")
            a(f"  buffer_load_dwordx4 v12, s[4:7], s47 offen lds")
            a(f"  s_add_u32 m0, s38, {slot*2048+1024}")
            a(f"  s_nop 0")
            a(f"  buffer_load_dwordx4 v13, s[4:7], s47 offen lds")

    def trreads(i):
        slot = i % D
        f = LF + 8 * (i & 1)
        for b in range(2):
            a(f"  ds_read_b64_tr_b16 v[{f+4*b}:{f+4*b+1}], v{14+b} offset:{slot*2048}")
            a(f"  ds_read_b64_tr_b16 v[{f+4*b+2}:{f+4*b+3}], v{14+b} offset:{slot*2048+1024}")

    GV = 160
    a(f"""
  v_and_b32 v7, 31, v2
  s_lshl_b32 s44, s36, 6
  v_add_u32 v7, s44, v7              ; s (b=0)
  v_lshlrev_b32 v8, 2, v7
  v_add_u32 v8, {WS_G:#x}, v8
  buffer_load_dword v{GV}, v8, s[28:31], 0 offen
  buffer_load_dword v{GV+1}, v8, s[28:31], 0 offen offset:128
  v_lshlrev_b32 v8, 1, v7
  buffer_load_ushort v{GV+2}, v8, s[32:35], 0 offen
  buffer_load_ushort v{GV+3}, v8, s[32:35], 0 offen offset:64
""")
    for i in range(D):
        issue(i)
    a(f"  s_waitcnt vmcnt({4*(D-1)})")
    trreads(0)
    for i in range(NS):
        if i + 1 < NS:
            last = min(NS - 1, i + D - 1)
            a(f"  s_waitcnt vmcnt({4*(last-(i+1))})")
            trreads(i + 1)
            a(f"  s_waitcnt lgkmcnt(4)")
        else:
            a(f"  s_waitcnt lgkmcnt(0)")
        r = DR + 8 * (i % D)
        f = LF + 8 * (i & 1)
        if i == NY:
            a("  s_nop 7")
            a("  s_nop 7")
            a(f"  v_sub_f32 v{GV+4}, 1.0, v{GV}")
            a(f"  v_sub_f32 v{GV+5}, 1.0, v{GV+1}")
            for b in range(2):
                for aa in range(2):
                    d = ACC + 16 * (aa + 2 * b)
                    for q in range(16):
                        a(f"  v_mul_f32 v{d+q}, v{d+q}, v{GV+4+b}")
            a("  s_nop 1")
        for b in range(2):
            for aa in range(2):
                d = ACC + 16 * (aa + 2 * b)
                c = "0" if i == 0 else f"v[{d}:{d+15}]"
                if i < NY:
                    A = f"v[{r+4*aa}:{r+4*aa+3}]"
                    B = f"v[{f+4*b}:{f+4*b+3}]"
                else:
                    A = f"v[{f+4*aa}:{f+4*aa+3}]"
                    B = f"v[{r+4*b}:{r+4*b+3}]"
                a(f"  {MFMA} v[{d}:{d+15}], {A}, {B}, {c}")
        if i + D < NS:
            issue(i + D)
    a(f"""
  v_add_u32 v8, s38, v3
  s_lshl_b32 s44, s3, 12
  v_add_u32 v9, s44, v3
  s_nop 7
  s_nop 7
""")
    for i in range(16):
        a(f"  ds_write_b128 v8, v[{ACC+4*i}:{ACC+4*i+3}] offset:{i*1024}")
    a("""
  s_waitcnt lgkmcnt(0)
  s_barrier
""")
    R = DR
    for sg in range(4):
        for q in range(4):
            a(f"  ds_read_b128 v[{R+16*sg+4*q}:{R+16*sg+4*q+3}], v9 offset:{sg*16384 + q*1024}")
    a(f"""
  s_lshr_b32 s44, s3, 1
  s_cmp_eq_u32 s44, 0
  s_cselect_b64 vcc, -1, 0
  v_cndmask_b32 v10, v{GV+5}, v{GV+4}, vcc     ; 1-g
  v_cndmask_b32 v11, v{GV+3}, v{GV+2}, vcc     ; b2 raw
  v_lshlrev_b32 v11, 16, v11
  v_mul_f32 v10, v10, v11            ; (1-g)*b2
  s_lshl_b32 s45, s44, 5
  v_add_u32 v7, s45, v7              ; s
  v_lshlrev_b32 v7, 10, v7
  s_lshl_b32 s45, s37, 7
  s_and_b32 s46, s3, 1
  s_lshl_b32 s46, s46, 6
  s_add_u32 s45, s45, s46
  v_add_u32 v7, s45, v7
  v_lshrrev_b32 v8, 5, v2
  v_lshl_add_u32 v7, v8, 4, v7       ; + hi*16
  s_waitcnt lgkmcnt(0)
""")
    for i in range(16):
        a(f"  v_add_f32 v{R+i}, v{R+i}, v{R+16+i}")
        a(f"  v_add_f32 v{R+32+i}, v{R+32+i}, v{R+48+i}")
        a(f"  v_add_f32 v{R+i}, v{R+i}, v10")
        a(f"  v_add_f32 v{R+i}, v{R+i}, v{R+32+i}")
    P = R + 16
    for q in range(4):
        a(f"  v_cvt_pk_bf16_f32 v{P+2*q}, v{R+4*q}, v{R+4*q+1}")
        a(f"  v_cvt_pk_bf16_f32 v{P+2*q+1}, v{R+4*q+2}, v{R+4*q+3}")
    a("  s_nop 1")
    for q in (0, 2):
        a(f"  v_permlane32_swap_b32 v{P+2*q}, v{P+2*q+2}")
        a(f"  v_permlane32_swap_b32 v{P+2*q+1}, v{P+2*q+3}")
    a(f"  buffer_store_dwordx4 v[{P}:{P+3}], v7, s[52:55], 0 offen")
    a(f"  buffer_store_dwordx4 v[{P+4}:{P+7}], v7, s[52:55], 0 offen offset:32")
    a("""
k3_end:
  s_endpgm
""")


def main():
    ref = open(f"cdna_kernels/{NAME}.s.ref").read().split("\n")
    hdr = [l for l in ref if l.startswith(";") and "@launch" not in l]
    a = Asm()
    for l in hdr:
        a(l)
    a("; @launch kernel=k1_kernel grid=(256,1,1) block=(256,1,1) lds=131072")
    a("; @launch kernel=k2_kernel grid=(256,1,1) block=(512,1,1) lds=65536")
    a("; @launch kernel=k3_kernel grid=(256,1,1) block=(256,1,1) lds=65536")
    a('.amdgcn_target "amdgcn-amd-amdhsa--gfx950"')
    k1(a)
    k2(a)
    k3(a)
    a(kd("k1_kernel", 256))
    a(kd("k2_kernel", 256))
    a(kd("k3_kernel", 256))
    out = sys.argv[1] if len(sys.argv) > 1 else f"cdna_kernels/{NAME}.s"
    open(out, "w").write(a.text())


if __name__ == "__main__":
    main()
```

```python
import math
import os
import struct
import sys

NAME = "gated_mix__sliding_block__mixer_token_mlp__prompt"
KN = NAME + "_kernel"

WS_Q = 0x000000
WS_K = 0x200000
WS_V = 0x400000
WS_H = 0x600000
WS_G = 0x800000
WS_O = 0x900000
WS_U = 0xB00000
WS_FL = 0xD00000
FL_LN = WS_FL
FL_QKV = WS_FL + 256 * 64
FL_U = WS_FL + 1024 * 64
FL_AT = WS_FL + 1792 * 64
WS_DBG = 0xE00000
WS_END = 0x1000000

STAMPS = os.environ.get("STAMPS", "0") == "1"
MFMA = "v_mfma_f32_32x32x16_bf16"
SPIN_MAX = 200000
EXP = set(os.environ.get("EXP", "").split(","))

L_A = 131072
L_AK = L_A
L_AV = L_A
L_CNT = L_A + 16384
LDS_BYTES = L_A + 16384 + 256


def f32bits(x):
    return struct.unpack("<I", struct.pack("<f", x))[0]


class Asm:
    def __init__(self):
        self.l = []
        self.n = 0

    def __call__(self, s):
        for line in s.strip("\n").split("\n"):
            self.l.append(line)

    def label(self, base):
        self.n += 1
        return f"L_{base}_{self.n}"

    def text(self):
        return "\n".join(self.l) + "\n"


class VM:
    def __init__(self, a):
        self.a = a
        self.ops = []

    def issue(self, tag, text):
        self.a(text)
        self.ops.append(tag)

    def wait(self, tags, extra=""):
        if not isinstance(tags, (list, tuple, set)):
            tags = [tags]
        idx = [i for i, t in enumerate(self.ops) if t in tags]
        if not idx:
            if extra:
                self.a(f"  s_waitcnt {extra}")
            return
        last = max(idx)
        n = len(self.ops) - 1 - last
        self.a(f"  s_waitcnt vmcnt({min(n, 63)}) {extra}".rstrip())
        self.ops = self.ops[last + 1:]

    def drained(self):
        self.ops = []


def srd(a, dst, ptr, nbytes, off=0):
    if off:
        a(f"  s_add_u32 s{dst}, s{ptr}, {off:#x}")
        a(f"  s_addc_u32 s{dst+1}, s{ptr+1}, 0")
        a(f"  s_and_b32 s{dst+1}, s{dst+1}, 0xffff")
    else:
        a(f"  s_mov_b32 s{dst}, s{ptr}")
        a(f"  s_and_b32 s{dst+1}, s{ptr+1}, 0xffff")
    a(f"  s_mov_b32 s{dst+2}, {nbytes:#x}")
    a(f"  s_mov_b32 s{dst+3}, 0x00020000")


def stamp(a, k):
    if not STAMPS:
        return
    a(f"  s_memrealtime s[98:99]")
    a(f"  s_waitcnt lgkmcnt(0)")
    a(f"  v_writelane_b32 v255, s98, {k}")


def stamp_flush(a):
    if not STAMPS:
        return
    a(f"  s_lshl_b32 s96, s2, 9")
    a(f"  s_add_u32 s96, s96, {WS_DBG:#x}")
    a(f"  v_lshrrev_b32 v254, 6, v0")
    a(f"  v_lshlrev_b32 v254, 6, v254")
    a(f"  v_and_b32 v253, 63, v0")
    a(f"  v_lshl_add_u32 v254, v253, 2, v254")
    a(f"  v_cmp_gt_u32 vcc, 16, v253")
    a(f"  s_and_saveexec_b64 s[100:101], vcc")
    a(f"  buffer_store_dword v255, v254, s[12:15], s96 offen")
    a(f"  s_mov_b64 exec, s[100:101]")


P_X, P_WQKV, P_WO, P_BX, P_W1, P_B1, P_W2, P_B2, P_GATE, P_OUT, P_DBG, P_WS = [40 + 2 * i for i in range(12)]
S_WS = 12
S_DBG = 64
TOK = 68


def get_token(a, vm, vt, vz):
    L = a.label("tok")
    Ld = a.label("tokd")
    a(f"  s_mov_b32 s97, 0")
    a(f"{L}:")
    a(f"  buffer_load_dwordx2 v[{vt}:{vt+1}], v{vz}, s[{S_DBG}:{S_DBG+3}], 0 offen sc1")
    a(f"  s_waitcnt vmcnt(0)")
    a(f"  v_readfirstlane_b32 s{TOK}, v{vt}")
    a(f"  v_readfirstlane_b32 s{TOK+1}, v{vt+1}")
    a(f"  s_add_u32 s97, s97, 1")
    a(f"  s_cmp_lg_u32 s{TOK}, 0")
    a(f"  s_cbranch_scc1 {Ld}")
    a(f"  s_cmp_gt_u32 s97, {SPIN_MAX}")
    a(f"  s_cbranch_scc1 {Ld}")
    a(f"  s_sleep 1")
    a(f"  s_branch {L}")
    a(f"{Ld}:")
    vm.drained()


def flag_load(vm, tag, vt, vaddr):
    vm.issue(tag, f"  buffer_load_dwordx2 v[{vt}:{vt+1}], v{vaddr}, s[{S_WS}:{S_WS+3}], 0 offen sc1")


def flag_check(a, vm, tag, vt, vaddr):
    vm.wait(tag)
    L = a.label("fl")
    Ld = a.label("fld")
    a(f"  s_mov_b32 s97, 0")
    a(f"{L}:")
    a(f"  v_cmp_eq_u64 vcc, s[{TOK}:{TOK+1}], v[{vt}:{vt+1}]")
    a(f"  s_cmp_eq_u64 vcc, exec")
    a(f"  s_cbranch_scc1 {Ld}")
    a(f"  s_add_u32 s97, s97, 1")
    a(f"  s_cmp_gt_u32 s97, {SPIN_MAX}")
    a(f"  s_cbranch_scc1 {Ld}")
    a(f"  s_sleep 1")
    a(f"  buffer_load_dwordx2 v[{vt}:{vt+1}], v{vaddr}, s[{S_WS}:{S_WS+3}], 0 offen sc1")
    a(f"  s_waitcnt vmcnt(0)")
    a(f"  s_branch {L}")
    a(f"{Ld}:")


def publish(a, vm, tags, s_off, vt, vz):
    a(f"  v_mov_b32 v{vt}, s{TOK}")
    a(f"  v_mov_b32 v{vt+1}, s{TOK+1}")
    vm.wait(tags)
    a(f"  s_mov_b64 exec, 1")
    vm.issue("flagst", f"  buffer_store_dwordx2 v[{vt}:{vt+1}], v{vz}, s[{S_WS}:{S_WS+3}], {s_off} offen sc1")
    a(f"  s_mov_b64 exec, -1")


def lds_barrier(a, cnt_off, target, vaddr, vt):
    L = a.label("lb")
    Ld = a.label("lbd")
    a(f"  v_mov_b32 v{vt}, 1")
    a(f"  s_mov_b64 exec, 1")
    a(f"  ds_add_u32 v{vaddr}, v{vt} offset:{cnt_off}")
    a(f"  s_mov_b64 exec, -1")
    a(f"  s_mov_b32 s97, 0")
    a(f"{L}:")
    a(f"  ds_read_b32 v{vt+1}, v{vaddr} offset:{cnt_off}")
    a(f"  s_waitcnt lgkmcnt(0)")
    a(f"  v_readfirstlane_b32 s96, v{vt+1}")
    a(f"  s_add_u32 s97, s97, 1")
    a(f"  s_cmp_ge_u32 s96, {target}")
    a(f"  s_cbranch_scc1 {Ld}")
    a(f"  s_cmp_gt_u32 s97, {SPIN_MAX*4}")
    a(f"  s_cbranch_scc1 {Ld}")
    a(f"  s_branch {L}")
    a(f"{Ld}:")


def gen(a):
    a(f"""
.text
.globl {KN}
.p2align 8
.type {KN},@function
{KN}:
  s_cmp_ge_u32 s2, 256
  s_cbranch_scc1 L_end
  s_load_dwordx16 s[40:55], s[0:1], 0
  s_load_dwordx8 s[56:63], s[0:1], 64
  v_lshrrev_b32 v1, 6, v0
  v_and_b32 v2, 63, v0
  v_mov_b32 v252, 0                  ; zero
  v_mov_b32 v251, {L_CNT}
  v_readfirstlane_b32 s3, v1
  s_waitcnt lgkmcnt(0)
""")
    srd(a, S_WS, P_WS, WS_END)
    srd(a, S_DBG, P_DBG, 256)
    stamp(a, 0)
    a("""
  s_cmp_ge_u32 s3, 4
  s_cbranch_scc1 L_attn
""")
    gwaves(a)
    awaves(a)
    a("""
L_end:
  s_endpgm
""")


def gwaves(a):
    vm = VM(a)
    srd(a, 4, P_X, 2048 * 512 * 2)
    srd(a, 8, P_WQKV, 512 * 1536 * 2)
    srd(a, 16, P_W1, 2048 * 1376 * 2)
    srd(a, 20, P_W2, 1376 * 2048 * 2)
    srd(a, 24, P_WO, 512 * 512 * 2)
    srd(a, 28, P_WS, 86 * 16 * 1024, WS_U)
    srd(a, 32, P_OUT, 2048 * 512 * 2)
    a(f"""
  s_and_b32 s81, s2, 7               ; xcd
  s_lshr_b32 s82, s2, 3              ; idx
  s_and_b32 s83, s81, 3
  s_mul_i32 s83, s83, 22
  s_add_u32 s83, s83, s82
  s_lshr_b32 s70, s83, 2             ; U ft
  s_lshr_b32 s84, s81, 2
  s_lshl_b32 s84, s84, 2
  s_and_b32 s83, s83, 3
  s_add_u32 s71, s84, s83            ; U dt
  s_lshl_b32 s72, s81, 2
  s_and_b32 s83, s82, 3
  s_add_u32 s72, s72, s83            ; Y st
  s_lshr_b32 s73, s82, 2             ; Y dt
  s_lshl_b32 s74, s3, 14
  s_cmp_lt_u32 s2, 176
  s_cselect_b32 s75, 1, 0
  v_lshlrev_b32 v3, 4, v2
  v_mov_b32 v250, v3
  v_lshrrev_b32 v7, 3, v2            ; row = l>>3
  v_and_b32 v8, 7, v2
  v_bfe_u32 v9, v7, 1, 1
  v_lshlrev_b32 v9, 2, v9
  v_xor_b32 v8, v8, v9
  v_lshlrev_b32 v8, 4, v8            ; c16*16
  s_movk_i32 s83, 2752
  v_mul_lo_u32 v9, v7, s83
  v_add_u32 v9, v9, v8
  s_mul_i32 s83, s3, {512*2752}
  s_lshl_b32 s84, s70, 7
  s_add_u32 s83, s83, s84
  v_add_u32 v240, s83, v9
  v_add_u32 v241, {8*2752}, v240
  s_mul_i32 s83, s3, {22*16*4096}
  s_lshl_b32 s84, s72, 7
  s_add_u32 s83, s83, s84
  v_lshl_add_u32 v9, v7, 12, v8
  v_add_u32 v242, s83, v9
  v_add_u32 v243, 0x8000, v242
  s_lshl_b32 s83, s3, 17
  s_lshl_b32 s84, s73, 7
  s_add_u32 s83, s83, s84
  v_lshl_add_u32 v9, v7, 10, v8
  v_add_u32 v244, s83, v9
  v_add_u32 v245, 0x2000, v244
  v_and_b32 v7, 15, v2
  v_lshrrev_b32 v8, 2, v7
  v_lshrrev_b32 v9, 5, v2
  v_lshl_add_u32 v9, v9, 2, v8       ; row
  v_lshlrev_b32 v10, 7, v9
  v_bfe_u32 v9, v9, 1, 1
  v_lshl_add_u32 v10, v9, 6, v10
  v_bfe_u32 v9, v2, 4, 1
  v_lshl_add_u32 v10, v9, 5, v10
  v_and_b32 v7, 3, v7
  v_lshl_add_u32 v10, v7, 3, v10
  v_add_u32 v246, s74, v10
  v_xor_b32 v247, 64, v246
  v_add_u32 v248, 0x10000, v246
  v_add_u32 v249, 0x10000, v247
  s_cmp_eq_u32 s75, 1
  s_cselect_b32 s76, s16, s20
  s_cselect_b32 s77, s17, s21
  s_cselect_b32 s78, s18, s22
  s_mov_b32 s79, 0x00020000
  s_mov_b32 s80, {16*4096}
  s_cselect_b32 s80, {16*2752}, s80
  s_cselect_b64 vcc, -1, 0
  v_cndmask_b32 v238, v242, v240, vcc
  v_cndmask_b32 v239, v243, v241, vcc
""")

    def prefetch8():
        a("  s_mov_b32 s85, 0")
        for i in range(8):
            a(f"  s_add_u32 m0, s74, {i*2048}")
            a(f"  s_nop 0")
            vm.issue(("dma", i), f"  buffer_load_dwordx4 v238, s[76:79], s85 offen lds")
            a(f"  s_add_u32 m0, s74, {i*2048+1024}")
            a(f"  s_nop 0")
            vm.issue(("dma", i), f"  buffer_load_dwordx4 v239, s[76:79], s85 offen lds")
            if i < 7:
                a("  s_add_u32 s85, s85, s80")

    a("""
  s_cmp_ge_u32 s2, 192
  s_cbranch_scc1 L_ln
""")
    qkv(a, vm, prefetch8)
    ln(a, vm, prefetch8)
    a("L_p1done:")
    stamp(a, 4)
    vm.ops = []
    a("""
  s_cmp_eq_u32 s75, 0
  s_cbranch_scc1 L_ystart
""")
    uphase(a, vm)
    a("L_ystart:")
    vm.ops = []
    yphase(a, vm)


def qkv(a, vm, prefetch8):
    a("""
  s_and_b32 s83, s81, 3
  s_lshl_b32 s83, s83, 2
  s_and_b32 s84, s82, 3
  s_add_u32 s36, s83, s84            ; st
  s_lshr_b32 s83, s81, 2
  s_mul_i32 s83, s83, 6
  s_lshr_b32 s84, s82, 2
  s_add_u32 s37, s83, s84            ; nt
  s_lshl_b32 s38, s3, 12
""")
    VXA, VWA = 4, 8
    a("  v_lshrrev_b32 v3, 3, v2")
    a("  v_and_b32 v12, 7, v2")
    a("  s_lshl_b32 s83, s36, 17")
    for i in range(4):
        a(f"  s_lshl_b32 s84, s3, 5")
        a(f"  s_add_u32 s84, s84, {8*i}")
        a(f"  v_add_u32 v13, s84, v3")
        a(f"  v_lshrrev_b32 v14, 1, v13")
        a(f"  v_and_b32 v14, 7, v14")
        a(f"  v_xor_b32 v14, v14, v12")
        a(f"  v_lshlrev_b32 v14, 4, v14")
        a(f"  v_lshl_add_u32 v14, v13, 10, v14")
        a(f"  v_add_u32 v{VXA+i}, s83, v14")
    a("""
  v_lshrrev_b32 v3, 4, v2
  v_and_b32 v12, 15, v2
  v_lshrrev_b32 v13, 2, v12
  v_xor_b32 v13, v13, v3
  v_lshlrev_b32 v13, 2, v13
  v_and_b32 v12, 3, v12
  v_or_b32 v13, v13, v12
  v_lshlrev_b32 v13, 4, v13
  s_lshl_b32 s83, s37, 8
  v_add_u32 v13, s83, v13
  s_movk_i32 s85, 3072
""")
    for i in range(4):
        a(f"  s_lshl_b32 s84, s3, 4")
        a(f"  s_add_u32 s84, s84, {4*i}")
        a(f"  v_add_u32 v14, s84, v3")
        a(f"  v_mul_lo_u32 v14, v14, s85")
        a(f"  v_add_u32 v{VWA+i}, v14, v13")

    def issue_chunk(c):
        slot = c % 4
        a(f"  s_movk_i32 s86, {c*128}")
        a(f"  s_mov_b32 s87, {c*196608}")
        for i in range(4):
            a(f"  s_add_u32 m0, s38, {slot*32768 + i*1024}")
            a(f"  s_nop 0")
            vm.issue(("ch", c), f"  buffer_load_dwordx4 v{VXA+i}, s[4:7], s86 offen lds")
            a(f"  s_add_u32 m0, s38, {slot*32768 + 16384 + i*1024}")
            a(f"  s_nop 0")
            vm.issue(("ch", c), f"  buffer_load_dwordx4 v{VWA+i}, s[8:11], s87 offen lds")

    for c in range(4):
        issue_chunk(c)
    VXR, VWR = 16, 24
    a("""
  s_and_b32 s88, s3, 1               ; ws
  s_lshr_b32 s89, s3, 1              ; wn
  v_and_b32 v3, 31, v2
  v_lshrrev_b32 v12, 5, v2
  s_lshl_b32 s84, s88, 6
  v_add_u32 v13, s84, v3
  v_lshrrev_b32 v14, 1, v13
  v_and_b32 v14, 7, v14
  v_lshlrev_b32 v13, 7, v13
""")
    for ks in range(4):
        a(f"  v_or_b32 v15, {2*ks}, v12")
        a(f"  v_xor_b32 v15, v15, v14")
        a(f"  v_lshl_add_u32 v{VXR+2*ks}, v15, 4, v13")
        a(f"  v_add_u32 v{VXR+2*ks+1}, 0x10000, v{VXR+2*ks}")
    a("""
  v_and_b32 v3, 15, v2
  v_lshrrev_b32 v13, 2, v3
  v_lshlrev_b32 v14, 11, v12
  v_lshl_add_u32 v14, v13, 8, v14
  v_bfe_u32 v15, v2, 4, 1
  v_lshl_add_u32 v14, v15, 5, v14
  v_and_b32 v15, 3, v3
  v_lshl_add_u32 v14, v15, 3, v14
  v_add_u32 v14, 0x4000, v14
  s_lshl_b32 s84, s89, 1
""")
    for b in range(2):
        a(f"  s_add_u32 s85, s84, {b}")
        a(f"  v_xor_b32 v15, s85, v13")
        a(f"  v_lshl_add_u32 v{VWR+2*b}, v15, 6, v14")
        a(f"  v_add_u32 v{VWR+2*b+1}, 0x10000, v{VWR+2*b}")
    FR, ACC = 32, 64

    def reads(c, ks, buf):
        slot = c % 4
        half = slot >> 1
        so = (slot & 1) * 32768
        f = FR + 16 * buf
        for aa in range(2):
            a(f"  ds_read_b128 v[{f+4*aa}:{f+4*aa+3}], v{VXR+2*ks+half} offset:{so + aa*4096}")
        for b in range(2):
            a(f"  ds_read_b64_tr_b16 v[{f+8+4*b}:{f+8+4*b+1}], v{VWR+2*b+half} offset:{so + ks*4096}")
            a(f"  ds_read_b64_tr_b16 v[{f+8+4*b+2}:{f+8+4*b+3}], v{VWR+2*b+half} offset:{so + ks*4096 + 1024}")

    def mfmas(buf, first, vmode):
        f = FR + 16 * buf
        for b in range(2):
            for aa in range(2):
                d = ACC + 16 * (aa + 2 * b)
                xa = f"v[{f+4*aa}:{f+4*aa+3}]"
                wb = f"v[{f+8+4*b}:{f+8+4*b+3}]"
                c = "0" if first else f"v[{d}:{d+15}]"
                if vmode:
                    a(f"  {MFMA} v[{d}:{d+15}], {xa}, {wb}, {c}")
                else:
                    a(f"  {MFMA} v[{d}:{d+15}], {wb}, {xa}, {c}")

    saved = list(vm.ops)

    def mainloop(vmode):
        vm.ops = list(saved)
        stamp(a, 1)
        vm.wait([("ch", 0)])
        a("  s_barrier")
        stamp(a, 2)
        reads(0, 0, 0)
        step = 0
        for c in range(8):
            for ks in range(4):
                buf = step & 1
                if ks < 3:
                    reads(c, ks + 1, buf ^ 1)
                    a("  s_waitcnt lgkmcnt(6)")
                    mfmas(buf, step == 0, vmode)
                else:
                    if c < 7:
                        j = c + 1
                        vm.wait([("ch", j)], "lgkmcnt(0)")
                        a("  s_barrier")
                        reads(j, 0, buf ^ 1)
                        if c + 4 < 8:
                            issue_chunk(c + 4)
                        if j == 6:
                            prefetch8()
                            vm.issue("tok", f"  buffer_load_dwordx2 v[28:29], v252, s[{S_DBG}:{S_DBG+3}], 0 offen sc1")
                    else:
                        a("  s_waitcnt lgkmcnt(0)")
                        a("  s_barrier")
                    mfmas(buf, False, vmode)
                step += 1
        stamp(a, 3)

    def finish():
        vm.wait("tok")
        Lok = a.label("tokok")
        a(f"  v_readfirstlane_b32 s{TOK}, v28")
        a(f"  v_readfirstlane_b32 s{TOK+1}, v29")
        a(f"  s_cmp_lg_u32 s{TOK}, 0")
        a(f"  s_cbranch_scc1 {Lok}")
        keep = list(vm.ops)
        get_token(a, vm, 28, 252)
        vm.ops = keep
        a(f"{Lok}:")
        a(f"""
  s_lshl_b32 s83, s37, 1
  s_add_u32 s83, s83, s89
  s_lshl_b32 s83, s83, 5
  s_lshl_b32 s84, s36, 1
  s_add_u32 s84, s84, s88
  s_add_u32 s83, s83, s84
  s_lshl_b32 s83, s83, 6
  s_add_u32 s83, s83, {FL_QKV:#x}
""")
        publish(a, vm, "st", "s83", 28, 252)
        a("  s_branch L_p1done")

    a("  s_cmp_ge_u32 s37, 8")
    a("  s_cbranch_scc1 L_vpath")
    mainloop(False)
    a("""
  v_and_b32 v3, 31, v2
  v_lshrrev_b32 v12, 5, v2
  s_lshl_b32 s83, s36, 7
  s_lshl_b32 s84, s88, 6
  s_add_u32 s83, s83, s84
  v_add_u32 v3, s83, v3
  v_lshlrev_b32 v3, 5, v3
  v_lshl_add_u32 v3, v12, 4, v3
  s_and_b32 s83, s37, 3
  s_lshl_b32 s83, s83, 3
  s_lshl_b32 s84, s89, 2
  s_add_u32 s83, s83, s84
  s_lshl_b32 s83, s83, 16
  s_lshr_b32 s84, s37, 2
  s_lshl_b32 s84, s84, 21
  s_add_u32 s83, s83, s84
  v_add_u32 v3, s83, v3
  s_nop 7
""")
    for b in range(2):
        for aa in range(2):
            d = ACC + 16 * (aa + 2 * b)
            for hh in range(2):
                t = FR + 4 * ((2 * (aa + 2 * b) + hh) % 8)
                for q in range(4):
                    a(f"  v_cvt_pk_bf16_f32 v{t+q}, v{d+8*hh+2*q}, v{d+8*hh+2*q+1}")
                a(f"  s_mov_b32 s85, {(2*b+hh)*65536}")
                vm.issue("st", f"  buffer_store_dwordx4 v[{t}:{t+3}], v3, s[12:15], s85 offen offset:{aa*1024} sc1")
    finish()
    a("L_vpath:")
    mainloop(True)
    a(f"""
  v_and_b32 v3, 15, v2
  v_lshrrev_b32 v12, 5, v2
  v_lshlrev_b32 v3, 4, v3
  v_lshl_add_u32 v3, v12, 8, v3
  v_bfe_u32 v12, v2, 4, 1
  v_lshl_add_u32 v3, v12, 16, v3
  s_and_b32 s83, s37, 3
  s_lshl_b32 s83, s83, 3
  s_lshl_b32 s84, s89, 2
  s_add_u32 s83, s83, s84
  s_lshl_b32 s83, s83, 16
  s_lshl_b32 s84, s36, 2
  s_lshl_b32 s85, s88, 1
  s_add_u32 s84, s84, s85
  s_lshl_b32 s84, s84, 10
  s_add_u32 s83, s83, s84
  s_add_u32 s83, s83, {WS_V:#x}
  v_add_u32 v3, s83, v3
  s_nop 7
""")
    for b in range(2):
        for aa in range(2):
            d = ACC + 16 * (aa + 2 * b)
            for tt in range(2):
                t = FR + 4 * ((2 * (aa + 2 * b) + tt) % 8)
                for q in range(4):
                    a(f"  v_cvt_pk_bf16_f32 v{t+q}, v{d+8*tt+2*q}, v{d+8*tt+2*q+1}")
                a(f"  s_mov_b32 s85, {2*b*65536}")
                vm.issue("st", f"  buffer_store_dwordx4 v[{t}:{t+3}], v3, s[12:15], s85 offen offset:{aa*1024 + tt*512} sc1")
    finish()


def ln(a, vm, prefetch8):
    vm.ops = []
    HOFF = 65536
    XR, GR, FX = 16, 48, 80
    srd_ = []
    a("L_ln:")
    srd(a, 36, P_GATE, 1024)
    a(f"""
  s_sub_u32 s90, s2, 192             ; a
  v_lshrrev_b32 v3, 3, v2
  v_and_b32 v4, 7, v2
  s_lshl_b32 s83, s90, 5
  s_lshl_b32 s84, s3, 3
  s_add_u32 s83, s83, s84
  v_add_u32 v5, s83, v3              ; row
  v_lshlrev_b32 v6, 4, v4
  v_lshl_add_u32 v7, v5, 10, v6
""")
    for i in range(8):
        vm.issue("x", f"  buffer_load_dwordx4 v[{XR+4*i}:{XR+4*i+3}], v7, s[4:7], 0 offen offset:{i*128}")
    for i in range(8):
        vm.issue("x", f"  buffer_load_dwordx4 v[{GR+4*i}:{GR+4*i+3}], v6, s[36:39], 0 offen offset:{i*128}")
    vm.issue("tok", f"  buffer_load_dwordx2 v[144:145], v252, s[{S_DBG}:{S_DBG+3}], 0 offen sc1")
    stamp(a, 1)
    vm.wait("x")
    stamp(a, 2)
    for i in range(32):
        a(f"  v_lshlrev_b32 v{FX+2*i}, 16, v{XR+i}")
        a(f"  v_and_b32 v{FX+2*i+1}, 0xffff0000, v{XR+i}")
    for c in range(4):
        a(f"  v_add_f32 v{9+c}, v{FX+c}, v{FX+4+c}")
    for i in range(8, 64):
        a(f"  v_add_f32 v{9+(i&3)}, v{9+(i&3)}, v{FX+i}")
    a(f"  v_mov_b32 v13, 0")
    a(f"  v_mov_b32 v14, 0")
    for i in range(32):
        a(f"  v_dot2_f32_bf16 v{13+(i&1)}, v{XR+i}, v{GR+i}, v{13+(i&1)}")
    a("""
  v_add_f32 v9, v9, v10
  v_add_f32 v11, v11, v12
  v_add_f32 v9, v9, v11
  s_nop 2
  v_add_f32 v13, v13, v14
""")

    def red8(r):
        a(f"  s_nop 1")
        a(f"  v_add_f32_dpp v{r}, v{r}, v{r} quad_perm:[1,0,3,2] row_mask:0xf bank_mask:0xf")
        a(f"  s_nop 1")
        a(f"  v_add_f32_dpp v{r}, v{r}, v{r} quad_perm:[2,3,0,1] row_mask:0xf bank_mask:0xf")
        a(f"  s_nop 1")
        a(f"  v_add_f32_dpp v{r}, v{r}, v{r} row_half_mirror row_mask:0xf bank_mask:0xf")

    red8(9)
    red8(13)
    a(f"  v_mul_f32 v9, {f32bits(1.0/512):#x}, v9")
    for i in range(64):
        a(f"  v_sub_f32 v{FX+i}, v{FX+i}, v9")
    for c in range(4):
        a(f"  v_mul_f32 v{9+c}, v{FX+c}, v{FX+c}")
    for i in range(4, 64):
        a(f"  v_fmac_f32 v{9+(i&3)}, v{FX+i}, v{FX+i}")
    a("""
  v_add_f32 v9, v9, v10
  v_add_f32 v11, v11, v12
  v_add_f32 v9, v9, v11
""")
    red8(9)
    a(f"""
  v_mov_b32 v10, {f32bits(1e-5):#x}
  v_fmac_f32 v10, {f32bits(1.0/512):#x}, v9
  v_rsq_f32 v10, v10
  v_mul_f32 v13, {f32bits(-math.log2(math.e)):#x}, v13
  v_exp_f32 v13, v13
  s_nop 0
  v_add_f32 v13, 1.0, v13
  v_rcp_f32 v13, v13
  v_lshlrev_b32 v5, 2, v5
  v_add_u32 v5, {WS_G:#x}, v5
  v_cmp_eq_u32 vcc, 0, v4
  s_and_saveexec_b64 s[84:85], vcc
""")
    vm.issue("st", "  buffer_store_dword v13, v5, s[12:15], 0 offen sc1")
    a("  s_mov_b64 exec, -1")
    for i in range(64):
        a(f"  v_mul_f32 v{FX+i}, v{FX+i}, v10")
    for i in range(32):
        a(f"  v_cvt_pk_bf16_f32 v{XR+i}, v{FX+2*i}, v{FX+2*i+1}")
    a(f"""
  s_lshl_b32 s84, s3, 3
  v_add_u32 v3, s84, v3
  s_movk_i32 s85, 1088
  v_mul_lo_u32 v3, v3, s85
  v_add_u32 v3, v3, v6
  v_add_u32 v3, {HOFF}, v3
""")
    for i in range(8):
        a(f"  ds_write_b128 v3, v[{XR+4*i}:{XR+4*i+3}] offset:{i*128}")
    a(f"""
  v_and_b32 v3, 15, v2
  v_lshrrev_b32 v4, 2, v3
  v_lshrrev_b32 v5, 5, v2
  v_lshl_add_u32 v4, v5, 2, v4
  v_bfe_u32 v5, v2, 4, 1
  v_lshlrev_b32 v5, 5, v5
  v_and_b32 v3, 3, v3
  v_lshl_add_u32 v5, v3, 3, v5
  s_movk_i32 s85, 1088
  v_mul_lo_u32 v6, v4, s85
  v_add_u32 v6, v6, v5
  s_lshl_b32 s84, s3, 8
  s_add_u32 s84, s84, {HOFF}
  v_add_u32 v6, s84, v6
  s_lshl_b32 s83, s90, 11
  s_lshl_b32 s84, s3, 19
  s_add_u32 s84, s84, s83
  s_add_u32 s84, s84, {WS_H:#x}
  v_add_u32 v9, s84, v250
  s_waitcnt lgkmcnt(0)
  s_barrier
""")
    T = 16
    n = 0
    for db in range(4):
        for t in range(2):
            off = t * 17408 + db * 64
            a(f"  ds_read_b64_tr_b16 v[{T+4*n}:{T+4*n+1}], v6 offset:{off}")
            a(f"  ds_read_b64_tr_b16 v[{T+4*n+2}:{T+4*n+3}], v6 offset:{off+8*1088}")
            n += 1
    a("  s_waitcnt lgkmcnt(0)")
    a("  s_barrier")
    n = 0
    for db in range(4):
        for t2 in range(2):
            a(f"  s_mov_b32 s85, {db*131072}")
            vm.issue("st", f"  buffer_store_dwordx4 v[{T+4*n}:{T+4*n+3}], v9, s[12:15], s85 offen offset:{t2*1024} sc1")
            n += 1
    stamp(a, 3)
    vm.wait("tok")
    Lok = a.label("tokok")
    a(f"  v_readfirstlane_b32 s{TOK}, v144")
    a(f"  v_readfirstlane_b32 s{TOK+1}, v145")
    a(f"  s_cmp_lg_u32 s{TOK}, 0")
    a(f"  s_cbranch_scc1 {Lok}")
    keep = list(vm.ops)
    get_token(a, vm, 144, 252)
    vm.ops = keep
    a(f"{Lok}:")
    a(f"""
  s_lshl_b32 s83, s90, 2
  s_add_u32 s83, s83, s3
  s_lshl_b32 s83, s83, 6
  s_add_u32 s83, s83, {FL_LN:#x}
""")
    publish(a, vm, "st", "s83", 144, 252)
    prefetch8()


DR = 16
LF = 80
ACC = 96
NY, NO, NU = 22, 8, 32


def slot_m0(slot):
    return slot * 2048 if slot < 8 else 65536 + (slot - 8) * 2048


def trreads(a, slot, buf):
    f = LF + 8 * buf
    base = 246 if slot < 8 else 248
    off = (slot & 7) * 2048
    for b in range(2):
        a(f"  ds_read_b64_tr_b16 v[{f+4*b}:{f+4*b+1}], v{base+b} offset:{off}")
        a(f"  ds_read_b64_tr_b16 v[{f+4*b+2}:{f+4*b+3}], v{base+b} offset:{off+1024}")


def dma_y(a, vm, i):
    slot = i % 16
    if i < NY:
        a(f"  s_mov_b32 s87, {i*65536}")
        v0, sd = 242, 20
    else:
        a(f"  s_mov_b32 s87, {(i-NY)*16384}")
        v0, sd = 244, 24
    a(f"  s_add_u32 m0, s74, {slot_m0(slot)}")
    a(f"  s_nop 0")
    vm.issue(("yd", i), f"  buffer_load_dwordx4 v{v0}, s[{sd}:{sd+3}], s87 offen lds")
    a(f"  s_add_u32 m0, s74, {slot_m0(slot)+1024}")
    a(f"  s_nop 0")
    vm.issue(("yd", i), f"  buffer_load_dwordx4 v{v0+1}, s[{sd}:{sd+3}], s87 offen lds")


def uphase(a, vm):
    BIAS = 160
    srd(a, 36, P_B1, 1376 * 2)
    a(f"""
  v_and_b32 v3, 15, v2
  s_lshl_b32 s83, s3, 4
  v_add_u32 v3, s83, v3
  v_lshlrev_b32 v3, 2, v3
  s_lshr_b32 s83, s71, 1
  v_add_u32 v3, s83, v3
  v_lshlrev_b32 v3, 6, v3
  v_add_u32 v3, {FL_LN:#x}, v3
""")
    flag_load(vm, "fl", 4, 3)
    a(f"""
  s_lshl_b32 s83, s71, 18            ; 2dt*128KB
  s_lshl_b32 s84, s3, 15             ; 32w*1KB
  s_add_u32 s83, s83, s84
  s_add_u32 s83, s83, {WS_H:#x}
  v_add_u32 v6, s83, v250            ; hf b=0
  v_add_u32 v7, 0x20000, v6          ; b=1
  v_lshrrev_b32 v8, 5, v2
  v_lshlrev_b32 v8, 3, v8
  s_lshl_b32 s83, s70, 7
  s_and_b32 s84, s3, 1
  s_lshl_b32 s84, s84, 6
  s_add_u32 s83, s83, s84
  v_add_u32 v8, s83, v8
""")
    for q in range(4):
        vm.issue("bias", f"  buffer_load_dwordx2 v[{BIAS+2*q}:{BIAS+2*q+1}], v8, s[36:39], 0 offen offset:{q*16}")
    flag_check(a, vm, "fl", 4, 3)
    stamp(a, 5)

    def direct(i):
        r = DR + 8 * (i % 8)
        a(f"  s_mov_b32 s86, {i*1024}")
        vm.issue(("ud", i), f"  buffer_load_dwordx4 v[{r}:{r+3}], v6, s[12:15], s86 offen sc1")
        vm.issue(("ud", i), f"  buffer_load_dwordx4 v[{r+4}:{r+7}], v7, s[12:15], s86 offen sc1")

    def dma(i):
        if i < NU:
            slot = i % 8
            a(f"  s_mov_b32 s87, {i*16*2752}")
            a(f"  s_add_u32 m0, s74, {slot*2048}")
            a(f"  s_nop 0")
            vm.issue(("uw", i), f"  buffer_load_dwordx4 v240, s[16:19], s87 offen lds")
            a(f"  s_add_u32 m0, s74, {slot*2048+1024}")
            a(f"  s_nop 0")
            vm.issue(("uw", i), f"  buffer_load_dwordx4 v241, s[16:19], s87 offen lds")
        else:
            dma_y(a, vm, i - NU)

    for i in range(8):
        direct(i)
    vm.wait([("ud", 0)])
    trreads(a, 0, 0)
    for i in range(NU):
        if i + 1 < NU:
            vm.wait([("ud", i + 1), ("uw", i + 1)])
            trreads(a, (i + 1) % 8, (i + 1) & 1)
            a(f"  s_waitcnt lgkmcnt(4)")
        else:
            a(f"  s_waitcnt lgkmcnt(0)")
        r = DR + 8 * (i % 8)
        f = LF + 8 * (i & 1)
        for b in range(2):
            for aa in range(2):
                d = ACC + 16 * (aa + 2 * b)
                c = "0" if i == 0 else f"v[{d}:{d+15}]"
                a(f"  {MFMA} v[{d}:{d+15}], v[{f+4*aa}:{f+4*aa+3}], v[{r+4*b}:{r+4*b+3}], {c}")
        if i + 8 < NU:
            direct(i + 8)
        dma(i + 8)
    stamp(a, 6)
    a(f"""
  s_lshl_b32 s83, s3, 12
  s_add_u32 s83, s83, 0x10000
  v_add_u32 v8, s83, v250
  s_add_u32 s83, s74, 0x10000
  v_add_u32 v9, s83, v250
  s_nop 7
  s_nop 7
""")
    for tau in range(4):
        for q in range(4):
            a(f"  ds_write_b128 v8, v[{ACC+16*tau+4*q}:{ACC+16*tau+4*q+3}] offset:{tau*16384 + q*1024}")
    a("  s_waitcnt lgkmcnt(0)")
    lds_barrier(a, 0, 4, 251, 10)
    R = DR
    for sg in range(4):
        for q in range(4):
            a(f"  ds_read_b128 v[{R+16*sg+4*q}:{R+16*sg+4*q+3}], v9 offset:{sg*4096 + q*1024}")
    for q in range(4):
        a(f"  v_lshlrev_b32 v{ACC+4*q}, 16, v{BIAS+2*q}")
        a(f"  v_and_b32 v{ACC+4*q+1}, 0xffff0000, v{BIAS+2*q}")
        a(f"  v_lshlrev_b32 v{ACC+4*q+2}, 16, v{BIAS+2*q+1}")
        a(f"  v_and_b32 v{ACC+4*q+3}, 0xffff0000, v{BIAS+2*q+1}")
    a("  s_waitcnt lgkmcnt(0)")
    for i in range(16):
        a(f"  v_add_f32 v{R+i}, v{R+i}, v{R+16+i}")
        a(f"  v_add_f32 v{R+32+i}, v{R+32+i}, v{R+48+i}")
        a(f"  v_add_f32 v{ACC+i}, v{ACC+i}, v{R+i}")
        a(f"  v_add_f32 v{ACC+i}, v{ACC+i}, v{R+32+i}")
    k = math.sqrt(2.0 / math.pi)
    c1 = -2.0 * k * math.log2(math.e)
    c2 = c1 * 0.044715
    a(f"  s_mov_b32 s83, {f32bits(c2):#x}")
    a(f"  v_mov_b32 v10, {f32bits(c1):#x}")
    for i in range(16):
        a(f"  v_mul_f32 v{R+i}, v{ACC+i}, v{ACC+i}")
    for i in range(16):
        a(f"  v_fma_f32 v{R+i}, v{R+i}, s83, v10")
    for i in range(16):
        a(f"  v_mul_f32 v{R+i}, v{R+i}, v{ACC+i}")
    for i in range(16):
        a(f"  v_exp_f32 v{R+i}, v{R+i}")
    for i in range(16):
        a(f"  v_add_f32 v{R+i}, 1.0, v{R+i}")
    for i in range(16):
        a(f"  v_rcp_f32 v{R+i}, v{R+i}")
    for i in range(16):
        a(f"  v_mul_f32 v{R+i}, v{R+i}, v{ACC+i}")
    for i in range(8):
        a(f"  v_cvt_pk_bf16_f32 v{R+16+i}, v{R+2*i}, v{R+2*i+1}")
    a(f"""
  s_lshl_b32 s83, s70, 1
  s_and_b32 s84, s3, 1
  s_add_u32 s83, s83, s84            ; fblk
  s_lshl_b32 s84, s71, 1
  s_lshr_b32 s85, s3, 1
  s_add_u32 s84, s84, s85            ; dblk
  s_lshl_b32 s85, s83, 15
  s_lshl_b32 s86, s84, 10
  s_add_u32 s85, s85, s86
  v_add_u32 v8, s85, v250
  s_movk_i32 s86, 0x4000
""")
    vm.issue("st", f"  buffer_store_dwordx4 v[{R+16}:{R+19}], v8, s[28:31], 0 offen sc1")
    vm.issue("st", f"  buffer_store_dwordx4 v[{R+20}:{R+23}], v8, s[28:31], s86 offen sc1")
    a(f"""
  s_lshl_b32 s83, s83, 4
  s_add_u32 s83, s83, s84
  s_lshl_b32 s83, s83, 6
  s_add_u32 s83, s83, {FL_U:#x}
""")
    publish(a, vm, "st", "s83", 10, 252)
    stamp(a, 7)


def yphase(a, vm):
    NS = NY + NO
    GV = 160
    srd(a, 36, P_B2, 2048 * 2)
    for i in range(8, 16):
        dma_y(a, vm, i)
    a(f"""
  v_min_u32 v3, 21, v2
  v_lshrrev_b32 v4, 1, v3
  s_mul_i32 s83, s3, 11
  v_add_u32 v4, s83, v4
  v_min_u32 v4, 42, v4
  v_lshlrev_b32 v4, 4, v4
  v_and_b32 v3, 1, v3
  s_lshl_b32 s83, s73, 1
  v_add3_u32 v3, v3, v4, s83
  v_lshlrev_b32 v3, 6, v3
  v_add_u32 v3, {FL_U:#x}, v3
  v_subrev_u32 v4, 22, v2
  v_and_b32 v4, 7, v4
  s_lshl_b32 s83, s72, 3
  v_add_u32 v4, s83, v4
  v_lshlrev_b32 v4, 6, v4
  v_add_u32 v4, {FL_LN:#x}, v4
  v_cmp_lt_u32 vcc, 21, v2
  s_nop 1
  v_cndmask_b32 v3, v3, v4, vcc
""")
    flag_load(vm, "fl", 4, 3)
    a(f"""
  v_and_b32 v8, 7, v2
  s_lshl_b32 s83, s3, 3
  v_add_u32 v8, s83, v8
  v_lshlrev_b32 v8, 5, v8
  v_add_u32 v8, s72, v8
  v_lshlrev_b32 v8, 6, v8
  v_add_u32 v8, {FL_AT:#x}, v8
  s_mul_i32 s83, s3, {22*16384}
  s_lshl_b32 s84, s73, 11
  s_add_u32 s83, s83, s84
  v_add_u32 v12, s83, v250
  s_lshl_b32 s83, s72, 16
  s_lshl_b32 s84, s3, 13
  s_add_u32 s83, s83, s84
  s_add_u32 s83, s83, {WS_O:#x}
  v_add_u32 v13, s83, v250
  v_add_u32 v14, 0x8000, v13
  v_and_b32 v7, 31, v2
  s_lshl_b32 s83, s72, 6
  v_add_u32 v7, s83, v7              ; s (b=0)
  v_lshlrev_b32 v9, 1, v7
""")
    vm.issue("g", f"  buffer_load_ushort v{GV+2}, v9, s[36:39], 0 offen")
    vm.issue("g", f"  buffer_load_ushort v{GV+3}, v9, s[36:39], 0 offen offset:64")
    flag_check(a, vm, "fl", 4, 3)
    stamp(a, 8)
    a(f"""
  v_lshlrev_b32 v9, 2, v7
  v_add_u32 v9, {WS_G:#x}, v9
""")
    vm.issue("g", f"  buffer_load_dword v{GV}, v9, s[12:15], 0 offen sc1")
    vm.issue("g", f"  buffer_load_dword v{GV+1}, v9, s[12:15], 0 offen offset:128 sc1")

    def direct(i):
        r = DR + 8 * (i % 8)
        if i < NY:
            a(f"  s_mov_b32 s86, {i*16384}")
            vm.issue(("yr", i), f"  buffer_load_dwordx4 v[{r}:{r+3}], v12, s[28:31], s86 offen sc1")
            vm.issue(("yr", i), f"  buffer_load_dwordx4 v[{r+4}:{r+7}], v12, s[28:31], s86 offen offset:1024 sc1")
        else:
            j = i - NY
            a(f"  s_movk_i32 s86, {j*1024}")
            vm.issue(("yr", i), f"  buffer_load_dwordx4 v[{r}:{r+3}], v13, s[12:15], s86 offen sc1")
            vm.issue(("yr", i), f"  buffer_load_dwordx4 v[{r+4}:{r+7}], v14, s[12:15], s86 offen sc1")

    for i in range(8):
        direct(i)
    vm.wait([("yr", 0), ("yd", 0)])
    trreads(a, 0, 0)
    for i in range(NS):
        if i + 1 < NS:
            vm.wait([("yr", i + 1), ("yd", i + 1)])
            trreads(a, (i + 1) % 16, (i + 1) & 1)
            a(f"  s_waitcnt lgkmcnt(4)")
        else:
            a(f"  s_waitcnt lgkmcnt(0)")
        r = DR + 8 * (i % 8)
        f = LF + 8 * (i & 1)
        if i == NY:
            stamp(a, 9)
            a("  s_nop 7")
            a("  s_nop 7")
            a(f"  v_sub_f32 v{GV+4}, 1.0, v{GV}")
            a(f"  v_sub_f32 v{GV+5}, 1.0, v{GV+1}")
            for b in range(2):
                for aa in range(2):
                    d = ACC + 16 * (aa + 2 * b)
                    for q in range(16):
                        a(f"  v_mul_f32 v{d+q}, v{d+q}, v{GV+4+b}")
            a("  s_nop 1")
        for b in range(2):
            for aa in range(2):
                d = ACC + 16 * (aa + 2 * b)
                c = "0" if i == 0 else f"v[{d}:{d+15}]"
                if i < NY:
                    A = f"v[{r+4*aa}:{r+4*aa+3}]"
                    B = f"v[{f+4*b}:{f+4*b+3}]"
                else:
                    A = f"v[{f+4*aa}:{f+4*aa+3}]"
                    B = f"v[{r+4*b}:{r+4*b+3}]"
                a(f"  {MFMA} v[{d}:{d+15}], {A}, {B}, {c}")
        if i == NY - 8 - 6:
            flag_load(vm, "fa", 10, 8)
        if i == NY - 8 and "noattn" not in EXP:
            flag_check(a, vm, "fa", 10, 8)
        if i + 8 < NS:
            direct(i + 8)
        if i + 16 < NS:
            dma_y(a, vm, i + 16)
    stamp(a, 10)
    a(f"""
  v_add_u32 v8, s74, v250
  s_lshl_b32 s83, s3, 12
  v_add_u32 v9, s83, v250
  s_nop 7
  s_nop 7
""")
    for i in range(16):
        a(f"  ds_write_b128 v8, v[{ACC+4*i}:{ACC+4*i+3}] offset:{i*1024}")
    a("  s_waitcnt lgkmcnt(0)")
    lds_barrier(a, 4, 4, 251, 10)
    R = DR
    for sg in range(4):
        for q in range(4):
            a(f"  ds_read_b128 v[{R+16*sg+4*q}:{R+16*sg+4*q+3}], v9 offset:{sg*16384 + q*1024}")
    a(f"""
  s_lshr_b32 s83, s3, 1
  s_cmp_eq_u32 s83, 0
  s_cselect_b64 vcc, -1, 0
  v_cndmask_b32 v10, v{GV+5}, v{GV+4}, vcc
  v_cndmask_b32 v11, v{GV+3}, v{GV+2}, vcc
  v_lshlrev_b32 v11, 16, v11
  v_mul_f32 v10, v10, v11
  s_lshl_b32 s84, s83, 5
  v_add_u32 v7, s84, v7
  v_lshlrev_b32 v7, 10, v7
  s_lshl_b32 s84, s73, 7
  s_and_b32 s85, s3, 1
  s_lshl_b32 s85, s85, 6
  s_add_u32 s84, s84, s85
  v_add_u32 v7, s84, v7
  v_lshrrev_b32 v8, 5, v2
  v_lshl_add_u32 v7, v8, 4, v7
  s_waitcnt lgkmcnt(0)
""")
    for i in range(16):
        a(f"  v_add_f32 v{R+i}, v{R+i}, v{R+16+i}")
        a(f"  v_add_f32 v{R+32+i}, v{R+32+i}, v{R+48+i}")
        a(f"  v_add_f32 v{R+i}, v{R+i}, v10")
        a(f"  v_add_f32 v{R+i}, v{R+i}, v{R+32+i}")
    P = R + 16
    for q in range(4):
        a(f"  v_cvt_pk_bf16_f32 v{P+2*q}, v{R+4*q}, v{R+4*q+1}")
        a(f"  v_cvt_pk_bf16_f32 v{P+2*q+1}, v{R+4*q+2}, v{R+4*q+3}")
    a("  s_nop 1")
    for q in (0, 2):
        a(f"  v_permlane32_swap_b32 v{P+2*q}, v{P+2*q+2}")
        a(f"  v_permlane32_swap_b32 v{P+2*q+1}, v{P+2*q+3}")
    a(f"  buffer_store_dwordx4 v[{P}:{P+3}], v7, s[32:35], 0 offen")
    a(f"  buffer_store_dwordx4 v[{P+4}:{P+7}], v7, s[32:35], 0 offen offset:32")
    stamp(a, 11)
    if STAMPS:
        a("  s_waitcnt vmcnt(0)")
    stamp(a, 12)
    stamp_flush(a)
    a("  s_endpgm")


def awaves(a):
    vm = VM(a)
    S = 16
    KF = 160
    QF = 200
    VF = 208
    OA = 224
    NEG, GV, MX, MX2 = 240, 242, 244, 246
    CS = 248
    mask_pairs = [4, 6, 8, 10] + list(range(16, 40, 2))
    assert len(mask_pairs) == 16
    cscale = 0.25 * math.log2(math.e)
    a(f"""
L_attn:
  s_sub_u32 s3, s3, 4                ; aw
  s_cmp_lg_u32 s3, 0
  s_cbranch_scc1 L_a_notfirst
  v_mov_b32 v3, 0
  v_lshlrev_b32 v4, 2, v2
  v_add_u32 v4, {L_CNT}, v4
  ds_write_b32 v4, v3
  s_cmp_lg_u32 s2, 0
  s_cbranch_scc1 L_a_notok
  s_memrealtime s[70:71]
  s_waitcnt lgkmcnt(0)
  s_or_b32 s70, s70, 1
  v_mov_b32 v4, s70
  v_mov_b32 v5, s71
  s_mov_b64 exec, 1
  buffer_store_dwordx2 v[4:5], v252, s[{S_DBG}:{S_DBG+3}], 0 offen sc1
  s_mov_b64 exec, -1
L_a_notok:
  s_waitcnt lgkmcnt(0)
L_a_notfirst:
  s_and_b32 s81, s2, 7               ; xcd
  s_lshr_b32 s82, s2, 3              ; idx
  s_lshl_b32 s70, s81, 2
  s_lshr_b32 s83, s82, 3
  s_add_u32 s70, s70, s83            ; head
  s_and_b32 s83, s82, 7
  s_lshl_b32 s71, s83, 3             ; qb0
  s_lshl_b32 s83, s3, 1
  s_add_u32 s72, s71, s83
  v_and_b32 v3, 31, v2
  v_lshrrev_b32 v4, 5, v2
  v_lshlrev_b32 v5, 5, v3
  v_lshl_add_u32 v5, v4, 4, v5
  s_lshl_b32 s83, s70, 16
  v_add_u32 v5, s83, v5
  v_and_b32 v6, 15, v2
  v_lshlrev_b32 v6, 4, v6
  v_lshl_add_u32 v6, v4, 8, v6
  v_add_u32 v9, {L_AV}, v6
  v_add_u32 v6, s83, v6
  v_add_u32 v6, {WS_V:#x}, v6
  v_lshlrev_b32 v7, 4, v2
  s_lshl_b32 s83, s70, 10
  s_add_u32 s83, s83, {WS_O:#x}
  v_add_u32 v7, s83, v7
  v_lshlrev_b32 v8, 2, v3
  v_add_u32 v8, {WS_G:#x}, v8
  v_mov_b32 v{NEG}, {f32bits(-1e30):#x}
  v_mov_b32 v{CS}, {f32bits(cscale):#x}
  v_mov_b32 v{CS+1}, {f32bits(cscale):#x}
  v_lshlrev_b32 v10, 2, v4
""")
    for r in range(16):
        a(f"  v_add_u32 v11, {(r&3) + 8*(r>>2)}, v10")
        a(f"  v_cmp_le_u32 s[{mask_pairs[r]}:{mask_pairs[r]+1}], v11, v3")
    for i in range(16):
        a(f"  v_mov_b32 v{VF+i}, 0x3f803f80")
    a(f"  v_cmp_gt_u32 s[74:75], 16, v3")
    a(f"""
  s_lshr_b32 s84, s70, 2
  s_lshr_b32 s85, s72, 1
  s_lshl_b32 s86, s84, 5
  s_add_u32 s86, s86, s85
  s_lshl_b32 s86, s86, 6
  s_add_u32 s86, s86, {FL_QKV:#x}    ; Q flag
  v_mov_b32 v12, s86
""")
    lane = 1
    for t in range(5):
        a(f"  s_add_u32 s86, s85, {t}")
        a(f"  s_max_u32 s86, s86, 4")
        a(f"  s_sub_u32 s86, s86, 4")
        a(f"  s_add_u32 s87, s84, 8")
        a(f"  s_lshl_b32 s87, s87, 5")
        a(f"  s_add_u32 s86, s86, s87")
        a(f"  s_lshl_b32 s86, s86, 6")
        a(f"  s_add_u32 s86, s86, {FL_QKV:#x}")
        a(f"  v_writelane_b32 v12, s86, {lane}")
        lane += 1
    for t in range(2):
        a(f"  s_lshr_b32 s86, s71, 1")
        a(f"  s_lshl_b32 s87, s3, 1")
        a(f"  s_add_u32 s86, s86, s87")
        a(f"  s_add_u32 s86, s86, {t}")
        a(f"  s_max_u32 s86, s86, 4")
        a(f"  s_sub_u32 s86, s86, 4")
        a(f"  s_add_u32 s87, s84, 16")
        a(f"  s_lshl_b32 s87, s87, 5")
        a(f"  s_add_u32 s86, s86, s87")
        a(f"  s_lshl_b32 s86, s86, 6")
        a(f"  s_add_u32 s86, s86, {FL_QKV:#x}")
        a(f"  v_writelane_b32 v12, s86, {lane}")
        lane += 1
    for t in range(8):
        a(f"  s_lshl_b32 s86, s72, 2")
        a(f"  s_add_u32 s86, s86, {t}")
        a(f"  s_lshl_b32 s86, s86, 6")
        a(f"  s_add_u32 s86, s86, {FL_LN:#x}")
        a(f"  v_writelane_b32 v12, s86, {lane}")
        lane += 1
    srd(a, 76, P_W1, 2048 * 1376 * 2)
    srd(a, 84, P_W2, 1376 * 2048 * 2)
    srd(a, 88, P_WO, 512 * 512 * 2)
    a(f"""
  s_lshl_b32 s92, s2, 2
  s_add_u32 s92, s92, s3
  s_mul_i32 s93, s92, 5504
  v_lshlrev_b32 v13, 4, v2
  v_lshlrev_b32 v14, 3, v2
  s_lshl_b32 s94, s92, 9
  s_barrier
""")
    if "nopf" not in EXP:
        for k in range(6):
            a(f"  s_add_u32 s95, s93, {k*1024}")
            a(f"  buffer_load_dwordx4 v[{S+4*k}:{S+4*k+3}], v13, s[76:79], s95 offen")
    a(f"""
  s_cmp_lt_u32 s2, 192
  s_cbranch_scc0 L_a_bar1
  s_barrier
  s_barrier
L_a_bar1:
""")
    if "nopf" not in EXP:
        for k in range(6):
            a(f"  s_add_u32 s95, s93, {k*1024}")
            a(f"  buffer_load_dwordx4 v[{S+24+4*k}:{S+24+4*k+3}], v13, s[84:87], s95 offen")
        a(f"  buffer_load_dwordx2 v[{S+48}:{S+49}], v14, s[88:91], s94 offen")
    a(f"""
  s_cmp_lt_u32 s2, 192
  s_cselect_b32 s83, 6, 1
L_a_bar:
  s_barrier
  s_sub_u32 s83, s83, 1
  s_cmp_lg_u32 s83, 0
  s_cbranch_scc1 L_a_bar
""")
    if "noprio" not in EXP:
        a("  s_setprio 2")
    stamp(a, 1)
    if "noattn" in EXP:
        a("  s_endpgm")
    get_token(a, vm, 14, 252)
    flag_load(vm, "fl", 14, 12)
    flag_check(a, vm, "fl", 14, 12)
    vm.drained()
    stamp(a, 2)
    a(f"  s_mov_b64 exec, s[74:75]")
    for jj in range(4):
        a(f"  s_lshl_b32 s83, s3, 2")
        a(f"  s_add_u32 s83, s83, s71")
        a(f"  s_add_u32 s83, s83, {jj}")
        a(f"  s_max_u32 s83, s83, 8")
        a(f"  s_sub_u32 s83, s83, 8")
        a(f"  s_lshl_b32 s83, s83, 10")
        vm.issue("v", f"  buffer_load_dwordx4 v[{S+8*jj}:{S+8*jj+3}], v6, s[12:15], s83 offen sc1")
        vm.issue("v", f"  buffer_load_dwordx4 v[{S+8*jj+4}:{S+8*jj+7}], v6, s[12:15], s83 offen offset:512 sc1")
    a(f"  s_mov_b64 exec, -1")
    a(f"  s_lshl_b32 s83, s72, 10")
    vm.issue("q", f"  buffer_load_dwordx4 v[{QF}:{QF+3}], v5, s[12:15], s83 offen sc1")
    vm.issue("q", f"  buffer_load_dwordx4 v[{QF+4}:{QF+7}], v5, s[12:15], s83 offen offset:1024 sc1")
    for i in range(10):
        a(f"  s_add_u32 s83, s72, {i}")
        a(f"  s_max_u32 s83, s83, 8")
        a(f"  s_sub_u32 s83, s83, 8")
        a(f"  s_lshl_b32 s83, s83, 10")
        a(f"  s_add_u32 s83, s83, {WS_K:#x}")
        vm.issue(("k", i), f"  buffer_load_dwordx4 v[{KF+4*i}:{KF+4*i+3}], v5, s[12:15], s83 offen sc1")
    a(f"  s_lshl_b32 s83, s72, 7")
    vm.issue("g", f"  buffer_load_dword v{GV}, v8, s[12:15], s83 offen sc1")
    vm.issue("g", f"  buffer_load_dword v{GV+1}, v8, s[12:15], s83 offen offset:128 sc1")
    vm.wait("v")
    a(f"  s_lshl_b32 s83, s3, 12")
    a(f"  v_add_u32 v11, s83, v9")
    a(f"  s_mov_b64 exec, s[74:75]")
    for jj in range(4):
        a(f"  ds_write_b128 v11, v[{S+8*jj}:{S+8*jj+3}] offset:{jj*1024}")
        a(f"  ds_write_b128 v11, v[{S+8*jj+4}:{S+8*jj+7}] offset:{jj*1024+512}")
    a(f"  s_mov_b64 exec, -1")
    a(f"  s_waitcnt lgkmcnt(0)")
    lds_barrier(a, 8, 4, 251, 14)
    vm.wait("g")
    stamp(a, 3)
    a(f"  s_lshl_b32 s83, s3, 11")
    a(f"  v_add_u32 v9, s83, v9")

    def vread(u, i):
        r = VF + 8 * (i & 1)
        a(f"  s_mov_b64 exec, s[74:75]")
        a(f"  ds_read_b128 v[{r}:{r+3}], v9 offset:{(u+i)*1024}")
        a(f"  ds_read_b128 v[{r+4}:{r+7}], v9 offset:{(u+i)*1024+512}")
        a(f"  s_mov_b64 exec, -1")

    for u in range(2):
        Lav = a.label("allvalid")
        a(f"""
  s_add_u32 s73, s72, {u}            ; qb
  s_sub_u32 s76, 8, s73
  s_cmp_gt_u32 s73, 8
  s_cselect_b32 s76, 0, s76
""")
        for i in range(9):
            a(f"  {MFMA} v[{S+16*i}:{S+16*i+15}], v[{KF+4*(i+u)}:{KF+4*(i+u)+3}], v[{QF+4*u}:{QF+4*u+3}], 0")
        vread(u, 0)
        for i in range(16):
            a(f"  v_mov_b32 v{OA+i}, 0")
        for r in range(16):
            m = mask_pairs[r]
            a(f"  v_cndmask_b32 v{S+r}, v{S+r}, v{NEG}, s[{m}:{m+1}]")
        a("  s_nop 7")
        for r in range(16):
            m = mask_pairs[r]
            a(f"  v_cndmask_b32 v{S+128+r}, v{NEG}, v{S+128+r}, s[{m}:{m+1}]")
        a(f"  s_cmp_eq_u32 s76, 0")
        a(f"  s_cbranch_scc1 {Lav}")
        for i in range(8):
            a(f"  s_cmp_le_u32 s76, {i}")
            a(f"  s_cbranch_scc1 {Lav}")
            for r in range(16):
                a(f"  v_mov_b32 v{S+16*i+r}, v{NEG}")
        a(f"{Lav}:")
        a(f"  v_max3_f32 v{MX}, v{S}, v{S+1}, v{S+2}")
        a(f"  v_max3_f32 v{MX2}, v{S+3}, v{S+4}, v{S+5}")
        idx = 6
        tog = 0
        while idx < 144:
            m = MX if tog == 0 else MX2
            a(f"  v_max3_f32 v{m}, v{m}, v{S+idx}, v{S+idx+1}")
            idx += 2
            tog ^= 1
        a(f"""
  v_max_f32 v{MX}, v{MX}, v{MX2}
  v_mov_b32 v{MX2}, v{MX}
  s_nop 1
  v_permlane32_swap_b32 v{MX}, v{MX2}
  s_nop 1
  v_max_f32 v{MX}, v{MX}, v{MX2}
  v_mul_f32 v{MX}, v{CS}, v{MX}
  v_sub_f32 v{MX}, 0, v{MX}
  v_mov_b32 v{MX+1}, v{MX}
""")
        for i in range(9):
            b = S + 16 * i
            for r in range(0, 16, 2):
                a(f"  v_pk_fma_f32 v[{b+r}:{b+r+1}], v[{b+r}:{b+r+1}], v[{CS}:{CS+1}], v[{MX}:{MX+1}]")
            for r in range(16):
                a(f"  v_exp_f32 v{b+r}, v{b+r}")
            a("  s_nop 0")
            for q in range(8):
                a(f"  v_cvt_pk_bf16_f32 v{b+q}, v{b+2*q}, v{b+2*q+1}")
            r = VF + 8 * (i & 1)
            a(f"  s_waitcnt lgkmcnt(0)")
            if i + 1 < 9:
                vread(u, i + 1)
            a(f"  {MFMA} v[{OA}:{OA+15}], v[{r}:{r+3}], v[{b}:{b+3}], v[{OA}:{OA+15}]")
            a(f"  {MFMA} v[{OA}:{OA+15}], v[{r+4}:{r+7}], v[{b+4}:{b+7}], v[{OA}:{OA+15}]")
        a(f"""
  s_nop 7
  s_nop 7
  v_rcp_f32 v10, v{OA+8}
  s_nop 0
  v_mul_f32 v10, v10, v{GV+u}
""")
        for r in range(8):
            a(f"  v_mul_f32 v{OA+r}, v{OA+r}, v10")
        ob = 12 if u == 0 else 200
        for q in range(4):
            a(f"  v_cvt_pk_bf16_f32 v{ob+q}, v{OA+2*q}, v{OA+2*q+1}")
        a(f"  s_lshl_b32 s83, s73, 15")
        vm.issue("st", f"  buffer_store_dwordx4 v[{ob}:{ob+3}], v7, s[12:15], s83 offen sc1")
        stamp(a, 4 + u)
    a(f"""
  s_lshl_b32 s83, s70, 5
  s_lshr_b32 s84, s72, 1
  s_add_u32 s83, s83, s84
  s_lshl_b32 s83, s83, 6
  s_add_u32 s83, s83, {FL_AT:#x}
""")
    publish(a, vm, "st", "s83", 10, 252)
    stamp(a, 11)
    if STAMPS:
        a("  s_waitcnt vmcnt(0)")
    stamp(a, 12)
    stamp_flush(a)


def main():
    ref = open(f"cdna_kernels/{NAME}.s.ref").read().split("\n")
    hdr = [l for l in ref if l.startswith(";") and "@launch" not in l]
    a = Asm()
    for l in hdr:
        a(l)
    a(f"; @launch grid=(256,1,1) block=(512,1,1) lds={LDS_BYTES}")
    a('.amdgcn_target "amdgcn-amd-amdhsa--gfx950"')
    gen(a)
    a(f"""
.section .rodata,"a"
.p2align 6
.amdhsa_kernel {KN}
  .amdhsa_next_free_vgpr 256
  .amdhsa_next_free_sgpr 102
  .amdhsa_accum_offset 256
  .amdhsa_group_segment_fixed_size 0
  .amdhsa_kernarg_size 96
  .amdhsa_user_sgpr_count 2
  .amdhsa_user_sgpr_kernarg_segment_ptr 1
  .amdhsa_system_sgpr_workgroup_id_x 1
.end_amdhsa_kernel
""")
    out = sys.argv[1] if len(sys.argv) > 1 else f"cdna_kernels/{NAME}.s"
    txt = a.text()
    if "nosc1ld" in EXP:
        txt = "\n".join(l.replace(" sc1", "") if ("buffer_load_dwordx4" in l) else l for l in txt.split("\n"))
    open(out, "w").write(txt)


if __name__ == "__main__":
    main()
```

```python
import math
import os
import struct
import sys

NAME = "gated_mix__sliding_block__mixer_token_mlp__prompt"
KN = NAME + "_kernel"

WS_Q = 0x000000
WS_K = 0x200000
WS_V = 0x400000
WS_H = 0x600000
WS_G = 0x800000
WS_O = 0x900000
WS_U = 0xB00000
WS_FL = 0xD00000
FL_LN = WS_FL
FL_QKV = WS_FL + 256 * 64
FL_U = WS_FL + 1024 * 64
FL_AT = WS_FL + 1792 * 64
WS_DBG = 0xE00000
WS_END = 0x1000000

STAMPS = os.environ.get("STAMPS", "0") == "1"
MFMA = "v_mfma_f32_32x32x16_bf16"
SPIN_MAX = 200000
QSCALE = 0.25 * math.log2(math.e)
SLEEP = int(os.environ.get("SLEEP", "1"))
EXP = set(os.environ.get("EXP", "").split(","))

L_R0 = 0
L_QS = 40960
L_YB0 = L_QS + 65536
L_AV = L_QS + 98304
L_CNT = L_AV + 16384
LDS_BYTES = L_CNT + 256


def f32bits(x):
    return struct.unpack("<I", struct.pack("<f", x))[0]


class Asm:
    def __init__(self):
        self.l = []
        self.n = 0

    def __call__(self, s):
        for line in s.strip("\n").split("\n"):
            self.l.append(line)

    def label(self, base):
        self.n += 1
        return f"L_{base}_{self.n}"

    def text(self):
        return "\n".join(self.l) + "\n"


class VM:
    def __init__(self, a):
        self.a = a
        self.ops = []

    def issue(self, tag, text):
        self.a(text)
        self.ops.append(tag)

    def wait(self, tags, extra=""):
        if not isinstance(tags, (list, tuple, set)):
            tags = [tags]
        idx = [i for i, t in enumerate(self.ops) if t in tags]
        if not idx:
            if extra:
                self.a(f"  s_waitcnt {extra}")
            return
        last = max(idx)
        n = len(self.ops) - 1 - last
        self.a(f"  s_waitcnt vmcnt({min(n, 63)}) {extra}".rstrip())
        self.ops = self.ops[last + 1:]

    def drained(self):
        self.ops = []


def srd(a, dst, ptr, nbytes, off=0):
    if off:
        a(f"  s_add_u32 s{dst}, s{ptr}, {off:#x}")
        a(f"  s_addc_u32 s{dst+1}, s{ptr+1}, 0")
        a(f"  s_and_b32 s{dst+1}, s{dst+1}, 0xffff")
    else:
        a(f"  s_mov_b32 s{dst}, s{ptr}")
        a(f"  s_and_b32 s{dst+1}, s{ptr+1}, 0xffff")
    a(f"  s_mov_b32 s{dst+2}, {nbytes:#x}")
    a(f"  s_mov_b32 s{dst+3}, 0x00020000")


def stamp(a, k):
    if not STAMPS:
        return
    a(f"  s_memrealtime s[98:99]")
    a(f"  s_waitcnt lgkmcnt(0)")
    a(f"  v_writelane_b32 v255, s98, {k}")


def cstamp(a, k):
    if not STAMPS:
        return
    a(f"  s_memtime s[98:99]")
    a(f"  s_waitcnt lgkmcnt(0)")
    a(f"  v_writelane_b32 v255, s98, {k}")


def stamp_flush(a):
    if not STAMPS:
        return
    a(f"  s_lshl_b32 s96, s2, 9")
    a(f"  s_add_u32 s96, s96, {WS_DBG:#x}")
    a(f"  v_lshrrev_b32 v254, 6, v0")
    a(f"  v_lshlrev_b32 v254, 6, v254")
    a(f"  v_and_b32 v253, 63, v0")
    a(f"  v_lshl_add_u32 v254, v253, 2, v254")
    a(f"  v_cmp_gt_u32 vcc, 16, v253")
    a(f"  s_and_saveexec_b64 s[100:101], vcc")
    a(f"  buffer_store_dword v255, v254, s[12:15], s96 offen")
    a(f"  s_mov_b64 exec, s[100:101]")


P_X, P_WQKV, P_WO, P_BX, P_W1, P_B1, P_W2, P_B2, P_GATE, P_OUT, P_DBG, P_WS = [40 + 2 * i for i in range(12)]
S_WS = 12
S_DBG = 64
TOK = 68


def get_token(a, vm, vt, vz):
    L = a.label("tok")
    Ld = a.label("tokd")
    a(f"  s_mov_b32 s97, 0")
    a(f"{L}:")
    a(f"  buffer_load_dwordx2 v[{vt}:{vt+1}], v{vz}, s[{S_DBG}:{S_DBG+3}], 0 offen sc1")
    a(f"  s_waitcnt vmcnt(0)")
    a(f"  v_readfirstlane_b32 s{TOK}, v{vt}")
    a(f"  v_readfirstlane_b32 s{TOK+1}, v{vt+1}")
    a(f"  s_add_u32 s97, s97, 1")
    a(f"  s_cmp_lg_u32 s{TOK}, 0")
    a(f"  s_cbranch_scc1 {Ld}")
    a(f"  s_cmp_gt_u32 s97, {SPIN_MAX}")
    a(f"  s_cbranch_scc1 {Ld}")
    a(f"  s_sleep 1")
    a(f"  s_branch {L}")
    a(f"{Ld}:")
    vm.drained()


def flag_load(vm, tag, vt, vaddr):
    vm.issue(tag, f"  buffer_load_dwordx2 v[{vt}:{vt+1}], v{vaddr}, s[{S_WS}:{S_WS+3}], 0 offen sc1")


def publish_pending(a, vm, vt):
    a(f"  v_mov_b32 v{vt}, s{TOK}")
    a(f"  v_mov_b32 v{vt+1}, s{TOK+1}")
    a(f"  s_mov_b64 exec, 1")
    vm.issue("flagst", f"  buffer_store_dwordx2 v[{vt}:{vt+1}], v252, s[{S_WS}:{S_WS+3}], s91 offen sc1")
    a(f"  s_mov_b64 exec, -1")


def flag_check(a, vm, tag, vt, vaddr, pend=None):
    vm.wait(tag)
    if pend is not None:
        publish_pending(a, vm, pend)
    if "isoU" in EXP or "isoY" in EXP:
        return
    L = a.label("fl")
    L1 = a.label("fl1")
    L2 = a.label("fl2")
    Ld = a.label("fld")
    a(f"  s_mov_b32 s97, 0")
    a(f"  v_cmp_eq_u64 vcc, s[{TOK}:{TOK+1}], v[{vt}:{vt+1}]")
    a(f"  s_cmp_eq_u64 vcc, exec")
    a(f"  s_cbranch_scc1 {Ld}")
    a(f"  s_andn2_b64 s[94:95], exec, vcc")
    a(f"  s_ff1_i32_b64 s96, s[94:95]")
    a(f"  s_lshl_b64 s[94:95], 1, s96")
    a(f"  s_mov_b64 exec, s[94:95]")
    a(f"{L1}:")
    a(f"  s_sleep {SLEEP}")
    a(f"  buffer_load_dwordx2 v[{vt}:{vt+1}], v{vaddr}, s[{S_WS}:{S_WS+3}], 0 offen sc1")
    a(f"  s_add_u32 s97, s97, 1")
    a(f"  s_waitcnt vmcnt(0)")
    a(f"  v_cmp_eq_u64 vcc, s[{TOK}:{TOK+1}], v[{vt}:{vt+1}]")
    a(f"  s_cmp_eq_u64 vcc, exec")
    a(f"  s_cbranch_scc1 {L2}")
    a(f"  s_cmp_gt_u32 s97, {SPIN_MAX}")
    a(f"  s_cbranch_scc0 {L1}")
    a(f"{L2}:")
    a(f"  s_mov_b64 exec, -1")
    a(f"{L}:")
    a(f"  v_cmp_eq_u64 vcc, s[{TOK}:{TOK+1}], v[{vt}:{vt+1}]")
    a(f"  s_cmp_eq_u64 vcc, exec")
    a(f"  s_cbranch_scc1 {Ld}")
    a(f"  s_add_u32 s97, s97, 1")
    a(f"  s_cmp_gt_u32 s97, {SPIN_MAX}")
    a(f"  s_cbranch_scc1 {Ld}")
    a(f"  s_andn2_b64 exec, exec, vcc")
    a(f"  buffer_load_dwordx2 v[{vt}:{vt+1}], v{vaddr}, s[{S_WS}:{S_WS+3}], 0 offen sc1")
    a(f"  s_mov_b64 exec, -1")
    a(f"  s_waitcnt vmcnt(0)")
    a(f"  s_branch {L}")
    a(f"{Ld}:")


def publish(a, vm, tags, s_off, vt, vz):
    a(f"  v_mov_b32 v{vt}, s{TOK}")
    a(f"  v_mov_b32 v{vt+1}, s{TOK+1}")
    vm.wait(tags)
    a(f"  s_mov_b64 exec, 1")
    vm.issue("flagst", f"  buffer_store_dwordx2 v[{vt}:{vt+1}], v{vz}, s[{S_WS}:{S_WS+3}], {s_off} offen sc1")
    a(f"  s_mov_b64 exec, -1")


def lds_barrier(a, cnt_off, target, vaddr, vt):
    L = a.label("lb")
    Ld = a.label("lbd")
    a(f"  v_mov_b32 v{vt}, 1")
    a(f"  s_mov_b64 exec, 1")
    a(f"  ds_add_u32 v{vaddr}, v{vt} offset:{cnt_off}")
    a(f"  s_mov_b64 exec, -1")
    a(f"  s_mov_b32 s97, 0")
    a(f"{L}:")
    a(f"  ds_read_b32 v{vt+1}, v{vaddr} offset:{cnt_off}")
    a(f"  s_waitcnt lgkmcnt(0)")
    a(f"  v_readfirstlane_b32 s96, v{vt+1}")
    a(f"  s_add_u32 s97, s97, 1")
    a(f"  s_cmp_ge_u32 s96, {target}")
    a(f"  s_cbranch_scc1 {Ld}")
    a(f"  s_cmp_gt_u32 s97, {SPIN_MAX*4}")
    a(f"  s_cbranch_scc1 {Ld}")
    a(f"  s_branch {L}")
    a(f"{Ld}:")


def lds_wait(a, cnt_off, target, vaddr, vt):
    L = a.label("lw")
    Ld = a.label("lwd")
    a(f"  s_mov_b32 s97, 0")
    a(f"{L}:")
    a(f"  ds_read_b32 v{vt+1}, v{vaddr} offset:{cnt_off}")
    a(f"  s_waitcnt lgkmcnt(0)")
    a(f"  v_readfirstlane_b32 s96, v{vt+1}")
    a(f"  s_add_u32 s97, s97, 1")
    a(f"  s_cmp_ge_u32 s96, {target}")
    a(f"  s_cbranch_scc1 {Ld}")
    a(f"  s_cmp_gt_u32 s97, {SPIN_MAX*4}")
    a(f"  s_cbranch_scc1 {Ld}")
    a(f"  s_branch {L}")
    a(f"{Ld}:")


def lds_signal(a, cnt_off, vaddr, vt):
    a(f"  v_mov_b32 v{vt}, 1")
    a(f"  s_mov_b64 exec, 1")
    a(f"  ds_add_u32 v{vaddr}, v{vt} offset:{cnt_off}")
    a(f"  s_mov_b64 exec, -1")


def gen(a):
    a(f"""
.text
.globl {KN}
.p2align 8
.type {KN},@function
{KN}:
  s_cmp_ge_u32 s2, 256
  s_cbranch_scc1 L_end
  s_load_dwordx16 s[40:55], s[0:1], 0
  s_load_dwordx8 s[56:63], s[0:1], 64
  v_lshrrev_b32 v1, 6, v0
  v_and_b32 v2, 63, v0
  v_mov_b32 v252, 0
""")
    if "nocodepf" not in EXP:
        a(f"""
  s_getpc_b64 s[84:85]
L_pc0:
  s_and_b32 s84, s84, 0xffffff00
  s_and_b32 s85, s85, 0xffff
  s_mov_b32 s86, L_end - {KN}
  s_mov_b32 s87, 0x00020000
  v_lshlrev_b32 v3, 7, v0
  buffer_load_dword v253, v3, s[84:87], 0 offen
""")
    a(f"""
  v_mov_b32 v251, {L_CNT}
  v_readfirstlane_b32 s3, v1
  v_lshlrev_b32 v4, 2, v2
  v_add_u32 v4, {L_CNT}, v4
  ds_write_b32 v4, v252
  s_and_b32 s81, s2, 7               ; xcd
  s_lshr_b32 s82, s2, 3              ; idx
  s_waitcnt lgkmcnt(0)
  s_barrier
""")
    srd(a, S_WS, P_WS, WS_END)
    srd(a, S_DBG, P_DBG, 256)
    stamp(a, 0)
    a("""
  s_cmp_ge_u32 s3, 4
  s_cbranch_scc1 L_attn
""")
    gwaves(a)
    awaves(a)
    a("""
L_end:
  s_endpgm
""")


DR = 16
LF = 80
ACC = 96
NY, NO, NU = 22, 8, 32
NYS = 17


def yslot(k):
    if k < 4:
        return 0, k * 2048
    if k < 12:
        return 1, (k - 4) * 2048
    return 2, (k - 12) * 2048


REG_M0 = {0: "s76", 1: "s77", 2: "s74"}
REG_TR = {0: 232, 1: 234, 2: 246}


def trreads(a, reg, off, buf):
    f = LF + 8 * buf
    base = REG_TR[reg]
    for b in range(2):
        a(f"  ds_read_b64_tr_b16 v[{f+4*b}:{f+4*b+1}], v{base+b} offset:{off}")
        a(f"  ds_read_b64_tr_b16 v[{f+4*b+2}:{f+4*b+3}], v{base+b} offset:{off+1024}")


def dma_y(a, vm, i):
    reg, off = yslot(i % NYS)
    if i < NY:
        a(f"  s_lshl_b32 s87, s46, 16")
        v0, sd = 242, 20
        adv = ["  s_add_u32 s46, s46, 1", "  s_cmp_eq_u32 s46, 22\n  s_cselect_b32 s46, 0, s46"]
    else:
        a(f"  s_lshl_b32 s87, s44, 14")
        v0, sd = 244, 24
        adv = ["  s_add_u32 s44, s44, 1", "  s_and_b32 s44, s44, 7"]
    a(f"  s_add_u32 m0, {REG_M0[reg]}, {off}")
    a(adv[0])
    vm.issue(("yd", i), f"  buffer_load_dwordx4 v{v0}, s[{sd}:{sd+3}], s87 offen lds")
    a(f"  s_add_u32 m0, {REG_M0[reg]}, {off+1024}")
    a(adv[1])
    vm.issue(("yd", i), f"  buffer_load_dwordx4 v{v0+1}, s[{sd}:{sd+3}], s87 offen lds")


def dma_u(a, vm, i):
    off = (i % 5) * 2048
    a(f"  s_mul_i32 s87, s42, {16*2752}")
    a(f"  s_add_u32 m0, s74, {off}")
    a(f"  s_add_u32 s42, s42, 1")
    vm.issue(("uw", i), f"  buffer_load_dwordx4 v240, s[16:19], s87 offen lds")
    a(f"  s_add_u32 m0, s74, {off+1024}")
    a(f"  s_and_b32 s42, s42, 31")
    vm.issue(("uw", i), f"  buffer_load_dwordx4 v241, s[16:19], s87 offen lds")


def gwaves(a):
    vm = VM(a)
    srd(a, 4, P_X, 2048 * 512 * 2)
    srd(a, 16, P_W1, 2048 * 1376 * 2)
    srd(a, 20, P_W2, 1376 * 2048 * 2)
    srd(a, 24, P_WO, 512 * 512 * 2)
    srd(a, 28, P_WS, 86 * 16 * 1024, WS_U)
    srd(a, 32, P_OUT, 2048 * 512 * 2)
    a(f"""
  s_and_b32 s83, s81, 3
  s_mul_i32 s83, s83, 22
  s_add_u32 s83, s83, s82
  s_lshr_b32 s70, s83, 2             ; U ft
  s_lshr_b32 s84, s81, 2
  s_lshl_b32 s84, s84, 2
  s_and_b32 s83, s83, 3
  s_add_u32 s71, s84, s83            ; U dt
  s_lshl_b32 s72, s81, 2
  s_and_b32 s83, s82, 3
  s_add_u32 s72, s72, s83            ; Y st
  s_lshr_b32 s73, s82, 2             ; Y dt
  s_mul_i32 s74, s3, 10240
  s_lshl_b32 s76, s3, 13
  s_add_u32 s76, s76, {L_YB0}
  s_lshl_b32 s77, s3, 14
  s_add_u32 s77, s77, {L_QS}
  v_lshlrev_b32 v250, 4, v2
  v_lshrrev_b32 v7, 3, v2
  v_and_b32 v8, 7, v2
  v_bfe_u32 v9, v7, 1, 1
  v_lshlrev_b32 v9, 2, v9
  v_xor_b32 v8, v8, v9
  v_lshlrev_b32 v8, 4, v8
  s_movk_i32 s83, 2752
  v_mul_lo_u32 v9, v7, s83
  v_add_u32 v9, v9, v8
  s_mul_i32 s83, s3, {512*2752}
  s_lshl_b32 s84, s70, 7
  s_add_u32 s83, s83, s84
  v_add_u32 v240, s83, v9
  v_add_u32 v241, {8*2752}, v240
  s_mul_i32 s42, s82, 3
  s_lshr_b32 s42, s42, 1
  s_and_b32 s42, s42, 31
  s_mov_b32 s43, s42
  s_cmp_lt_u32 s2, 176
  s_cbranch_scc0 L_g_nopf
""")
    for i in range(5):
        dma_u(a, vm, i)
    if "now1t" not in EXP:
        a(f"""
  s_and_b32 s83, s81, 3
  s_mul_i32 s83, s83, 22
  s_lshr_b32 s83, s83, 2
  s_lshl_b32 s83, s83, 7
  s_lshl_b32 s84, s82, 2
  s_add_u32 s84, s84, s3
  s_mul_i32 s84, s84, 24
  v_add_u32 v13, s84, v7
  s_movk_i32 s85, 2752
  v_mul_lo_u32 v13, v13, s85
  v_add_u32 v13, s83, v13
  v_and_b32 v13, 0xffffff80, v13
  v_and_b32 v14, 7, v2
  v_lshl_add_u32 v13, v14, 7, v13
""")
        for k in range(3):
            a(f"  s_mov_b32 s85, {k*8*2752}")
            a(f"  buffer_load_dword v{208+k}, v13, s[16:19], s85 offen{' nt' if 'w1nt' in EXP else ''}")
    a(f"""
L_g_nopf:
  s_mul_i32 s83, s3, {22*16*4096}
  s_lshl_b32 s84, s72, 7
  s_add_u32 s83, s83, s84
  v_lshl_add_u32 v9, v7, 12, v8
  v_add_u32 v242, s83, v9
  v_add_u32 v243, 0x8000, v242
  s_lshl_b32 s83, s3, 17
  s_lshl_b32 s84, s73, 7
  s_add_u32 s83, s83, s84
  v_lshl_add_u32 v9, v7, 10, v8
  v_add_u32 v244, s83, v9
  v_add_u32 v245, 0x2000, v244
  v_and_b32 v7, 15, v2
  v_lshrrev_b32 v8, 2, v7
  v_lshrrev_b32 v9, 5, v2
  v_lshl_add_u32 v9, v9, 2, v8
  v_lshlrev_b32 v10, 7, v9
  v_bfe_u32 v9, v9, 1, 1
  v_lshl_add_u32 v10, v9, 6, v10
  v_bfe_u32 v9, v2, 4, 1
  v_lshl_add_u32 v10, v9, 5, v10
  v_and_b32 v7, 3, v7
  v_lshl_add_u32 v10, v7, 3, v10
  v_xor_b32 v11, 64, v10
  v_add_u32 v246, s74, v10
  v_add_u32 v247, s74, v11
  v_add_u32 v232, s76, v10
  v_add_u32 v233, s76, v11
  v_add_u32 v234, s77, v10
  v_add_u32 v235, s77, v11
  s_and_b32 s44, s82, 3
  s_lshl_b32 s44, s44, 1
  s_lshr_b32 s45, s82, 2
  s_add_u32 s44, s44, s45
  s_and_b32 s44, s44, 7
  s_mov_b32 s45, s44
  s_mul_i32 s46, s82, 22
  s_lshr_b32 s46, s46, 5
  s_mov_b32 s47, s46
  s_cmp_ge_u32 s2, 192
  s_cbranch_scc1 L_ln
""")
    get_token(a, vm, 4, 252)
    stamp(a, 4)
    a("""
  s_cmp_lt_u32 s2, 176
  s_cbranch_scc0 L_nou
""")
    uphase(a, vm)
    a("  s_branch L_ystart")
    ln(a, vm)
    stamp(a, 4)
    a("L_nou:")
    vm.ops = []
    a(f"""
  s_lshl_b32 s91, s2, 2
  s_add_u32 s91, s91, s3
  s_lshl_b32 s91, s91, 6
  s_add_u32 s91, s91, {WS_FL + 3000*64:#x}
  s_sub_u32 s83, s82, 22
  s_lshl_b32 s83, s83, 2
  s_add_u32 s83, s83, s3
  v_lshrrev_b32 v3, 2, v2
  v_and_b32 v4, 3, v2
  s_lshl_b32 s84, s83, 4
  v_add_u32 v3, s84, v3
  v_lshlrev_b32 v3, 12, v3
  v_lshl_add_u32 v3, v4, 7, v3
  s_lshl_b32 s84, s81, 9
  v_add_u32 v3, s84, v3
  s_lshl_b32 s84, s83, 13
  v_lshlrev_b32 v4, 7, v2
  v_add_u32 v4, s84, v4
""")
    if "nopf" not in EXP:
        for k in range(3):
            a(f"  s_mov_b32 s85, {k*640*4096}")
            a(f"  buffer_load_dword v{208+k}, v3, s[20:23], s85 offen")
        for k in range(2):
            a(f"  s_mov_b32 s85, {k*40*8192}")
            a(f"  buffer_load_dword v{212+k}, v4, s[24:27], s85 offen")
    lds_wait(a, 20, 4, 251, 10)
    for i in range(7):
        dma_y(a, vm, i)
    a("L_ystart:")
    vm.ops = []
    yphase(a, vm)


def uphase(a, vm):
    BIAS = 224
    srd(a, 36, P_B1, 1376 * 2)
    a(f"""
  v_and_b32 v3, 15, v2
  s_lshl_b32 s83, s3, 4
  v_add_u32 v3, s83, v3
  v_lshlrev_b32 v3, 2, v3
  s_lshr_b32 s83, s71, 1
  v_add_u32 v3, s83, v3
  v_lshlrev_b32 v3, 6, v3
  v_add_u32 v3, {FL_LN:#x}, v3
""")
    flag_load(vm, "fl", 4, 3)
    a(f"""
  s_lshl_b32 s83, s71, 18
  s_lshl_b32 s84, s3, 15
  s_add_u32 s83, s83, s84
  s_add_u32 s83, s83, {WS_H:#x}
  v_add_u32 v6, s83, v250
  v_add_u32 v7, 0x20000, v6
  v_lshrrev_b32 v8, 5, v2
  v_lshlrev_b32 v8, 3, v8
  s_lshl_b32 s83, s70, 7
  s_and_b32 s84, s3, 1
  s_lshl_b32 s84, s84, 6
  s_add_u32 s83, s83, s84
  v_add_u32 v8, s83, v8
""")
    for q in range(4):
        vm.issue("bias", f"  buffer_load_dwordx2 v[{BIAS+2*q}:{BIAS+2*q+1}], v8, s[36:39], 0 offen offset:{q*16}")
    flag_check(a, vm, "fl", 4, 3)
    stamp(a, 5)

    def direct(i):
        r = DR + 8 * (i % 8)
        a(f"  s_lshl_b32 s86, s43, 10")
        vm.issue(("ud", i), f"  buffer_load_dwordx4 v[{r}:{r+3}], v6, s[12:15], s86 offen sc1")
        a(f"  s_add_u32 s43, s43, 1")
        vm.issue(("ud", i), f"  buffer_load_dwordx4 v[{r+4}:{r+7}], v7, s[12:15], s86 offen sc1")
        a(f"  s_and_b32 s43, s43, 31")

    for i in range(8):
        direct(i)
    trreads(a, 2, 0, 0)
    vm.wait([("ud", 0)])
    for i in range(NU):
        if i + 1 < NU:
            vm.wait([("ud", i + 1), ("uw", i + 1)])
            trreads(a, 2, ((i + 1) % 5) * 2048, (i + 1) & 1)
            a(f"  s_waitcnt lgkmcnt(4)")
        else:
            a(f"  s_waitcnt lgkmcnt(0)")
        r = DR + 8 * (i % 8)
        f = LF + 8 * (i & 1)
        for b in range(2):
            for aa in range(2):
                d = ACC + 16 * (aa + 2 * b)
                c = "0" if i == 0 else f"v[{d}:{d+15}]"
                a(f"  {MFMA} v[{d}:{d+15}], v[{f+4*aa}:{f+4*aa+3}], v[{r+4*b}:{r+4*b+3}], {c}")
        if i + 5 < NU:
            dma_u(a, vm, i + 5)
        if i + 8 < NU:
            direct(i + 8)
        if i == 26:
            lds_wait(a, 20, 4, 251, 10)
        if 27 <= i < 31:
            dma_y(a, vm, i - 27)
    stamp(a, 6)
    a(f"""
  v_add_u32 v8, s77, v250
  s_lshl_b32 s83, s3, 12
  s_add_u32 s83, s83, {L_QS}
  v_add_u32 v9, s83, v250
  s_nop 7
  s_nop 7
""")
    for tau in range(4):
        for q in range(4):
            a(f"  ds_write_b128 v8, v[{ACC+16*tau+4*q}:{ACC+16*tau+4*q+3}] offset:{tau*4096 + q*1024}")
    a("  s_waitcnt lgkmcnt(0)")
    lds_barrier(a, 0, 4, 251, 10)
    R = DR
    for sg in range(4):
        for q in range(4):
            a(f"  ds_read_b128 v[{R+16*sg+4*q}:{R+16*sg+4*q+3}], v9 offset:{sg*16384 + q*1024}")
    for q in range(4):
        a(f"  v_lshlrev_b32 v{ACC+4*q}, 16, v{BIAS+2*q}")
        a(f"  v_and_b32 v{ACC+4*q+1}, 0xffff0000, v{BIAS+2*q}")
        a(f"  v_lshlrev_b32 v{ACC+4*q+2}, 16, v{BIAS+2*q+1}")
        a(f"  v_and_b32 v{ACC+4*q+3}, 0xffff0000, v{BIAS+2*q+1}")
    a("  s_waitcnt lgkmcnt(0)")
    lds_signal(a, 12, 251, 10)
    for i in range(16):
        a(f"  v_add_f32 v{R+i}, v{R+i}, v{R+16+i}")
        a(f"  v_add_f32 v{R+32+i}, v{R+32+i}, v{R+48+i}")
        a(f"  v_add_f32 v{ACC+i}, v{ACC+i}, v{R+i}")
        a(f"  v_add_f32 v{ACC+i}, v{ACC+i}, v{R+32+i}")
    k = math.sqrt(2.0 / math.pi)
    c1 = -2.0 * k * math.log2(math.e)
    c2 = c1 * 0.044715
    a(f"  s_mov_b32 s83, {f32bits(c2):#x}")
    a(f"  v_mov_b32 v10, {f32bits(c1):#x}")
    for i in range(16):
        a(f"  v_mul_f32 v{R+i}, v{ACC+i}, v{ACC+i}")
    for i in range(16):
        a(f"  v_fma_f32 v{R+i}, v{R+i}, s83, v10")
    for i in range(16):
        a(f"  v_mul_f32 v{R+i}, v{R+i}, v{ACC+i}")
    for i in range(16):
        a(f"  v_exp_f32 v{R+i}, v{R+i}")
    for i in range(16):
        a(f"  v_add_f32 v{R+i}, 1.0, v{R+i}")
    for i in range(16):
        a(f"  v_rcp_f32 v{R+i}, v{R+i}")
    for i in range(16):
        a(f"  v_mul_f32 v{R+i}, v{R+i}, v{ACC+i}")
    for i in range(8):
        a(f"  v_cvt_pk_bf16_f32 v{R+16+i}, v{R+2*i}, v{R+2*i+1}")
    a(f"""
  s_lshl_b32 s83, s70, 1
  s_and_b32 s84, s3, 1
  s_add_u32 s83, s83, s84
  s_lshl_b32 s84, s71, 1
  s_lshr_b32 s85, s3, 1
  s_add_u32 s84, s84, s85
  s_lshl_b32 s85, s83, 15
  s_lshl_b32 s86, s84, 10
  s_add_u32 s85, s85, s86
  v_add_u32 v8, s85, v250
  s_movk_i32 s86, 0x4000
""")
    vm.issue("st", f"  buffer_store_dwordx4 v[{R+16}:{R+19}], v8, s[28:31], 0 offen sc1")
    vm.issue("st", f"  buffer_store_dwordx4 v[{R+20}:{R+23}], v8, s[28:31], s86 offen sc1")
    a(f"""
  s_lshl_b32 s83, s83, 4
  s_add_u32 s83, s83, s84
  s_lshl_b32 s83, s83, 6
  s_add_u32 s91, s83, {FL_U:#x}
""")
    lds_wait(a, 12, 4, 251, 10)
    for i in range(4, 7):
        dma_y(a, vm, i)
    publish(a, vm, "st", "s91", 10, 252)
    stamp(a, 7)


def yphase(a, vm):
    NS = NY + NO
    GV = 224
    srd(a, 36, P_B2, 2048 * 2)
    a(f"""
  v_min_u32 v3, 21, v2
  v_lshrrev_b32 v4, 1, v3
  s_mul_i32 s83, s3, 11
  v_add_u32 v4, s83, v4
  v_min_u32 v4, 42, v4
  v_lshlrev_b32 v4, 4, v4
  v_and_b32 v3, 1, v3
  s_lshl_b32 s83, s73, 1
  v_add3_u32 v3, v3, v4, s83
  v_lshlrev_b32 v3, 6, v3
  v_add_u32 v3, {FL_U:#x}, v3
  v_subrev_u32 v4, 22, v2
  v_and_b32 v4, 7, v4
  s_lshl_b32 s83, s72, 3
  v_add_u32 v4, s83, v4
  v_lshlrev_b32 v4, 6, v4
  v_add_u32 v4, {FL_LN:#x}, v4
  v_cmp_lt_u32 vcc, 21, v2
  s_nop 1
  v_cndmask_b32 v3, v3, v4, vcc
""")
    flag_load(vm, "fl", 4, 3)
    for i in range(7, NYS):
        dma_y(a, vm, i)
    a(f"""
  v_and_b32 v8, 7, v2
  s_lshl_b32 s83, s3, 3
  v_add_u32 v8, s83, v8
  v_lshlrev_b32 v8, 5, v8
  v_add_u32 v8, s72, v8
  v_lshlrev_b32 v8, 6, v8
  v_add_u32 v8, {FL_AT:#x}, v8
  s_mul_i32 s83, s3, {22*16384}
  s_lshl_b32 s84, s73, 11
  s_add_u32 s83, s83, s84
  v_add_u32 v12, s83, v250
  s_lshl_b32 s83, s72, 16
  s_lshl_b32 s84, s3, 13
  s_add_u32 s83, s83, s84
  s_add_u32 s83, s83, {WS_O:#x}
  v_add_u32 v13, s83, v250
  v_add_u32 v14, 0x8000, v13
  v_and_b32 v7, 31, v2
  s_lshl_b32 s83, s72, 6
  v_add_u32 v7, s83, v7
  v_lshlrev_b32 v9, 1, v7
""")
    vm.issue("g", f"  buffer_load_ushort v{GV+2}, v9, s[36:39], 0 offen")
    vm.issue("g", f"  buffer_load_ushort v{GV+3}, v9, s[36:39], 0 offen offset:64")
    flag_check(a, vm, "fl", 4, 3)
    stamp(a, 8)
    a(f"""
  v_lshlrev_b32 v9, 2, v7
  v_add_u32 v9, {WS_G:#x}, v9
""")
    vm.issue("g", f"  buffer_load_dword v{GV}, v9, s[12:15], 0 offen sc1")
    vm.issue("g", f"  buffer_load_dword v{GV+1}, v9, s[12:15], 0 offen offset:128 sc1")

    def direct(i):
        r = DR + 8 * (i % 8)
        if i < NY:
            a(f"  s_lshl_b32 s86, s47, 14")
            vm.issue(("yr", i), f"  buffer_load_dwordx4 v[{r}:{r+3}], v12, s[28:31], s86 offen sc1")
            a(f"  s_add_u32 s47, s47, 1")
            vm.issue(("yr", i), f"  buffer_load_dwordx4 v[{r+4}:{r+7}], v12, s[28:31], s86 offen offset:1024 sc1")
            a(f"  s_cmp_eq_u32 s47, 22")
            a(f"  s_cselect_b32 s47, 0, s47")
        else:
            a(f"  s_lshl_b32 s86, s45, 10")
            vm.issue(("yr", i), f"  buffer_load_dwordx4 v[{r}:{r+3}], v13, s[12:15], s86 offen sc1")
            a(f"  s_add_u32 s45, s45, 1")
            vm.issue(("yr", i), f"  buffer_load_dwordx4 v[{r+4}:{r+7}], v14, s[12:15], s86 offen sc1")
            a(f"  s_and_b32 s45, s45, 7")

    for i in range(8):
        direct(i)
    ACHK = int(os.environ.get("ACHK", "18"))
    nextd = 8
    vm.wait([("yr", 0), ("yd", 0)])
    trreads(a, *yslot(0), 0)
    for i in range(NS):
        if i + 1 < NS:
            vm.wait([("yr", i + 1), ("yd", i + 1)])
            trreads(a, *yslot((i + 1) % NYS), (i + 1) & 1)
            a(f"  s_waitcnt lgkmcnt(4)")
        else:
            a(f"  s_waitcnt lgkmcnt(0)")
        r = DR + 8 * (i % 8)
        f = LF + 8 * (i & 1)
        if i == NY:
            stamp(a, 9)
            a("  s_nop 7")
            a("  s_nop 7")
            a(f"  v_sub_f32 v{GV+4}, 1.0, v{GV}")
            a(f"  v_sub_f32 v{GV+5}, 1.0, v{GV+1}")
            for b in range(2):
                for aa in range(2):
                    d = ACC + 16 * (aa + 2 * b)
                    for q in range(16):
                        a(f"  v_mul_f32 v{d+q}, v{d+q}, v{GV+4+b}")
            a("  s_nop 1")
        for b in range(2):
            for aa in range(2):
                d = ACC + 16 * (aa + 2 * b)
                c = "0" if i == 0 else f"v[{d}:{d+15}]"
                if i < NY:
                    A = f"v[{r+4*aa}:{r+4*aa+3}]"
                    B = f"v[{f+4*b}:{f+4*b+3}]"
                else:
                    A = f"v[{f+4*aa}:{f+4*aa+3}]"
                    B = f"v[{r+4*b}:{r+4*b+3}]"
                a(f"  {MFMA} v[{d}:{d+15}], {A}, {B}, {c}")
        if i == ACHK - 4:
            flag_load(vm, "fa", 10, 8)
        if i == ACHK:
            flag_check(a, vm, "fa", 10, 8)
            stamp(a, 13)
        while nextd <= i + 8 and nextd < NS and (nextd < NY or i >= ACHK):
            direct(nextd)
            nextd += 1
        if i + NYS < NS:
            dma_y(a, vm, i + NYS)
    stamp(a, 10)
    a(f"""
  v_add_u32 v8, s77, v250
  s_lshl_b32 s83, s3, 12
  s_add_u32 s83, s83, {L_QS}
  v_add_u32 v9, s83, v250
  s_nop 7
  s_nop 7
""")
    for i in range(16):
        a(f"  ds_write_b128 v8, v[{ACC+4*i}:{ACC+4*i+3}] offset:{i*1024}")
    a("  s_waitcnt lgkmcnt(0)")
    lds_barrier(a, 4, 4, 251, 10)
    R = DR
    for sg in range(4):
        for q in range(4):
            a(f"  ds_read_b128 v[{R+16*sg+4*q}:{R+16*sg+4*q+3}], v9 offset:{sg*16384 + q*1024}")
    a(f"""
  s_lshr_b32 s83, s3, 1
  s_cmp_eq_u32 s83, 0
  s_cselect_b64 vcc, -1, 0
  v_cndmask_b32 v10, v{GV+5}, v{GV+4}, vcc
  v_cndmask_b32 v11, v{GV+3}, v{GV+2}, vcc
  v_lshlrev_b32 v11, 16, v11
  v_mul_f32 v10, v10, v11
  s_lshl_b32 s84, s83, 5
  v_add_u32 v7, s84, v7
  v_lshlrev_b32 v7, 10, v7
  s_lshl_b32 s84, s73, 7
  s_and_b32 s85, s3, 1
  s_lshl_b32 s85, s85, 6
  s_add_u32 s84, s84, s85
  v_add_u32 v7, s84, v7
  v_lshrrev_b32 v8, 5, v2
  v_lshl_add_u32 v7, v8, 4, v7
  s_waitcnt lgkmcnt(0)
""")
    for i in range(16):
        a(f"  v_add_f32 v{R+i}, v{R+i}, v{R+16+i}")
        a(f"  v_add_f32 v{R+32+i}, v{R+32+i}, v{R+48+i}")
        a(f"  v_add_f32 v{R+i}, v{R+i}, v10")
        a(f"  v_add_f32 v{R+i}, v{R+i}, v{R+32+i}")
    P = R + 16
    for q in range(4):
        a(f"  v_cvt_pk_bf16_f32 v{P+2*q}, v{R+4*q}, v{R+4*q+1}")
        a(f"  v_cvt_pk_bf16_f32 v{P+2*q+1}, v{R+4*q+2}, v{R+4*q+3}")
    a("  s_nop 1")
    for q in (0, 2):
        a(f"  v_permlane32_swap_b32 v{P+2*q}, v{P+2*q+2}")
        a(f"  v_permlane32_swap_b32 v{P+2*q+1}, v{P+2*q+3}")
    a(f"  buffer_store_dwordx4 v[{P}:{P+3}], v7, s[32:35], 0 offen")
    a(f"  buffer_store_dwordx4 v[{P+4}:{P+7}], v7, s[32:35], 0 offen offset:32")
    stamp(a, 11)
    if STAMPS:
        a("  s_waitcnt vmcnt(0)")
    stamp(a, 12)
    stamp_flush(a)
    a("  s_endpgm")


def qkv(a):
    srd(a, 4, P_X, 2048 * 512 * 2)
    srd(a, 8, P_WQKV, 512 * 1536 * 2)
    a(f"""
  s_and_b32 s83, s81, 3
  s_lshl_b32 s83, s83, 2
  s_and_b32 s84, s82, 3
  s_add_u32 s36, s83, s84            ; st
  s_lshr_b32 s83, s81, 2
  s_mul_i32 s83, s83, 6
  s_lshr_b32 s84, s82, 2
  s_add_u32 s37, s83, s84            ; nt
  s_lshl_b32 s38, s3, 12
  s_add_u32 s38, s38, {L_QS}
""")
    VXA, VWA = 4, 8
    a("  v_lshrrev_b32 v3, 3, v2")
    a("  v_and_b32 v12, 7, v2")
    a("  s_lshl_b32 s83, s36, 17")
    for i in range(4):
        a(f"  s_lshl_b32 s84, s3, 5")
        a(f"  s_add_u32 s84, s84, {8*i}")
        a(f"  v_add_u32 v13, s84, v3")
        a(f"  v_lshrrev_b32 v14, 1, v13")
        a(f"  v_and_b32 v14, 7, v14")
        a(f"  v_xor_b32 v14, v14, v12")
        a(f"  v_lshlrev_b32 v14, 4, v14")
        a(f"  v_lshl_add_u32 v14, v13, 10, v14")
        a(f"  v_add_u32 v{VXA+i}, s83, v14")
    a("""
  v_lshrrev_b32 v3, 4, v2
  v_and_b32 v12, 15, v2
  v_lshrrev_b32 v13, 2, v12
  v_xor_b32 v13, v13, v3
  v_lshlrev_b32 v13, 2, v13
  v_and_b32 v12, 3, v12
  v_or_b32 v13, v13, v12
  v_lshlrev_b32 v13, 4, v13
  s_lshl_b32 s83, s37, 8
  v_add_u32 v13, s83, v13
  s_movk_i32 s85, 3072
""")
    for i in range(4):
        a(f"  s_lshl_b32 s84, s3, 4")
        a(f"  s_add_u32 s84, s84, {4*i}")
        a(f"  v_add_u32 v14, s84, v3")
        a(f"  v_mul_lo_u32 v14, v14, s85")
        a(f"  v_add_u32 v{VWA+i}, v14, v13")
    a("  s_and_b32 s39, s82, 7")
    a("  s_mov_b32 s16, 0")

    def issue_chunk():
        a(f"  s_mul_i32 s87, s39, 196608")
        a(f"  s_lshl_b32 s86, s39, 7")
        a(f"  s_add_u32 s17, s38, s16")
        for i in range(4):
            a(f"  s_add_u32 m0, s17, {i*1024}")
            a(f"  s_nop 0")
            a(f"  buffer_load_dwordx4 v{VXA+i}, s[4:7], s86 offen lds")
            a(f"  s_add_u32 m0, s17, {16384 + i*1024}")
            a(f"  s_nop 0")
            a(f"  buffer_load_dwordx4 v{VWA+i}, s[8:11], s87 offen lds")
        a(f"  s_add_u32 s39, s39, 1")
        a(f"  s_and_b32 s39, s39, 7")
        a(f"  s_add_u32 s16, s16, 32768")
        a(f"  s_cmp_eq_u32 s16, 98304")
        a(f"  s_cselect_b32 s16, 0, s16")

    for c in range(3):
        issue_chunk()
    VXB, VWB, VXR, VWR = 16, 20, 22, 26
    a(f"""
  buffer_load_dwordx2 v[28:29], v252, s[{S_DBG}:{S_DBG+3}], 0 offen sc1
  s_and_b32 s88, s3, 1
  s_lshr_b32 s89, s3, 1
  v_and_b32 v3, 31, v2
  v_lshrrev_b32 v12, 5, v2
  s_lshl_b32 s84, s88, 6
  v_add_u32 v13, s84, v3
  v_lshrrev_b32 v14, 1, v13
  v_and_b32 v14, 7, v14
  v_lshlrev_b32 v13, 7, v13
  v_add_u32 v13, {L_QS}, v13
""")
    for ks in range(4):
        a(f"  v_or_b32 v15, {2*ks}, v12")
        a(f"  v_xor_b32 v15, v15, v14")
        a(f"  v_lshl_add_u32 v{VXB+ks}, v15, 4, v13")
        a(f"  v_mov_b32 v{VXR+ks}, v{VXB+ks}")
    a(f"""
  v_and_b32 v3, 15, v2
  v_lshrrev_b32 v13, 2, v3
  v_lshlrev_b32 v14, 11, v12
  v_lshl_add_u32 v14, v13, 8, v14
  v_bfe_u32 v15, v2, 4, 1
  v_lshl_add_u32 v14, v15, 5, v14
  v_and_b32 v15, 3, v3
  v_lshl_add_u32 v14, v15, 3, v14
  v_add_u32 v14, {L_QS + 0x4000}, v14
  s_lshl_b32 s84, s89, 1
""")
    for b in range(2):
        a(f"  s_add_u32 s85, s84, {b}")
        a(f"  v_xor_b32 v15, s85, v13")
        a(f"  v_lshl_add_u32 v{VWB+b}, v15, 6, v14")
        a(f"  v_mov_b32 v{VWR+b}, v{VWB+b}")
    FR, QA = 32, 96
    for i in range(0, 64, 2):
        a(f"  v_pk_mov_b32 v[{QA+i}:{QA+i+1}], v[252:253], v[252:253] op_sel:[0,0]")

    def reads(ks):
        f = FR + 16 * ks
        for aa in range(2):
            a(f"  ds_read_b128 v[{f+4*aa}:{f+4*aa+3}], v{VXR+ks} offset:{aa*4096}")
        for b in range(2):
            a(f"  ds_read_b64_tr_b16 v[{f+8+4*b}:{f+8+4*b+1}], v{VWR+b} offset:{ks*4096}")
            a(f"  ds_read_b64_tr_b16 v[{f+8+4*b+2}:{f+8+4*b+3}], v{VWR+b} offset:{ks*4096 + 1024}")

    def mfmas(ks, vmode):
        f = FR + 16 * ks
        for b in range(2):
            for aa in range(2):
                d = QA + 16 * (aa + 2 * b)
                xa = f"v[{f+4*aa}:{f+4*aa+3}]"
                wb = f"v[{f+8+4*b}:{f+8+4*b+3}]"
                if vmode:
                    a(f"  {MFMA} v[{d}:{d+15}], {xa}, {wb}, v[{d}:{d+15}]")
                else:
                    a(f"  {MFMA} v[{d}:{d+15}], {wb}, {xa}, v[{d}:{d+15}]")

    def poll(target_sgpr):
        L, Ld = a.label("qp"), a.label("qpd")
        a(f"  s_mov_b32 s97, 0")
        a(f"{L}:")
        a(f"  ds_read_b32 v31, v251 offset:16")
        a(f"  s_waitcnt lgkmcnt(0)")
        a(f"  v_readfirstlane_b32 s96, v31")
        a(f"  s_add_u32 s97, s97, 1")
        a(f"  s_cmp_ge_u32 s96, {target_sgpr}")
        a(f"  s_cbranch_scc1 {Ld}")
        a(f"  s_cmp_gt_u32 s97, {SPIN_MAX*4}")
        a(f"  s_cbranch_scc0 {L}")
        a(f"{Ld}:")

    def mainloop(vmode):
        L, L1, L2, L3 = a.label("qkv"), a.label("q1"), a.label("q2"), a.label("q3")
        stamp(a, 6)
        a("  s_waitcnt vmcnt(17)")
        lds_signal(a, 16, 251, 30)
        a("  s_mov_b32 s18, 4")
        poll("s18")
        stamp(a, 7)
        reads(0)
        reads(1)
        a("  s_mov_b32 s90, 0")
        a("  s_mov_b32 s19, 0")
        a(f"{L}:")
        reads(2)
        a("  s_waitcnt lgkmcnt(12)")
        mfmas(0, vmode)
        reads(3)
        a("  s_waitcnt lgkmcnt(12)")
        mfmas(1, vmode)
        a(f"  s_cmp_lt_u32 s90, 6")
        a(f"  s_cbranch_scc1 {L1}")
        a("  s_waitcnt vmcnt(0)")
        a(f"{L1}:")
        a("  s_waitcnt vmcnt(8) lgkmcnt(0)")
        lds_signal(a, 16, 251, 30)
        a("  s_add_u32 s18, s18, 4")
        a("  s_add_u32 s19, s19, 32768")
        a("  s_cmp_eq_u32 s19, 98304")
        a("  s_cselect_b32 s19, 0, s19")
        mfmas(2, vmode)
        for k in range(4):
            a(f"  v_add_u32 v{VXR+k}, s19, v{VXB+k}")
        for k in range(2):
            a(f"  v_add_u32 v{VWR+k}, s19, v{VWB+k}")
        poll("s18")
        reads(0)
        mfmas(3, vmode)
        reads(1)
        a(f"  s_cmp_lt_u32 s90, 5")
        a(f"  s_cbranch_scc0 {L2}")
        issue_chunk()
        a(f"{L2}:")
        a(f"  s_add_u32 s90, s90, 1")
        a(f"  s_cmp_lt_u32 s90, 8")
        a(f"  s_cbranch_scc1 {L}")
        a("  s_waitcnt lgkmcnt(0)")
        lds_signal(a, 20, 251, 30)
        stamp(a, 8)

    ST = 160
    vm = VM(a)

    def finish():
        Lok = a.label("tokok")
        a(f"  v_readfirstlane_b32 s{TOK}, v28")
        a(f"  v_readfirstlane_b32 s{TOK+1}, v29")
        a(f"  s_cmp_lg_u32 s{TOK}, 0")
        a(f"  s_cbranch_scc1 {Lok}")
        keep = list(vm.ops)
        get_token(a, vm, 28, 252)
        vm.ops = keep
        a(f"{Lok}:")
        a(f"""
  s_lshl_b32 s83, s37, 1
  s_add_u32 s83, s83, s89
  s_lshl_b32 s83, s83, 5
  s_lshl_b32 s84, s36, 1
  s_add_u32 s84, s84, s88
  s_add_u32 s83, s83, s84
  s_lshl_b32 s83, s83, 6
  s_add_u32 s91, s83, {FL_QKV:#x}
""")
        publish(a, vm, "st", "s91", 28, 252)
        stamp(a, 9)
        a("  s_branch L_a_p1done")

    a("  s_cmp_ge_u32 s37, 8")
    a("  s_cbranch_scc1 L_vpath")
    mainloop(False)
    a("""
  v_and_b32 v3, 31, v2
  v_lshrrev_b32 v12, 5, v2
  s_lshl_b32 s83, s36, 7
  s_lshl_b32 s84, s88, 6
  s_add_u32 s83, s83, s84
  v_add_u32 v3, s83, v3
  v_lshlrev_b32 v3, 5, v3
  v_lshl_add_u32 v3, v12, 4, v3
  s_and_b32 s83, s37, 3
  s_lshl_b32 s83, s83, 3
  s_lshl_b32 s84, s89, 2
  s_add_u32 s83, s83, s84
  s_lshl_b32 s83, s83, 16
  s_lshr_b32 s84, s37, 2
  s_lshl_b32 s84, s84, 21
  s_add_u32 s83, s83, s84
  v_add_u32 v3, s83, v3
  s_cmp_ge_u32 s37, 4
  s_cbranch_scc1 L_noqs
""")
    a(f"  v_mov_b32 v4, {f32bits(QSCALE):#x}")
    a(f"  v_mov_b32 v5, {f32bits(QSCALE):#x}")
    for i in range(0, 64, 2):
        a(f"  v_pk_mul_f32 v[{QA+i}:{QA+i+1}], v[{QA+i}:{QA+i+1}], v[4:5]")
    a("L_noqs:")
    vm.ops = []
    for b in range(2):
        for aa in range(2):
            d = QA + 16 * (aa + 2 * b)
            for hh in range(2):
                t = ST + 4 * (2 * (aa + 2 * b) + hh)
                for q in range(4):
                    a(f"  v_cvt_pk_bf16_f32 v{t+q}, v{d+8*hh+2*q}, v{d+8*hh+2*q+1}")
                a(f"  s_mov_b32 s85, {(2*b+hh)*65536}")
                vm.issue("st", f"  buffer_store_dwordx4 v[{t}:{t+3}], v3, s[12:15], s85 offen offset:{aa*1024} sc1")
    finish()
    a("L_vpath:")
    mainloop(True)
    a(f"""
  v_and_b32 v3, 15, v2
  v_lshrrev_b32 v12, 5, v2
  v_lshlrev_b32 v3, 4, v3
  v_lshl_add_u32 v3, v12, 8, v3
  v_bfe_u32 v12, v2, 4, 1
  v_lshl_add_u32 v3, v12, 16, v3
  s_and_b32 s83, s37, 3
  s_lshl_b32 s83, s83, 3
  s_lshl_b32 s84, s89, 2
  s_add_u32 s83, s83, s84
  s_lshl_b32 s83, s83, 16
  s_lshl_b32 s84, s36, 2
  s_lshl_b32 s85, s88, 1
  s_add_u32 s84, s84, s85
  s_lshl_b32 s84, s84, 10
  s_add_u32 s83, s83, s84
  s_add_u32 s83, s83, {WS_V:#x}
  v_add_u32 v3, s83, v3
""")
    vm.ops = []
    for b in range(2):
        for aa in range(2):
            d = QA + 16 * (aa + 2 * b)
            for tt in range(2):
                t = ST + 4 * (2 * (aa + 2 * b) + tt)
                for q in range(4):
                    a(f"  v_cvt_pk_bf16_f32 v{t+q}, v{d+8*tt+2*q}, v{d+8*tt+2*q+1}")
                a(f"  s_mov_b32 s85, {2*b*65536}")
                vm.issue("st", f"  buffer_store_dwordx4 v[{t}:{t+3}], v3, s[12:15], s85 offen offset:{aa*1024 + tt*512} sc1")
    finish()


def ln(a, vm):
    vm.ops = []
    HOFF = L_QS
    XR, GR, FX = 16, 48, 80
    srd_ = []
    a("L_ln:")
    srd(a, 36, P_GATE, 1024)
    a(f"""
  s_sub_u32 s90, s2, 192             ; a
  v_lshrrev_b32 v3, 3, v2
  v_and_b32 v4, 7, v2
  s_lshl_b32 s83, s90, 5
  s_lshl_b32 s84, s3, 3
  s_add_u32 s83, s83, s84
  v_add_u32 v5, s83, v3              ; row
  v_lshlrev_b32 v6, 4, v4
  v_lshl_add_u32 v7, v5, 10, v6
""")
    for i in range(8):
        vm.issue("x", f"  buffer_load_dwordx4 v[{XR+4*i}:{XR+4*i+3}], v7, s[4:7], 0 offen offset:{i*128}")
    for i in range(8):
        vm.issue("x", f"  buffer_load_dwordx4 v[{GR+4*i}:{GR+4*i+3}], v6, s[36:39], 0 offen offset:{i*128}")
    vm.issue("tok", f"  buffer_load_dwordx2 v[144:145], v252, s[{S_DBG}:{S_DBG+3}], 0 offen sc1")
    stamp(a, 1)
    vm.wait("x")
    stamp(a, 2)
    for i in range(32):
        a(f"  v_lshlrev_b32 v{FX+2*i}, 16, v{XR+i}")
        a(f"  v_and_b32 v{FX+2*i+1}, 0xffff0000, v{XR+i}")
    for c in range(4):
        a(f"  v_add_f32 v{9+c}, v{FX+c}, v{FX+4+c}")
    for i in range(8, 64):
        a(f"  v_add_f32 v{9+(i&3)}, v{9+(i&3)}, v{FX+i}")
    a(f"  v_mov_b32 v13, 0")
    a(f"  v_mov_b32 v14, 0")
    for i in range(32):
        a(f"  v_dot2_f32_bf16 v{13+(i&1)}, v{XR+i}, v{GR+i}, v{13+(i&1)}")
    a("""
  v_add_f32 v9, v9, v10
  v_add_f32 v11, v11, v12
  v_add_f32 v9, v9, v11
  s_nop 2
  v_add_f32 v13, v13, v14
""")

    def red8(r):
        a(f"  s_nop 1")
        a(f"  v_add_f32_dpp v{r}, v{r}, v{r} quad_perm:[1,0,3,2] row_mask:0xf bank_mask:0xf")
        a(f"  s_nop 1")
        a(f"  v_add_f32_dpp v{r}, v{r}, v{r} quad_perm:[2,3,0,1] row_mask:0xf bank_mask:0xf")
        a(f"  s_nop 1")
        a(f"  v_add_f32_dpp v{r}, v{r}, v{r} row_half_mirror row_mask:0xf bank_mask:0xf")

    red8(9)
    red8(13)
    a(f"  v_mul_f32 v9, {f32bits(1.0/512):#x}, v9")
    for i in range(64):
        a(f"  v_sub_f32 v{FX+i}, v{FX+i}, v9")
    for c in range(4):
        a(f"  v_mul_f32 v{9+c}, v{FX+c}, v{FX+c}")
    for i in range(4, 64):
        a(f"  v_fmac_f32 v{9+(i&3)}, v{FX+i}, v{FX+i}")
    a("""
  v_add_f32 v9, v9, v10
  v_add_f32 v11, v11, v12
  v_add_f32 v9, v9, v11
""")
    red8(9)
    a(f"""
  v_mov_b32 v10, {f32bits(1e-5):#x}
  v_fmac_f32 v10, {f32bits(1.0/512):#x}, v9
  v_rsq_f32 v10, v10
  v_mul_f32 v13, {f32bits(-math.log2(math.e)):#x}, v13
  v_exp_f32 v13, v13
  s_nop 0
  v_add_f32 v13, 1.0, v13
  v_rcp_f32 v13, v13
  v_lshlrev_b32 v5, 2, v5
  v_add_u32 v5, {WS_G:#x}, v5
  v_cmp_eq_u32 vcc, 0, v4
  s_and_saveexec_b64 s[84:85], vcc
""")
    vm.issue("st", "  buffer_store_dword v13, v5, s[12:15], 0 offen sc1")
    a("  s_mov_b64 exec, -1")
    for i in range(64):
        a(f"  v_mul_f32 v{FX+i}, v{FX+i}, v10")
    for i in range(32):
        a(f"  v_cvt_pk_bf16_f32 v{XR+i}, v{FX+2*i}, v{FX+2*i+1}")
    a(f"""
  s_lshl_b32 s84, s3, 3
  v_add_u32 v3, s84, v3
  s_movk_i32 s85, 1088
  v_mul_lo_u32 v3, v3, s85
  v_add_u32 v3, v3, v6
  v_add_u32 v3, {HOFF}, v3
""")
    for i in range(8):
        a(f"  ds_write_b128 v3, v[{XR+4*i}:{XR+4*i+3}] offset:{i*128}")
    a(f"""
  v_and_b32 v3, 15, v2
  v_lshrrev_b32 v4, 2, v3
  v_lshrrev_b32 v5, 5, v2
  v_lshl_add_u32 v4, v5, 2, v4
  v_bfe_u32 v5, v2, 4, 1
  v_lshlrev_b32 v5, 5, v5
  v_and_b32 v3, 3, v3
  v_lshl_add_u32 v5, v3, 3, v5
  s_movk_i32 s85, 1088
  v_mul_lo_u32 v6, v4, s85
  v_add_u32 v6, v6, v5
  s_lshl_b32 s84, s3, 8
  s_add_u32 s84, s84, {HOFF}
  v_add_u32 v6, s84, v6
  s_lshl_b32 s83, s90, 11
  s_lshl_b32 s84, s3, 19
  s_add_u32 s84, s84, s83
  s_add_u32 s84, s84, {WS_H:#x}
  v_add_u32 v9, s84, v250
  s_waitcnt lgkmcnt(0)
""")
    lds_barrier(a, 24, 4, 251, 10)
    T = 16
    n = 0
    for db in range(4):
        for t in range(2):
            off = t * 17408 + db * 64
            a(f"  ds_read_b64_tr_b16 v[{T+4*n}:{T+4*n+1}], v6 offset:{off}")
            a(f"  ds_read_b64_tr_b16 v[{T+4*n+2}:{T+4*n+3}], v6 offset:{off+8*1088}")
            n += 1
    a("  s_waitcnt lgkmcnt(0)")
    lds_signal(a, 28, 251, 10)
    n = 0
    for db in range(4):
        for t2 in range(2):
            a(f"  s_mov_b32 s85, {db*131072}")
            vm.issue("st", f"  buffer_store_dwordx4 v[{T+4*n}:{T+4*n+3}], v9, s[12:15], s85 offen offset:{t2*1024} sc1")
            n += 1
    stamp(a, 3)
    vm.wait("tok")
    Lok = a.label("tokok")
    a(f"  v_readfirstlane_b32 s{TOK}, v144")
    a(f"  v_readfirstlane_b32 s{TOK+1}, v145")
    a(f"  s_cmp_lg_u32 s{TOK}, 0")
    a(f"  s_cbranch_scc1 {Lok}")
    keep = list(vm.ops)
    get_token(a, vm, 144, 252)
    vm.ops = keep
    a(f"{Lok}:")
    a(f"""
  s_lshl_b32 s83, s90, 2
  s_add_u32 s83, s83, s3
  s_lshl_b32 s83, s83, 6
  s_add_u32 s83, s83, {FL_LN:#x}
""")
    a("  s_mov_b32 s91, s83")
    publish(a, vm, "st", "s83", 144, 252)
    lds_signal(a, 32, 251, 10)
    lds_wait(a, 28, 4, 251, 10)


def awaves(a):
    vm = VM(a)
    S = 32
    MF, MD = 80, 96
    CM, CF, CD = 112, 128, 144
    KF = 160
    QF = 200
    VF = 208
    OA = 224
    NEG, GV, MX, MX2 = 240, 242, 244, 246
    CS = 248
    mask_pairs = [4, 6, 8, 10] + list(range(16, 40, 2))
    assert len(mask_pairs) == 16
    cscale = 0.25 * math.log2(math.e)
    a(f"""
L_attn:
  s_sub_u32 s3, s3, 4                ; aw
  s_setprio {os.environ.get("QPRIO", "2")}
  s_or_b32 s83, s2, s3
  s_cmp_lg_u32 s83, 0
  s_cbranch_scc1 L_a_notok
  s_memrealtime s[70:71]
  s_waitcnt lgkmcnt(0)
  s_or_b32 s70, s70, 1
  v_mov_b32 v4, s70
  v_mov_b32 v5, s71
  s_mov_b64 exec, 1
  buffer_store_dwordx2 v[4:5], v252, s[{S_DBG}:{S_DBG+3}], 0 offen sc1
  s_mov_b64 exec, -1
L_a_notok:
  s_cmp_lt_u32 s2, 192
  s_cbranch_scc0 L_a_noqkv
""")
    qkv(a)
    a("L_a_noqkv:")
    lds_signal(a, 20, 251, 30)
    if "nomall" not in EXP:
        srd(a, 76, P_W1, 2048 * 1376 * 2)
        srd(a, 84, P_W2, 1376 * 2048 * 2)
        srd(a, 88, P_WO, 512 * 512 * 2)
        a(f"""
  s_setprio 0
  s_sub_u32 s92, s2, 192
  s_lshl_b32 s92, s92, 2
  s_add_u32 s92, s92, s3
  s_mul_i32 s93, s92, 22016
  v_lshlrev_b32 v13, 7, v2
  s_lshl_b32 s94, s92, 11
""")
        lds_wait(a, int(os.environ.get("PFCNT", "32")), 4, 251, 30)
        for k in range(3 if "now1t" in EXP else 0):
            a(f"  s_add_u32 s95, s93, {k*8192}")
            a(f"  buffer_load_dword v{32+k}, v13, s[76:79], s95 offen")
        for k in range(3):
            a(f"  s_add_u32 s95, s93, {k*8192}")
            a(f"  buffer_load_dword v{36+k}, v13, s[84:87], s95 offen")
        a(f"  v_cmp_gt_u32 vcc, 16, v2")
        a(f"  s_and_saveexec_b64 s[92:93], vcc")
        a(f"  buffer_load_dword v40, v13, s[88:91], s94 offen")
        a(f"  s_mov_b64 exec, -1")
    a("L_a_p1done:")
    a(f"""
  s_setprio 2
  s_lshl_b32 s70, s81, 2
  s_lshr_b32 s83, s82, 3
  s_add_u32 s70, s70, s83            ; head
  s_and_b32 s83, s82, 7
  s_lshl_b32 s71, s83, 3             ; qb0
  s_lshl_b32 s83, s3, 1
  s_add_u32 s72, s71, s83
  v_and_b32 v3, 31, v2
  v_lshrrev_b32 v4, 5, v2
  v_lshlrev_b32 v5, 5, v3
  v_lshl_add_u32 v5, v4, 4, v5
  s_lshl_b32 s83, s70, 16
  v_add_u32 v5, s83, v5
  v_and_b32 v6, 15, v2
  v_lshlrev_b32 v6, 4, v6
  v_lshl_add_u32 v6, v4, 8, v6
  v_add_u32 v9, {L_AV}, v6
  v_add_u32 v6, s83, v6
  v_add_u32 v6, {WS_V:#x}, v6
  v_lshlrev_b32 v7, 4, v2
  s_lshl_b32 s83, s70, 10
  s_add_u32 s83, s83, {WS_O:#x}
  v_add_u32 v7, s83, v7
  v_lshlrev_b32 v8, 2, v3
  v_add_u32 v8, {WS_G:#x}, v8
  v_mov_b32 v{NEG}, {f32bits(-1e30):#x}
  v_mov_b32 v{CS}, {f32bits(cscale):#x}
  v_mov_b32 v{CS+1}, {f32bits(cscale):#x}
  v_lshlrev_b32 v10, 2, v4
""")
    for r in range(16):
        a(f"  v_add_u32 v11, {(r&3) + 8*(r>>2)}, v10")
        a(f"  v_cmp_le_u32 vcc, v11, v3")
        a(f"  s_nop 1")
        a(f"  v_cndmask_b32 v{MF+r}, 0, v{NEG}, vcc")
        a(f"  v_cndmask_b32 v{MD+r}, v{NEG}, v252, vcc")
    for i in range(16):
        a(f"  v_mov_b32 v{VF+i}, 0x3f803f80")
    a(f"  v_cmp_gt_u32 s[74:75], 16, v3")
    a(f"""
  s_lshr_b32 s84, s70, 2
  s_lshr_b32 s85, s72, 1
  s_lshl_b32 s86, s84, 5
  s_add_u32 s86, s86, s85
  s_lshl_b32 s86, s86, 6
  s_add_u32 s86, s86, {FL_QKV:#x}    ; Q flag
  v_mov_b32 v12, s86
""")
    lane = 1
    for t in range(5):
        a(f"  s_add_u32 s86, s85, {t}")
        a(f"  s_max_u32 s86, s86, 4")
        a(f"  s_sub_u32 s86, s86, 4")
        a(f"  s_add_u32 s87, s84, 8")
        a(f"  s_lshl_b32 s87, s87, 5")
        a(f"  s_add_u32 s86, s86, s87")
        a(f"  s_lshl_b32 s86, s86, 6")
        a(f"  s_add_u32 s86, s86, {FL_QKV:#x}")
        a(f"  v_writelane_b32 v12, s86, {lane}")
        lane += 1
    for t in range(2):
        a(f"  s_lshr_b32 s86, s71, 1")
        a(f"  s_lshl_b32 s87, s3, 1")
        a(f"  s_add_u32 s86, s86, s87")
        a(f"  s_add_u32 s86, s86, {t}")
        a(f"  s_max_u32 s86, s86, 4")
        a(f"  s_sub_u32 s86, s86, 4")
        a(f"  s_add_u32 s87, s84, 16")
        a(f"  s_lshl_b32 s87, s87, 5")
        a(f"  s_add_u32 s86, s86, s87")
        a(f"  s_lshl_b32 s86, s86, 6")
        a(f"  s_add_u32 s86, s86, {FL_QKV:#x}")
        a(f"  v_writelane_b32 v12, s86, {lane}")
        lane += 1
    for t in range(8):
        a(f"  s_lshl_b32 s86, s72, 2")
        a(f"  s_add_u32 s86, s86, {t}")
        a(f"  s_lshl_b32 s86, s86, 6")
        a(f"  s_add_u32 s86, s86, {FL_LN:#x}")
        a(f"  v_writelane_b32 v12, s86, {lane}")
        lane += 1
    stamp(a, 1)
    get_token(a, vm, 14, 252)
    flag_load(vm, "fl", 14, 12)
    flag_check(a, vm, "fl", 14, 12)
    vm.drained()
    stamp(a, 2)
    a(f"  s_mov_b64 exec, s[74:75]")
    for jj in range(4):
        a(f"  s_lshl_b32 s83, s3, 2")
        a(f"  s_add_u32 s83, s83, s71")
        a(f"  s_add_u32 s83, s83, {jj}")
        a(f"  s_max_u32 s83, s83, 8")
        a(f"  s_sub_u32 s83, s83, 8")
        a(f"  s_lshl_b32 s83, s83, 10")
        vm.issue("v", f"  buffer_load_dwordx4 v[{S+8*jj}:{S+8*jj+3}], v6, s[12:15], s83 offen sc1")
        vm.issue("v", f"  buffer_load_dwordx4 v[{S+8*jj+4}:{S+8*jj+7}], v6, s[12:15], s83 offen offset:512 sc1")
    a(f"  s_mov_b64 exec, -1")
    a(f"  s_lshl_b32 s83, s72, 10")
    vm.issue("q", f"  buffer_load_dwordx4 v[{QF}:{QF+3}], v5, s[12:15], s83 offen sc1")
    vm.issue("q", f"  buffer_load_dwordx4 v[{QF+4}:{QF+7}], v5, s[12:15], s83 offen offset:1024 sc1")
    for i in range(10):
        a(f"  s_add_u32 s83, s72, {i}")
        a(f"  s_max_u32 s83, s83, 8")
        a(f"  s_sub_u32 s83, s83, 8")
        a(f"  s_lshl_b32 s83, s83, 10")
        a(f"  s_add_u32 s83, s83, {WS_K:#x}")
        vm.issue(("k", i), f"  buffer_load_dwordx4 v[{KF+4*i}:{KF+4*i+3}], v5, s[12:15], s83 offen sc1")
    a(f"  s_lshl_b32 s83, s72, 7")
    vm.issue("g", f"  buffer_load_dword v{GV}, v8, s[12:15], s83 offen sc1")
    vm.issue("g", f"  buffer_load_dword v{GV+1}, v8, s[12:15], s83 offen offset:128 sc1")
    vm.wait("v")
    a(f"  s_lshl_b32 s83, s3, 12")
    a(f"  v_add_u32 v11, s83, v9")
    a(f"  s_mov_b64 exec, s[74:75]")
    for jj in range(4):
        a(f"  ds_write_b128 v11, v[{S+8*jj}:{S+8*jj+3}] offset:{jj*1024}")
        a(f"  ds_write_b128 v11, v[{S+8*jj+4}:{S+8*jj+7}] offset:{jj*1024+512}")
    a(f"  s_mov_b64 exec, -1")
    a(f"  s_waitcnt lgkmcnt(0)")
    lds_barrier(a, 8, 4, 251, 14)
    vm.wait("g")
    if "hiprio" not in EXP:
        a("  s_setprio 0")
    stamp(a, 3)
    cstamp(a, 14)
    a(f"  s_lshl_b32 s83, s3, 11")
    a(f"  v_add_u32 v9, s83, v9")

    def vread(i):
        r = VF + 8 * (i & 1)
        a(f"  s_mov_b64 exec, s[74:75]")
        a(f"  ds_read_b128 v[{r}:{r+3}], v9 offset:{i*1024}")
        a(f"  ds_read_b128 v[{r+4}:{r+7}], v9 offset:{i*1024+512}")
        a(f"  s_mov_b64 exec, -1")

    def qk(i, buf, cmode, slow):
        d = S + 16 * buf
        if i == 0:
            c = MF if cmode == 0 else CF
        elif i == 8:
            c = MD if cmode == 0 else CD
        else:
            c = None if cmode == 0 else CM
        cs = "0" if c is None else f"v[{c}:{c+15}]"
        ins = f"  {MFMA} v[{d}:{d+15}], v[{KF+4*i}:{KF+4*i+3}], v[{QF}:{QF+3}], {cs}"
        if slow and i < 8:
            L1, L2 = a.label("inv"), a.label("invd")
            a(f"  s_cmp_gt_u32 s76, {i}")
            a(f"  s_cbranch_scc1 {L1}")
            a(ins)
            a(f"  s_branch {L2}")
            a(f"{L1}:")
            a("  s_nop 7")
            a("  s_nop 7")
            for r in range(16):
                a(f"  v_mov_b32 v{d+r}, v{NEG}")
            a(f"{L2}:")
        else:
            a(ins)

    def unit_core(slow):
        qk(0, 0, 0, slow)
        qk(1, 1, 0, slow)
        vread(0)
        for i in range(0, 16, 2):
            a(f"  v_pk_mov_b32 v[{OA+i}:{OA+i+1}], v[252:253], v[252:253] op_sel:[0,0]")
        a(f"  v_mov_b32 v{MX}, v{NEG}")
        a(f"  v_mov_b32 v{MX2}, v{NEG}")
        for i in range(9):
            if i + 2 < 9:
                qk(i + 2, (i + 2) % 3, 0, slow)
            else:
                a("  s_nop 3")
            b = S + 16 * (i % 3)
            for r in range(0, 16, 2):
                m = MX if (r & 2) == 0 else MX2
                a(f"  v_max3_f32 v{m}, v{m}, v{b+r}, v{b+r+1}")
        a(f"""
  v_max_f32 v{MX}, v{MX}, v{MX2}
  v_mov_b32 v{MX2}, v{MX}
  s_nop 1
  v_permlane32_swap_b32 v{MX}, v{MX2}
  s_nop 1
  v_max_f32 v{MX}, v{MX}, v{MX2}
  v_sub_f32 v{MX}, 0, v{MX}
  v_mov_b32 v{MX+1}, v{MX}
""")
        for r in range(0, 16, 2):
            a(f"  v_pk_mov_b32 v[{CM+r}:{CM+r+1}], v[{MX}:{MX+1}], v[{MX}:{MX+1}] op_sel:[0,1]")
        for r in range(0, 16, 2):
            a(f"  v_pk_add_f32 v[{CF+r}:{CF+r+1}], v[{MF+r}:{MF+r+1}], v[{MX}:{MX+1}]")
        a("  s_nop 1")
        qk(0, 0, 1, slow)
        qk(1, 1, 1, slow)
        for r in range(0, 16, 2):
            a(f"  v_pk_add_f32 v[{CD+r}:{CD+r+1}], v[{MD+r}:{MD+r+1}], v[{MX}:{MX+1}]")
        a("  s_nop 3")
        def pv(i, half):
            b = S + 16 * (i % 3)
            r = VF + 8 * (i & 1)
            a(f"  {MFMA} v[{OA}:{OA+15}], v[{r+4*half}:{r+4*half+3}], v[{b+4*half}:{b+4*half+3}], v[{OA}:{OA+15}]")

        for i in range(9):
            b = S + 16 * (i % 3)
            for r in range(16):
                a(f"  v_exp_f32 v{b+r}, v{b+r}")
                if i > 0 and r == 1:
                    a(f"  s_waitcnt lgkmcnt(0)")
                    pv(i - 1, 0)
                if i > 0 and r == 6:
                    pv(i - 1, 1)
                    vread(i)
                if r == 11 and i + 2 < 9 and i > 0:
                    qk(i + 2, (i + 2) % 3, 1, slow)
                if r == 3 and i == 0:
                    qk(2, 2, 1, slow)
            a("  s_nop 0")
            for q in range(8):
                a(f"  v_cvt_pk_bf16_f32 v{b+q}, v{b+2*q}, v{b+2*q+1}")
        a(f"  s_waitcnt lgkmcnt(0)")
        pv(8, 0)
        pv(8, 1)

    a(f"""
  s_mov_b32 s73, s72                 ; qb
  s_mov_b32 s77, 0
L_a_unit:
  s_sub_u32 s76, 8, s73
  s_cmp_gt_u32 s73, 8
  s_cselect_b32 s76, 0, s76
  s_cmp_lg_u32 s76, 0
  s_cbranch_scc1 L_a_slow
""")
    unit_core(False)
    a("L_a_join:")
    for i in range(0, 36, 2):
        a(f"  v_pk_mov_b32 v[{KF+i}:{KF+i+1}], v[{KF+4+i}:{KF+5+i}], v[{KF+4+i}:{KF+5+i}] op_sel:[0,1]")
    for i in range(0, 4, 2):
        a(f"  v_pk_mov_b32 v[{QF+i}:{QF+i+1}], v[{QF+4+i}:{QF+5+i}], v[{QF+4+i}:{QF+5+i}] op_sel:[0,1]")
    a(f"""
  v_add_u32 v9, 0x400, v9
  s_lshl_b32 s83, s73, 15
  v_rcp_f32 v10, v{OA+8}
  s_nop 0
  v_mul_f32 v10, v10, v{GV}
""")
    for r in range(8):
        a(f"  v_mul_f32 v{OA+r}, v{OA+r}, v10")
    a(f"  s_cmp_eq_u32 s77, 0")
    a(f"  s_cbranch_scc0 L_a_unit2")
    for q in range(4):
        a(f"  v_cvt_pk_bf16_f32 v{12+q}, v{OA+2*q}, v{OA+2*q+1}")
    vm.issue("st", f"  buffer_store_dwordx4 v[12:15], v7, s[12:15], s83 offen sc1")
    a(f"  v_mov_b32 v{GV}, v{GV+1}")
    stamp(a, 4)
    a(f"""
  s_add_u32 s73, s73, 1
  s_mov_b32 s77, 1
  s_branch L_a_unit
L_a_unit2:
""")
    for q in range(4):
        a(f"  v_cvt_pk_bf16_f32 v{QF+q}, v{OA+2*q}, v{OA+2*q+1}")
    vm.issue("st", f"  buffer_store_dwordx4 v[{QF}:{QF+3}], v7, s[12:15], s83 offen sc1")
    stamp(a, 5)
    cstamp(a, 15)
    a("  s_setprio 2")
    a(f"""
  s_lshl_b32 s83, s70, 5
  s_lshr_b32 s84, s72, 1
  s_add_u32 s83, s83, s84
  s_lshl_b32 s83, s83, 6
  s_add_u32 s83, s83, {FL_AT:#x}
""")
    publish(a, vm, "st", "s83", 10, 252)
    stamp(a, 11)
    if STAMPS:
        a("  s_waitcnt vmcnt(0)")
    stamp(a, 12)
    stamp_flush(a)
    a("  s_endpgm")
    a("L_a_slow:")
    unit_core(True)
    a("  s_branch L_a_join")


def main():
    ref = open(f"cdna_kernels/{NAME}.s.ref").read().split("\n")
    hdr = [l for l in ref if l.startswith(";") and "@launch" not in l]
    a = Asm()
    for l in hdr:
        a(l)
    a(f"; @launch grid=(256,1,1) block=(512,1,1) lds={LDS_BYTES}")
    a('.amdgcn_target "amdgcn-amd-amdhsa--gfx950"')
    gen(a)
    a(f"""
.section .rodata,"a"
.p2align 6
.amdhsa_kernel {KN}
  .amdhsa_next_free_vgpr 256
  .amdhsa_next_free_sgpr 102
  .amdhsa_accum_offset 256
  .amdhsa_group_segment_fixed_size 0
  .amdhsa_kernarg_size 96
  .amdhsa_user_sgpr_count 2
  .amdhsa_user_sgpr_kernarg_segment_ptr 1
  .amdhsa_system_sgpr_workgroup_id_x 1
.end_amdhsa_kernel
""")
    out = sys.argv[1] if len(sys.argv) > 1 else f"cdna_kernels/{NAME}.s"
    txt = a.text()
    if "nosc1ld" in EXP:
        txt = "\n".join(l.replace(" sc1", "") if ("buffer_load_dwordx4" in l) else l for l in txt.split("\n"))
    open(out, "w").write(txt)


if __name__ == "__main__":
    main()
```

```python
import math
import os
import struct
import sys

NAME = "gated_mix__sliding_block__mixer_token_mlp__prompt"
KN = NAME + "_kernel"

WS_Q = 0x000000
WS_K = 0x200000
WS_V = 0x400000
WS_H = 0x600000
WS_G = 0x800000
WS_O = 0x900000
WS_U = 0xB00000
WS_FL = 0xD00000
FL_LN = WS_FL
FL_QKV = WS_FL + 256 * 64
FL_U = WS_FL + 1024 * 64
FL_AT = WS_FL + 1792 * 64
WS_DBG = 0xE00000
WS_END = 0x1000000

STAMPS = os.environ.get("STAMPS", "0") == "1"
MFMA = "v_mfma_f32_32x32x16_bf16"
SPIN_MAX = 200000
QSCALE = 0.25 * math.log2(math.e)
SLEEP = int(os.environ.get("SLEEP", "1"))
EXP = set(os.environ.get("EXP", "").split(","))

L_R0 = 0
L_QS = 40960
L_YB0 = L_QS + 65536
L_AV = L_QS + 98304
L_CNT = L_AV + 16384
LDS_BYTES = L_CNT + 256


def f32bits(x):
    return struct.unpack("<I", struct.pack("<f", x))[0]


class Asm:
    def __init__(self):
        self.l = []
        self.n = 0

    def __call__(self, s):
        for line in s.strip("\n").split("\n"):
            self.l.append(line)

    def label(self, base):
        self.n += 1
        return f"L_{base}_{self.n}"

    def text(self):
        return "\n".join(self.l) + "\n"


class VM:
    def __init__(self, a):
        self.a = a
        self.ops = []

    def issue(self, tag, text):
        self.a(text)
        self.ops.append(tag)

    def wait(self, tags, extra=""):
        if not isinstance(tags, (list, tuple, set)):
            tags = [tags]
        idx = [i for i, t in enumerate(self.ops) if t in tags]
        if not idx:
            if extra:
                self.a(f"  s_waitcnt {extra}")
            return
        last = max(idx)
        n = len(self.ops) - 1 - last
        self.a(f"  s_waitcnt vmcnt({min(n, 63)}) {extra}".rstrip())
        self.ops = self.ops[last + 1:]

    def drained(self):
        self.ops = []


def srd(a, dst, ptr, nbytes, off=0):
    if off:
        a(f"  s_add_u32 s{dst}, s{ptr}, {off:#x}")
        a(f"  s_addc_u32 s{dst+1}, s{ptr+1}, 0")
        a(f"  s_and_b32 s{dst+1}, s{dst+1}, 0xffff")
    else:
        a(f"  s_mov_b32 s{dst}, s{ptr}")
        a(f"  s_and_b32 s{dst+1}, s{ptr+1}, 0xffff")
    a(f"  s_mov_b32 s{dst+2}, {nbytes:#x}")
    a(f"  s_mov_b32 s{dst+3}, 0x00020000")


def stamp(a, k):
    if not STAMPS:
        return
    a(f"  s_memrealtime s[98:99]")
    a(f"  s_waitcnt lgkmcnt(0)")
    a(f"  v_writelane_b32 v255, s98, {k}")


def cstamp(a, k):
    if not STAMPS:
        return
    a(f"  s_memtime s[98:99]")
    a(f"  s_waitcnt lgkmcnt(0)")
    a(f"  v_writelane_b32 v255, s98, {k}")


def stamp_flush(a):
    if not STAMPS:
        return
    a(f"  s_lshl_b32 s96, s2, 9")
    a(f"  s_add_u32 s96, s96, {WS_DBG:#x}")
    a(f"  v_lshrrev_b32 v254, 6, v0")
    a(f"  v_lshlrev_b32 v254, 6, v254")
    a(f"  v_and_b32 v253, 63, v0")
    a(f"  v_lshl_add_u32 v254, v253, 2, v254")
    a(f"  v_cmp_gt_u32 vcc, 16, v253")
    a(f"  s_and_saveexec_b64 s[100:101], vcc")
    a(f"  buffer_store_dword v255, v254, s[12:15], s96 offen")
    a(f"  s_mov_b64 exec, s[100:101]")


P_X, P_WQKV, P_WO, P_BX, P_W1, P_B1, P_W2, P_B2, P_GATE, P_OUT, P_DBG, P_WS = [40 + 2 * i for i in range(12)]
S_WS = 12
S_DBG = 64
TOK = 68


def get_token(a, vm, vt, vz):
    L = a.label("tok")
    Ld = a.label("tokd")
    a(f"  s_mov_b32 s97, 0")
    a(f"{L}:")
    a(f"  buffer_load_dwordx2 v[{vt}:{vt+1}], v{vz}, s[{S_DBG}:{S_DBG+3}], 0 offen sc1")
    a(f"  s_waitcnt vmcnt(0)")
    a(f"  v_readfirstlane_b32 s{TOK}, v{vt}")
    a(f"  v_readfirstlane_b32 s{TOK+1}, v{vt+1}")
    a(f"  s_add_u32 s97, s97, 1")
    a(f"  s_cmp_lg_u32 s{TOK}, 0")
    a(f"  s_cbranch_scc1 {Ld}")
    a(f"  s_cmp_gt_u32 s97, {SPIN_MAX}")
    a(f"  s_cbranch_scc1 {Ld}")
    a(f"  s_sleep 1")
    a(f"  s_branch {L}")
    a(f"{Ld}:")
    vm.drained()


def flag_load(vm, tag, vt, vaddr):
    vm.issue(tag, f"  buffer_load_dwordx2 v[{vt}:{vt+1}], v{vaddr}, s[{S_WS}:{S_WS+3}], 0 offen sc1")


def publish_pending(a, vm, vt):
    a(f"  v_mov_b32 v{vt}, s{TOK}")
    a(f"  v_mov_b32 v{vt+1}, s{TOK+1}")
    a(f"  s_mov_b64 exec, 1")
    vm.issue("flagst", f"  buffer_store_dwordx2 v[{vt}:{vt+1}], v252, s[{S_WS}:{S_WS+3}], s91 offen sc1")
    a(f"  s_mov_b64 exec, -1")


def flag_check(a, vm, tag, vt, vaddr, pend=None):
    vm.wait(tag)
    if pend is not None:
        publish_pending(a, vm, pend)
    if "isoU" in EXP or "isoY" in EXP:
        return
    L = a.label("fl")
    L1 = a.label("fl1")
    L2 = a.label("fl2")
    Ld = a.label("fld")
    a(f"  s_mov_b32 s97, 0")
    a(f"  v_cmp_eq_u64 vcc, s[{TOK}:{TOK+1}], v[{vt}:{vt+1}]")
    a(f"  s_cmp_eq_u64 vcc, exec")
    a(f"  s_cbranch_scc1 {Ld}")
    a(f"  s_andn2_b64 s[94:95], exec, vcc")
    a(f"  s_ff1_i32_b64 s96, s[94:95]")
    a(f"  s_lshl_b64 s[94:95], 1, s96")
    a(f"  s_mov_b64 exec, s[94:95]")
    a(f"{L1}:")
    a(f"  s_sleep {SLEEP}")
    a(f"  buffer_load_dwordx2 v[{vt}:{vt+1}], v{vaddr}, s[{S_WS}:{S_WS+3}], 0 offen sc1")
    a(f"  s_add_u32 s97, s97, 1")
    a(f"  s_waitcnt vmcnt(0)")
    a(f"  v_cmp_eq_u64 vcc, s[{TOK}:{TOK+1}], v[{vt}:{vt+1}]")
    a(f"  s_cmp_eq_u64 vcc, exec")
    a(f"  s_cbranch_scc1 {L2}")
    a(f"  s_cmp_gt_u32 s97, {SPIN_MAX}")
    a(f"  s_cbranch_scc0 {L1}")
    a(f"{L2}:")
    a(f"  s_mov_b64 exec, -1")
    a(f"{L}:")
    a(f"  v_cmp_eq_u64 vcc, s[{TOK}:{TOK+1}], v[{vt}:{vt+1}]")
    a(f"  s_cmp_eq_u64 vcc, exec")
    a(f"  s_cbranch_scc1 {Ld}")
    a(f"  s_add_u32 s97, s97, 1")
    a(f"  s_cmp_gt_u32 s97, {SPIN_MAX}")
    a(f"  s_cbranch_scc1 {Ld}")
    a(f"  s_andn2_b64 exec, exec, vcc")
    a(f"  buffer_load_dwordx2 v[{vt}:{vt+1}], v{vaddr}, s[{S_WS}:{S_WS+3}], 0 offen sc1")
    a(f"  s_mov_b64 exec, -1")
    a(f"  s_waitcnt vmcnt(0)")
    a(f"  s_branch {L}")
    a(f"{Ld}:")


def publish(a, vm, tags, s_off, vt, vz):
    a(f"  v_mov_b32 v{vt}, s{TOK}")
    a(f"  v_mov_b32 v{vt+1}, s{TOK+1}")
    vm.wait(tags)
    a(f"  s_mov_b64 exec, 1")
    vm.issue("flagst", f"  buffer_store_dwordx2 v[{vt}:{vt+1}], v{vz}, s[{S_WS}:{S_WS+3}], {s_off} offen sc1")
    a(f"  s_mov_b64 exec, -1")


def lds_barrier(a, cnt_off, target, vaddr, vt):
    L = a.label("lb")
    Ld = a.label("lbd")
    a(f"  v_mov_b32 v{vt}, 1")
    a(f"  s_mov_b64 exec, 1")
    a(f"  ds_add_u32 v{vaddr}, v{vt} offset:{cnt_off}")
    a(f"  s_mov_b64 exec, -1")
    a(f"  s_mov_b32 s97, 0")
    a(f"{L}:")
    a(f"  ds_read_b32 v{vt+1}, v{vaddr} offset:{cnt_off}")
    a(f"  s_waitcnt lgkmcnt(0)")
    a(f"  v_readfirstlane_b32 s96, v{vt+1}")
    a(f"  s_add_u32 s97, s97, 1")
    a(f"  s_cmp_ge_u32 s96, {target}")
    a(f"  s_cbranch_scc1 {Ld}")
    a(f"  s_cmp_gt_u32 s97, {SPIN_MAX*4}")
    a(f"  s_cbranch_scc1 {Ld}")
    a(f"  s_branch {L}")
    a(f"{Ld}:")


def lds_wait(a, cnt_off, target, vaddr, vt):
    L = a.label("lw")
    Ld = a.label("lwd")
    a(f"  s_mov_b32 s97, 0")
    a(f"{L}:")
    a(f"  ds_read_b32 v{vt+1}, v{vaddr} offset:{cnt_off}")
    a(f"  s_waitcnt lgkmcnt(0)")
    a(f"  v_readfirstlane_b32 s96, v{vt+1}")
    a(f"  s_add_u32 s97, s97, 1")
    a(f"  s_cmp_ge_u32 s96, {target}")
    a(f"  s_cbranch_scc1 {Ld}")
    a(f"  s_cmp_gt_u32 s97, {SPIN_MAX*4}")
    a(f"  s_cbranch_scc1 {Ld}")
    a(f"  s_branch {L}")
    a(f"{Ld}:")


def lds_signal(a, cnt_off, vaddr, vt):
    a(f"  v_mov_b32 v{vt}, 1")
    a(f"  s_mov_b64 exec, 1")
    a(f"  ds_add_u32 v{vaddr}, v{vt} offset:{cnt_off}")
    a(f"  s_mov_b64 exec, -1")


def cap(a, fn, *args):
    saved = a.l
    a.l = []
    fn(*args)
    out = a.l
    a.l = saved
    return out


def groups(lines):
    out, cur = [], []
    for l in lines:
        cur.append(l)
        if "buffer_load" in l:
            out.append("\n".join(cur))
            cur = []
    if cur:
        if out:
            out[-1] += "\n" + "\n".join(cur)
        else:
            out.append("\n".join(cur))
    return out


def weave(a, mf, fill):
    per = (len(fill) + len(mf) - 1) // len(mf) if fill else 0
    for i, m in enumerate(mf):
        a(m)
        for x in fill[i * per:(i + 1) * per]:
            a(x)


def gen(a):
    a(f"""
.text
.globl {KN}
.p2align 8
.type {KN},@function
{KN}:
  s_cmp_ge_u32 s2, 256
  s_cbranch_scc1 L_end
  s_load_dwordx16 s[40:55], s[0:1], 0
  s_load_dwordx8 s[56:63], s[0:1], 64
  v_lshrrev_b32 v1, 6, v0
  v_and_b32 v2, 63, v0
  v_mov_b32 v252, 0
""")
    if "nocodepf" not in EXP:
        a(f"""
  s_getpc_b64 s[84:85]
L_pc0:
  s_and_b32 s84, s84, 0xffffff00
  s_and_b32 s85, s85, 0xffff
  s_mov_b32 s86, L_end - {KN}
  s_mov_b32 s87, 0x00020000
  v_lshlrev_b32 v3, 7, v0
  buffer_load_dword v253, v3, s[84:87], 0 offen
""")
    a(f"""
  v_mov_b32 v251, {L_CNT}
  v_readfirstlane_b32 s3, v1
  v_lshlrev_b32 v4, 2, v2
  v_add_u32 v4, {L_CNT}, v4
  ds_write_b32 v4, v252
  s_and_b32 s81, s2, 7               ; xcd
  s_lshr_b32 s82, s2, 3              ; idx
  s_waitcnt lgkmcnt(0)
  s_barrier
""")
    srd(a, S_WS, P_WS, WS_END)
    srd(a, S_DBG, P_DBG, 256)
    stamp(a, 0)
    a("""
  s_cmp_ge_u32 s3, 4
  s_cbranch_scc1 L_attn
""")
    gwaves(a)
    awaves(a)
    a("""
L_end:
  s_endpgm
""")


DR = 16
LF = 80
ACC = 96
NY, NO, NU = 22, 8, 32
NYS = 17


def yslot(k):
    if k < 4:
        return 0, k * 2048
    if k < 12:
        return 1, (k - 4) * 2048
    return 2, (k - 12) * 2048


REG_M0 = {0: "s76", 1: "s77", 2: "s74"}
REG_TR = {0: 232, 1: 234, 2: 246}


def trreads(a, reg, off, buf):
    f = LF + 8 * buf
    base = REG_TR[reg]
    for b in range(2):
        a(f"  ds_read_b64_tr_b16 v[{f+4*b}:{f+4*b+1}], v{base+b} offset:{off}")
        a(f"  ds_read_b64_tr_b16 v[{f+4*b+2}:{f+4*b+3}], v{base+b} offset:{off+1024}")


def dma_y(a, vm, i):
    reg, off = yslot(i % NYS)
    if i < NY:
        a(f"  s_lshl_b32 s87, s46, 16")
        v0, sd = 242, 20
        adv = ["  s_add_u32 s46, s46, 1", "  s_cmp_eq_u32 s46, 22\n  s_cselect_b32 s46, 0, s46"]
    else:
        a(f"  s_lshl_b32 s87, s44, 14")
        v0, sd = 244, 24
        adv = ["  s_add_u32 s44, s44, 1", "  s_and_b32 s44, s44, 7"]
    a(f"  s_add_u32 m0, {REG_M0[reg]}, {off}")
    a(adv[0])
    vm.issue(("yd", i), f"  buffer_load_dwordx4 v{v0}, s[{sd}:{sd+3}], s87 offen lds")
    a(f"  s_add_u32 m0, {REG_M0[reg]}, {off+1024}")
    a(adv[1])
    vm.issue(("yd", i), f"  buffer_load_dwordx4 v{v0+1}, s[{sd}:{sd+3}], s87 offen lds")


def dma_u(a, vm, i):
    off = (i % 5) * 2048
    a(f"  s_mul_i32 s87, s42, {16*2752}")
    a(f"  s_add_u32 m0, s74, {off}")
    a(f"  s_add_u32 s42, s42, 1")
    vm.issue(("uw", i), f"  buffer_load_dwordx4 v240, s[16:19], s87 offen lds")
    a(f"  s_add_u32 m0, s74, {off+1024}")
    a(f"  s_and_b32 s42, s42, 31")
    vm.issue(("uw", i), f"  buffer_load_dwordx4 v241, s[16:19], s87 offen lds")


def gwaves(a):
    vm = VM(a)
    srd(a, 4, P_X, 2048 * 512 * 2)
    srd(a, 16, P_W1, 2048 * 1376 * 2)
    srd(a, 20, P_W2, 1376 * 2048 * 2)
    srd(a, 24, P_WO, 512 * 512 * 2)
    srd(a, 28, P_WS, 86 * 16 * 1024, WS_U)
    srd(a, 32, P_OUT, 2048 * 512 * 2)
    a(f"""
  s_and_b32 s83, s81, 3
  s_mul_i32 s83, s83, 22
  s_add_u32 s83, s83, s82
  s_lshr_b32 s70, s83, 2             ; U ft
  s_lshr_b32 s84, s81, 2
  s_lshl_b32 s84, s84, 2
  s_and_b32 s83, s83, 3
  s_add_u32 s71, s84, s83            ; U dt
  s_lshl_b32 s72, s81, 2
  s_and_b32 s83, s82, 3
  s_add_u32 s72, s72, s83            ; Y st
  s_lshr_b32 s73, s82, 2             ; Y dt
  s_mul_i32 s74, s3, 10240
  s_lshl_b32 s76, s3, 13
  s_add_u32 s76, s76, {L_YB0}
  s_lshl_b32 s77, s3, 14
  s_add_u32 s77, s77, {L_QS}
  v_lshlrev_b32 v250, 4, v2
  v_lshrrev_b32 v7, 3, v2
  v_and_b32 v8, 7, v2
  v_bfe_u32 v9, v7, 1, 1
  v_lshlrev_b32 v9, 2, v9
  v_xor_b32 v8, v8, v9
  v_lshlrev_b32 v8, 4, v8
  s_movk_i32 s83, 2752
  v_mul_lo_u32 v9, v7, s83
  v_add_u32 v9, v9, v8
  s_mul_i32 s83, s3, {512*2752}
  s_lshl_b32 s84, s70, 7
  s_add_u32 s83, s83, s84
  v_add_u32 v240, s83, v9
  v_add_u32 v241, {8*2752}, v240
  s_mul_i32 s42, s82, 3
  s_lshr_b32 s42, s42, 1
  s_and_b32 s42, s42, {0 if "norotU" in EXP else 31}
  s_mov_b32 s43, s42
  s_cmp_lt_u32 s2, 176
  s_cbranch_scc0 L_g_nopf
""")
    for i in range(5):
        dma_u(a, vm, i)
    if "now1t" not in EXP:
        a(f"""
  s_and_b32 s83, s81, 3
  s_mul_i32 s83, s83, 22
  s_lshr_b32 s83, s83, 2
  s_lshl_b32 s83, s83, 7
  s_lshl_b32 s84, s82, 2
  s_add_u32 s84, s84, s3
  s_mul_i32 s84, s84, 24
  v_add_u32 v13, s84, v7
  s_movk_i32 s85, 2752
  v_mul_lo_u32 v13, v13, s85
  v_add_u32 v13, s83, v13
  v_and_b32 v13, 0xffffff80, v13
  v_and_b32 v14, 7, v2
  v_lshl_add_u32 v13, v14, 7, v13
""")
        for k in range(3):
            a(f"  s_mov_b32 s85, {k*8*2752}")
            a(f"  buffer_load_dword v{208+k}, v13, s[16:19], s85 offen{' nt' if 'w1nt' in EXP else ''}")
    a(f"""
L_g_nopf:
  s_mul_i32 s83, s3, {22*16*4096}
  s_lshl_b32 s84, s72, 7
  s_add_u32 s83, s83, s84
  v_lshl_add_u32 v9, v7, 12, v8
  v_add_u32 v242, s83, v9
  v_add_u32 v243, 0x8000, v242
  s_lshl_b32 s83, s3, 17
  s_lshl_b32 s84, s73, 7
  s_add_u32 s83, s83, s84
  v_lshl_add_u32 v9, v7, 10, v8
  v_add_u32 v244, s83, v9
  v_add_u32 v245, 0x2000, v244
  v_and_b32 v7, 15, v2
  v_lshrrev_b32 v8, 2, v7
  v_lshrrev_b32 v9, 5, v2
  v_lshl_add_u32 v9, v9, 2, v8
  v_lshlrev_b32 v10, 7, v9
  v_bfe_u32 v9, v9, 1, 1
  v_lshl_add_u32 v10, v9, 6, v10
  v_bfe_u32 v9, v2, 4, 1
  v_lshl_add_u32 v10, v9, 5, v10
  v_and_b32 v7, 3, v7
  v_lshl_add_u32 v10, v7, 3, v10
  v_xor_b32 v11, 64, v10
  v_add_u32 v246, s74, v10
  v_add_u32 v247, s74, v11
  v_add_u32 v232, s76, v10
  v_add_u32 v233, s76, v11
  v_add_u32 v234, s77, v10
  v_add_u32 v235, s77, v11
  s_and_b32 s44, s82, 3
  s_lshl_b32 s44, s44, 1
  s_lshr_b32 s45, s82, 2
  s_add_u32 s44, s44, s45
  s_and_b32 s44, s44, {0 if "norotY" in EXP else 7}
  s_mov_b32 s45, s44
  s_mul_i32 s46, s82, {0 if "norotY" in EXP else 22}
  s_lshr_b32 s46, s46, 5
  s_mov_b32 s47, s46
  s_cmp_ge_u32 s2, 192
  s_cbranch_scc1 L_ln
""")
    get_token(a, vm, 4, 252)
    stamp(a, 4)
    a("""
  s_cmp_lt_u32 s2, 176
  s_cbranch_scc0 L_nou
""")
    uphase(a, vm)
    a("  s_branch L_ystart")
    ln(a, vm)
    stamp(a, 4)
    a("L_nou:")
    vm.ops = []
    a(f"""
  s_lshl_b32 s91, s2, 2
  s_add_u32 s91, s91, s3
  s_lshl_b32 s91, s91, 6
  s_add_u32 s91, s91, {WS_FL + 3000*64:#x}
  s_sub_u32 s83, s82, 22
  s_lshl_b32 s83, s83, 2
  s_add_u32 s83, s83, s3
  v_lshrrev_b32 v3, 2, v2
  v_and_b32 v4, 3, v2
  s_lshl_b32 s84, s83, 4
  v_add_u32 v3, s84, v3
  v_lshlrev_b32 v3, 12, v3
  v_lshl_add_u32 v3, v4, 7, v3
  s_lshl_b32 s84, s81, 9
  v_add_u32 v3, s84, v3
  s_lshl_b32 s84, s83, 13
  v_lshlrev_b32 v4, 7, v2
  v_add_u32 v4, s84, v4
""")
    if "nopf" not in EXP:
        for k in range(3):
            a(f"  s_mov_b32 s85, {k*640*4096}")
            a(f"  buffer_load_dword v{208+k}, v3, s[20:23], s85 offen")
        for k in range(2):
            a(f"  s_mov_b32 s85, {k*40*8192}")
            a(f"  buffer_load_dword v{212+k}, v4, s[24:27], s85 offen")
    lds_wait(a, 20, 4, 251, 10)
    for i in range(7):
        dma_y(a, vm, i)
    a("L_ystart:")
    vm.ops = []
    yphase(a, vm)


def uphase(a, vm):
    BIAS = 224
    srd(a, 36, P_B1, 1376 * 2)
    a(f"""
  v_and_b32 v3, 15, v2
  s_lshl_b32 s83, s3, 4
  v_add_u32 v3, s83, v3
  v_lshlrev_b32 v3, 2, v3
  s_lshr_b32 s83, s71, 1
  v_add_u32 v3, s83, v3
  v_lshlrev_b32 v3, 6, v3
  v_add_u32 v3, {FL_LN:#x}, v3
""")
    flag_load(vm, "fl", 4, 3)
    a(f"""
  s_lshl_b32 s83, s71, 18
  s_lshl_b32 s84, s3, 15
  s_add_u32 s83, s83, s84
  s_add_u32 s83, s83, {WS_H:#x}
  v_add_u32 v6, s83, v250
  v_add_u32 v7, 0x20000, v6
  v_lshrrev_b32 v8, 5, v2
  v_lshlrev_b32 v8, 3, v8
  s_lshl_b32 s83, s70, 7
  s_and_b32 s84, s3, 1
  s_lshl_b32 s84, s84, 6
  s_add_u32 s83, s83, s84
  v_add_u32 v8, s83, v8
""")
    for q in range(4):
        vm.issue("bias", f"  buffer_load_dwordx2 v[{BIAS+2*q}:{BIAS+2*q+1}], v8, s[36:39], 0 offen offset:{q*16}")
    flag_check(a, vm, "fl", 4, 3)
    stamp(a, 5)

    def direct(i):
        r = DR + 8 * (i % 8)
        a(f"  s_lshl_b32 s86, s43, 10")
        vm.issue(("ud", i), f"  buffer_load_dwordx4 v[{r}:{r+3}], v6, s[12:15], s86 offen sc1")
        a(f"  s_add_u32 s43, s43, 1")
        vm.issue(("ud", i), f"  buffer_load_dwordx4 v[{r+4}:{r+7}], v7, s[12:15], s86 offen sc1")
        a(f"  s_and_b32 s43, s43, 31")

    for i in range(8):
        direct(i)
    trreads(a, 2, 0, 0)
    vm.wait([("ud", 0)])
    for i in range(NU):
        if i + 1 < NU:
            vm.wait([("ud", i + 1), ("uw", i + 1)], "lgkmcnt(0)")
        else:
            a(f"  s_waitcnt lgkmcnt(0)")
        if i == 26:
            lds_wait(a, 20, 4, 251, 10)
        r = DR + 8 * (i % 8)
        f = LF + 8 * (i & 1)
        mf = []
        for b in range(2):
            for aa in range(2):
                d = ACC + 16 * (aa + 2 * b)
                c = "0" if i == 0 else f"v[{d}:{d+15}]"
                mf.append(f"  {MFMA} v[{d}:{d+15}], v[{f+4*aa}:{f+4*aa+3}], v[{r+4*b}:{r+4*b+3}], {c}")
        fill = []
        if i + 1 < NU:
            fill += cap(a, trreads, a, 2, ((i + 1) % 5) * 2048, (i + 1) & 1)
        if i + 5 < NU:
            fill += groups(cap(a, dma_u, a, vm, i + 5))
        if 27 <= i < 31:
            fill += groups(cap(a, dma_y, a, vm, i - 27))
        weave(a, mf, fill)
        if i + 8 < NU:
            direct(i + 8)
    stamp(a, 6)
    a(f"""
  v_add_u32 v8, s77, v250
  s_lshl_b32 s83, s3, 12
  s_add_u32 s83, s83, {L_QS}
  v_add_u32 v9, s83, v250
  s_nop 7
  s_nop 7
""")
    for tau in range(4):
        for q in range(4):
            a(f"  ds_write_b128 v8, v[{ACC+16*tau+4*q}:{ACC+16*tau+4*q+3}] offset:{tau*4096 + q*1024}")
    a("  s_waitcnt lgkmcnt(0)")
    lds_barrier(a, 0, 4, 251, 10)
    R = DR
    for sg in range(4):
        for q in range(4):
            a(f"  ds_read_b128 v[{R+16*sg+4*q}:{R+16*sg+4*q+3}], v9 offset:{sg*16384 + q*1024}")
    for q in range(4):
        a(f"  v_lshlrev_b32 v{ACC+4*q}, 16, v{BIAS+2*q}")
        a(f"  v_and_b32 v{ACC+4*q+1}, 0xffff0000, v{BIAS+2*q}")
        a(f"  v_lshlrev_b32 v{ACC+4*q+2}, 16, v{BIAS+2*q+1}")
        a(f"  v_and_b32 v{ACC+4*q+3}, 0xffff0000, v{BIAS+2*q+1}")
    a("  s_waitcnt lgkmcnt(0)")
    lds_signal(a, 12, 251, 10)
    for i in range(16):
        a(f"  v_add_f32 v{R+i}, v{R+i}, v{R+16+i}")
        a(f"  v_add_f32 v{R+32+i}, v{R+32+i}, v{R+48+i}")
        a(f"  v_add_f32 v{ACC+i}, v{ACC+i}, v{R+i}")
        a(f"  v_add_f32 v{ACC+i}, v{ACC+i}, v{R+32+i}")
    k = math.sqrt(2.0 / math.pi)
    c1 = -2.0 * k * math.log2(math.e)
    c2 = c1 * 0.044715
    a(f"  s_mov_b32 s83, {f32bits(c2):#x}")
    a(f"  v_mov_b32 v10, {f32bits(c1):#x}")
    for i in range(16):
        a(f"  v_mul_f32 v{R+i}, v{ACC+i}, v{ACC+i}")
    for i in range(16):
        a(f"  v_fma_f32 v{R+i}, v{R+i}, s83, v10")
    for i in range(16):
        a(f"  v_mul_f32 v{R+i}, v{R+i}, v{ACC+i}")
    for i in range(16):
        a(f"  v_exp_f32 v{R+i}, v{R+i}")
    for i in range(16):
        a(f"  v_add_f32 v{R+i}, 1.0, v{R+i}")
    for i in range(16):
        a(f"  v_rcp_f32 v{R+i}, v{R+i}")
    for i in range(16):
        a(f"  v_mul_f32 v{R+i}, v{R+i}, v{ACC+i}")
    for i in range(8):
        a(f"  v_cvt_pk_bf16_f32 v{R+16+i}, v{R+2*i}, v{R+2*i+1}")
    a(f"""
  s_lshl_b32 s83, s70, 1
  s_and_b32 s84, s3, 1
  s_add_u32 s83, s83, s84
  s_lshl_b32 s84, s71, 1
  s_lshr_b32 s85, s3, 1
  s_add_u32 s84, s84, s85
  s_lshl_b32 s85, s83, 15
  s_lshl_b32 s86, s84, 10
  s_add_u32 s85, s85, s86
  v_add_u32 v8, s85, v250
  s_movk_i32 s86, 0x4000
""")
    vm.issue("st", f"  buffer_store_dwordx4 v[{R+16}:{R+19}], v8, s[28:31], 0 offen sc1")
    vm.issue("st", f"  buffer_store_dwordx4 v[{R+20}:{R+23}], v8, s[28:31], s86 offen sc1")
    a(f"""
  s_lshl_b32 s83, s83, 4
  s_add_u32 s83, s83, s84
  s_lshl_b32 s83, s83, 6
  s_add_u32 s91, s83, {FL_U:#x}
""")
    lds_wait(a, 12, 4, 251, 10)
    for i in range(4, 7):
        dma_y(a, vm, i)
    publish(a, vm, "st", "s91", 10, 252)
    stamp(a, 7)


def yphase(a, vm):
    NS = NY + NO
    GV = 224
    srd(a, 36, P_B2, 2048 * 2)
    a(f"""
  v_min_u32 v3, 21, v2
  v_lshrrev_b32 v4, 1, v3
  s_mul_i32 s83, s3, 11
  v_add_u32 v4, s83, v4
  v_min_u32 v4, 42, v4
  v_lshlrev_b32 v4, 4, v4
  v_and_b32 v3, 1, v3
  s_lshl_b32 s83, s73, 1
  v_add3_u32 v3, v3, v4, s83
  v_lshlrev_b32 v3, 6, v3
  v_add_u32 v3, {FL_U:#x}, v3
  v_subrev_u32 v4, 22, v2
  v_and_b32 v4, 7, v4
  s_lshl_b32 s83, s72, 3
  v_add_u32 v4, s83, v4
  v_lshlrev_b32 v4, 6, v4
  v_add_u32 v4, {FL_LN:#x}, v4
  v_cmp_lt_u32 vcc, 21, v2
  s_nop 1
  v_cndmask_b32 v3, v3, v4, vcc
""")
    flag_load(vm, "fl", 4, 3)
    for i in range(7, NYS):
        dma_y(a, vm, i)
    a(f"""
  v_and_b32 v8, 7, v2
  s_lshl_b32 s83, s3, 3
  v_add_u32 v8, s83, v8
  v_lshlrev_b32 v8, 5, v8
  v_add_u32 v8, s72, v8
  v_lshlrev_b32 v8, 6, v8
  v_add_u32 v8, {FL_AT:#x}, v8
  s_mul_i32 s83, s3, {22*16384}
  s_lshl_b32 s84, s73, 11
  s_add_u32 s83, s83, s84
  v_add_u32 v12, s83, v250
  s_lshl_b32 s83, s72, 16
  s_lshl_b32 s84, s3, 13
  s_add_u32 s83, s83, s84
  s_add_u32 s83, s83, {WS_O:#x}
  v_add_u32 v13, s83, v250
  v_add_u32 v14, 0x8000, v13
  v_and_b32 v7, 31, v2
  s_lshl_b32 s83, s72, 6
  v_add_u32 v7, s83, v7
  v_lshlrev_b32 v9, 1, v7
""")
    vm.issue("g", f"  buffer_load_ushort v{GV+2}, v9, s[36:39], 0 offen")
    vm.issue("g", f"  buffer_load_ushort v{GV+3}, v9, s[36:39], 0 offen offset:64")
    flag_check(a, vm, "fl", 4, 3)
    stamp(a, 8)
    a(f"""
  v_lshlrev_b32 v9, 2, v7
  v_add_u32 v9, {WS_G:#x}, v9
""")
    vm.issue("g", f"  buffer_load_dword v{GV}, v9, s[12:15], 0 offen sc1")
    vm.issue("g", f"  buffer_load_dword v{GV+1}, v9, s[12:15], 0 offen offset:128 sc1")

    def direct(i):
        r = DR + 8 * (i % 8)
        if i < NY:
            a(f"  s_lshl_b32 s86, s47, 14")
            vm.issue(("yr", i), f"  buffer_load_dwordx4 v[{r}:{r+3}], v12, s[28:31], s86 offen sc1")
            a(f"  s_add_u32 s47, s47, 1")
            vm.issue(("yr", i), f"  buffer_load_dwordx4 v[{r+4}:{r+7}], v12, s[28:31], s86 offen offset:1024 sc1")
            a(f"  s_cmp_eq_u32 s47, 22")
            a(f"  s_cselect_b32 s47, 0, s47")
        else:
            a(f"  s_lshl_b32 s86, s45, 10")
            vm.issue(("yr", i), f"  buffer_load_dwordx4 v[{r}:{r+3}], v13, s[12:15], s86 offen sc1")
            a(f"  s_add_u32 s45, s45, 1")
            vm.issue(("yr", i), f"  buffer_load_dwordx4 v[{r+4}:{r+7}], v14, s[12:15], s86 offen sc1")
            a(f"  s_and_b32 s45, s45, 7")

    for i in range(8):
        direct(i)
    ACHK = int(os.environ.get("ACHK", "18"))
    nextd = 8
    vm.wait([("yr", 0), ("yd", 0)])
    trreads(a, *yslot(0), 0)
    for i in range(NS):
        if i + 1 < NS:
            vm.wait([("yr", i + 1), ("yd", i + 1)], "lgkmcnt(0)")
        else:
            a(f"  s_waitcnt lgkmcnt(0)")
        r = DR + 8 * (i % 8)
        f = LF + 8 * (i & 1)
        if i == NY:
            stamp(a, 9)
            a("  s_nop 7")
            a("  s_nop 7")
            a(f"  v_sub_f32 v{GV+4}, 1.0, v{GV}")
            a(f"  v_sub_f32 v{GV+5}, 1.0, v{GV+1}")
            for b in range(2):
                for aa in range(2):
                    d = ACC + 16 * (aa + 2 * b)
                    for q in range(16):
                        a(f"  v_mul_f32 v{d+q}, v{d+q}, v{GV+4+b}")
            a("  s_nop 1")
        mf = []
        for b in range(2):
            for aa in range(2):
                d = ACC + 16 * (aa + 2 * b)
                c = "0" if i == 0 else f"v[{d}:{d+15}]"
                if i < NY:
                    A = f"v[{r+4*aa}:{r+4*aa+3}]"
                    B = f"v[{f+4*b}:{f+4*b+3}]"
                else:
                    A = f"v[{f+4*aa}:{f+4*aa+3}]"
                    B = f"v[{r+4*b}:{r+4*b+3}]"
                mf.append(f"  {MFMA} v[{d}:{d+15}], {A}, {B}, {c}")
        fill = []
        if i + 1 < NS:
            fill += cap(a, trreads, a, *yslot((i + 1) % NYS), (i + 1) & 1)
        if i + NYS < NS:
            fill += groups(cap(a, dma_y, a, vm, i + NYS))
        weave(a, mf, fill)
        if i == ACHK - 4:
            flag_load(vm, "fa", 10, 8)
        if i == ACHK:
            if "chainB" not in EXP:
                flag_check(a, vm, "fa", 10, 8)
            stamp(a, 13)
        while nextd <= i + 8 and nextd < NS and (nextd < NY or i >= ACHK):
            direct(nextd)
            nextd += 1
    stamp(a, 10)
    a(f"""
  v_add_u32 v8, s77, v250
  s_lshl_b32 s83, s3, 12
  s_add_u32 s83, s83, {L_QS}
  v_add_u32 v9, s83, v250
  s_nop 7
  s_nop 7
""")
    for i in range(16):
        a(f"  ds_write_b128 v8, v[{ACC+4*i}:{ACC+4*i+3}] offset:{i*1024}")
    a("  s_waitcnt lgkmcnt(0)")
    lds_barrier(a, 4, 4, 251, 10)
    R = DR
    for sg in range(4):
        for q in range(4):
            a(f"  ds_read_b128 v[{R+16*sg+4*q}:{R+16*sg+4*q+3}], v9 offset:{sg*16384 + q*1024}")
    a(f"""
  s_lshr_b32 s83, s3, 1
  s_cmp_eq_u32 s83, 0
  s_cselect_b64 vcc, -1, 0
  v_cndmask_b32 v10, v{GV+5}, v{GV+4}, vcc
  v_cndmask_b32 v11, v{GV+3}, v{GV+2}, vcc
  v_lshlrev_b32 v11, 16, v11
  v_mul_f32 v10, v10, v11
  s_lshl_b32 s84, s83, 5
  v_add_u32 v7, s84, v7
  v_lshlrev_b32 v7, 10, v7
  s_lshl_b32 s84, s73, 7
  s_and_b32 s85, s3, 1
  s_lshl_b32 s85, s85, 6
  s_add_u32 s84, s84, s85
  v_add_u32 v7, s84, v7
  v_lshrrev_b32 v8, 5, v2
  v_lshl_add_u32 v7, v8, 4, v7
  s_waitcnt lgkmcnt(0)
""")
    for i in range(16):
        a(f"  v_add_f32 v{R+i}, v{R+i}, v{R+16+i}")
        a(f"  v_add_f32 v{R+32+i}, v{R+32+i}, v{R+48+i}")
        a(f"  v_add_f32 v{R+i}, v{R+i}, v10")
        a(f"  v_add_f32 v{R+i}, v{R+i}, v{R+32+i}")
    P = R + 16
    for q in range(4):
        a(f"  v_cvt_pk_bf16_f32 v{P+2*q}, v{R+4*q}, v{R+4*q+1}")
        a(f"  v_cvt_pk_bf16_f32 v{P+2*q+1}, v{R+4*q+2}, v{R+4*q+3}")
    a("  s_nop 1")
    for q in (0, 2):
        a(f"  v_permlane32_swap_b32 v{P+2*q}, v{P+2*q+2}")
        a(f"  v_permlane32_swap_b32 v{P+2*q+1}, v{P+2*q+3}")
    a(f"  buffer_store_dwordx4 v[{P}:{P+3}], v7, s[32:35], 0 offen")
    a(f"  buffer_store_dwordx4 v[{P+4}:{P+7}], v7, s[32:35], 0 offen offset:32")
    stamp(a, 11)
    if STAMPS:
        a("  s_waitcnt vmcnt(0)")
    stamp(a, 12)
    stamp_flush(a)
    a("  s_endpgm")


def qkv(a):
    srd(a, 4, P_X, 2048 * 512 * 2)
    srd(a, 8, P_WQKV, 512 * 1536 * 2)
    a(f"""
  s_and_b32 s83, s81, 3
  s_lshl_b32 s83, s83, 2
  s_and_b32 s84, s82, 3
  s_add_u32 s36, s83, s84            ; st
  s_lshr_b32 s83, s81, 2
  s_mul_i32 s83, s83, 6
  s_lshr_b32 s84, s82, 2
  s_add_u32 s37, s83, s84            ; nt
  s_lshl_b32 s38, s3, 12
  s_add_u32 s38, s38, {L_QS}
""")
    VXA, VWA = 4, 8
    a("  v_lshrrev_b32 v3, 3, v2")
    a("  v_and_b32 v12, 7, v2")
    a("  s_lshl_b32 s83, s36, 17")
    for i in range(4):
        a(f"  s_lshl_b32 s84, s3, 5")
        a(f"  s_add_u32 s84, s84, {8*i}")
        a(f"  v_add_u32 v13, s84, v3")
        a(f"  v_lshrrev_b32 v14, 1, v13")
        a(f"  v_and_b32 v14, 7, v14")
        a(f"  v_xor_b32 v14, v14, v12")
        a(f"  v_lshlrev_b32 v14, 4, v14")
        a(f"  v_lshl_add_u32 v14, v13, 10, v14")
        a(f"  v_add_u32 v{VXA+i}, s83, v14")
    a("""
  v_lshrrev_b32 v3, 4, v2
  v_and_b32 v12, 15, v2
  v_lshrrev_b32 v13, 2, v12
  v_xor_b32 v13, v13, v3
  v_lshlrev_b32 v13, 2, v13
  v_and_b32 v12, 3, v12
  v_or_b32 v13, v13, v12
  v_lshlrev_b32 v13, 4, v13
  s_lshl_b32 s83, s37, 8
  v_add_u32 v13, s83, v13
  s_movk_i32 s85, 3072
""")
    for i in range(4):
        a(f"  s_lshl_b32 s84, s3, 4")
        a(f"  s_add_u32 s84, s84, {4*i}")
        a(f"  v_add_u32 v14, s84, v3")
        a(f"  v_mul_lo_u32 v14, v14, s85")
        a(f"  v_add_u32 v{VWA+i}, v14, v13")
    a(f"  s_and_b32 s39, s82, {0 if 'norotQ' in EXP else 7}")
    a("  s_mov_b32 s16, 0")

    def issue_chunk():
        a(f"  s_mul_i32 s87, s39, 196608")
        a(f"  s_lshl_b32 s86, s39, 7")
        a(f"  s_add_u32 s17, s38, s16")
        for i in range(4):
            a(f"  s_add_u32 m0, s17, {i*1024}")
            a(f"  s_nop 0")
            a(f"  buffer_load_dwordx4 v{VXA+i}, s[4:7], s86 offen lds")
            a(f"  s_add_u32 m0, s17, {16384 + i*1024}")
            a(f"  s_nop 0")
            a(f"  buffer_load_dwordx4 v{VWA+i}, s[8:11], s87 offen lds")
        a(f"  s_add_u32 s39, s39, 1")
        a(f"  s_and_b32 s39, s39, 7")
        a(f"  s_add_u32 s16, s16, 32768")
        a(f"  s_cmp_eq_u32 s16, 98304")
        a(f"  s_cselect_b32 s16, 0, s16")

    for c in range(3):
        issue_chunk()
    VXB, VWB, VXR, VWR = 16, 20, 22, 26
    a(f"""
  buffer_load_dwordx2 v[28:29], v252, s[{S_DBG}:{S_DBG+3}], 0 offen sc1
  s_and_b32 s88, s3, 1
  s_lshr_b32 s89, s3, 1
  v_and_b32 v3, 31, v2
  v_lshrrev_b32 v12, 5, v2
  s_lshl_b32 s84, s88, 6
  v_add_u32 v13, s84, v3
  v_lshrrev_b32 v14, 1, v13
  v_and_b32 v14, 7, v14
  v_lshlrev_b32 v13, 7, v13
  v_add_u32 v13, {L_QS}, v13
""")
    for ks in range(4):
        a(f"  v_or_b32 v15, {2*ks}, v12")
        a(f"  v_xor_b32 v15, v15, v14")
        a(f"  v_lshl_add_u32 v{VXB+ks}, v15, 4, v13")
        a(f"  v_mov_b32 v{VXR+ks}, v{VXB+ks}")
    a(f"""
  v_and_b32 v3, 15, v2
  v_lshrrev_b32 v13, 2, v3
  v_lshlrev_b32 v14, 11, v12
  v_lshl_add_u32 v14, v13, 8, v14
  v_bfe_u32 v15, v2, 4, 1
  v_lshl_add_u32 v14, v15, 5, v14
  v_and_b32 v15, 3, v3
  v_lshl_add_u32 v14, v15, 3, v14
  v_add_u32 v14, {L_QS + 0x4000}, v14
  s_lshl_b32 s84, s89, 1
""")
    for b in range(2):
        a(f"  s_add_u32 s85, s84, {b}")
        a(f"  v_xor_b32 v15, s85, v13")
        a(f"  v_lshl_add_u32 v{VWB+b}, v15, 6, v14")
        a(f"  v_mov_b32 v{VWR+b}, v{VWB+b}")
    FR, QA = 32, 96
    for i in range(0, 64, 2):
        a(f"  v_pk_mov_b32 v[{QA+i}:{QA+i+1}], v[252:253], v[252:253] op_sel:[0,0]")

    def reads(ks):
        f = FR + 16 * ks
        for aa in range(2):
            a(f"  ds_read_b128 v[{f+4*aa}:{f+4*aa+3}], v{VXR+ks} offset:{aa*4096}")
        for b in range(2):
            a(f"  ds_read_b64_tr_b16 v[{f+8+4*b}:{f+8+4*b+1}], v{VWR+b} offset:{ks*4096}")
            a(f"  ds_read_b64_tr_b16 v[{f+8+4*b+2}:{f+8+4*b+3}], v{VWR+b} offset:{ks*4096 + 1024}")

    def mfmas(ks, vmode):
        f = FR + 16 * ks
        for b in range(2):
            for aa in range(2):
                d = QA + 16 * (aa + 2 * b)
                xa = f"v[{f+4*aa}:{f+4*aa+3}]"
                wb = f"v[{f+8+4*b}:{f+8+4*b+3}]"
                if vmode:
                    a(f"  {MFMA} v[{d}:{d+15}], {xa}, {wb}, v[{d}:{d+15}]")
                else:
                    a(f"  {MFMA} v[{d}:{d+15}], {wb}, {xa}, v[{d}:{d+15}]")

    def poll(target_sgpr):
        L, Ld = a.label("qp"), a.label("qpd")
        a(f"  s_mov_b32 s97, 0")
        a(f"{L}:")
        a(f"  ds_read_b32 v31, v251 offset:16")
        a(f"  s_waitcnt lgkmcnt(0)")
        a(f"  v_readfirstlane_b32 s96, v31")
        a(f"  s_add_u32 s97, s97, 1")
        a(f"  s_cmp_ge_u32 s96, {target_sgpr}")
        a(f"  s_cbranch_scc1 {Ld}")
        a(f"  s_cmp_gt_u32 s97, {SPIN_MAX*4}")
        a(f"  s_cbranch_scc0 {L}")
        a(f"{Ld}:")

    def mainloop(vmode):
        L, L1, L2, L3 = a.label("qkv"), a.label("q1"), a.label("q2"), a.label("q3")
        stamp(a, 6)
        a("  s_waitcnt vmcnt(17)")
        lds_signal(a, 16, 251, 30)
        a("  s_mov_b32 s18, 4")
        poll("s18")
        stamp(a, 7)
        reads(0)
        reads(1)
        a("  s_mov_b32 s90, 0")
        a("  s_mov_b32 s19, 0")
        a(f"{L}:")
        a("  s_waitcnt lgkmcnt(6)")
        weave(a, cap(a, mfmas, 0, vmode), cap(a, reads, 2))
        a("  s_waitcnt lgkmcnt(6)")
        weave(a, cap(a, mfmas, 1, vmode), cap(a, reads, 3))
        a(f"  s_cmp_lt_u32 s90, 6")
        a(f"  s_cbranch_scc1 {L1}")
        a("  s_waitcnt vmcnt(0)")
        a(f"{L1}:")
        a("  s_waitcnt vmcnt(8) lgkmcnt(0)")
        lds_signal(a, 16, 251, 30)
        a("  s_add_u32 s18, s18, 4")
        a("  s_add_u32 s19, s19, 32768")
        a("  s_cmp_eq_u32 s19, 98304")
        a("  s_cselect_b32 s19, 0, s19")
        adv = [f"  v_add_u32 v{VXR+k}, s19, v{VXB+k}" for k in range(4)] + [f"  v_add_u32 v{VWR+k}, s19, v{VWB+k}" for k in range(2)]
        weave(a, cap(a, mfmas, 2, vmode), adv)
        poll("s18")
        weave(a, cap(a, mfmas, 3, vmode), cap(a, reads, 0) + cap(a, reads, 1))
        a(f"  s_cmp_lt_u32 s90, 5")
        a(f"  s_cbranch_scc0 {L2}")
        issue_chunk()
        a(f"{L2}:")
        a(f"  s_add_u32 s90, s90, 1")
        a(f"  s_cmp_lt_u32 s90, 8")
        a(f"  s_cbranch_scc1 {L}")
        a("  s_waitcnt lgkmcnt(0)")
        lds_signal(a, 20, 251, 30)
        stamp(a, 8)

    ST = 160
    vm = VM(a)

    def finish():
        Lok = a.label("tokok")
        a(f"  v_readfirstlane_b32 s{TOK}, v28")
        a(f"  v_readfirstlane_b32 s{TOK+1}, v29")
        a(f"  s_cmp_lg_u32 s{TOK}, 0")
        a(f"  s_cbranch_scc1 {Lok}")
        keep = list(vm.ops)
        get_token(a, vm, 28, 252)
        vm.ops = keep
        a(f"{Lok}:")
        a(f"""
  s_lshl_b32 s83, s37, 1
  s_add_u32 s83, s83, s89
  s_lshl_b32 s83, s83, 5
  s_lshl_b32 s84, s36, 1
  s_add_u32 s84, s84, s88
  s_add_u32 s83, s83, s84
  s_lshl_b32 s83, s83, 6
  s_add_u32 s91, s83, {FL_QKV:#x}
""")
        publish(a, vm, "st", "s91", 28, 252)
        stamp(a, 9)
        a("  s_branch L_a_p1done")

    a("  s_cmp_ge_u32 s37, 8")
    a("  s_cbranch_scc1 L_vpath")
    mainloop(False)
    a("""
  v_and_b32 v3, 31, v2
  v_lshrrev_b32 v12, 5, v2
  s_lshl_b32 s83, s36, 7
  s_lshl_b32 s84, s88, 6
  s_add_u32 s83, s83, s84
  v_add_u32 v3, s83, v3
  v_lshlrev_b32 v3, 5, v3
  v_lshl_add_u32 v3, v12, 4, v3
  s_and_b32 s83, s37, 3
  s_lshl_b32 s83, s83, 3
  s_lshl_b32 s84, s89, 2
  s_add_u32 s83, s83, s84
  s_lshl_b32 s83, s83, 16
  s_lshr_b32 s84, s37, 2
  s_lshl_b32 s84, s84, 21
  s_add_u32 s83, s83, s84
  v_add_u32 v3, s83, v3
  s_cmp_ge_u32 s37, 4
  s_cbranch_scc1 L_noqs
""")
    a(f"  v_mov_b32 v4, {f32bits(QSCALE):#x}")
    a(f"  v_mov_b32 v5, {f32bits(QSCALE):#x}")
    for i in range(0, 64, 2):
        a(f"  v_pk_mul_f32 v[{QA+i}:{QA+i+1}], v[{QA+i}:{QA+i+1}], v[4:5]")
    a("L_noqs:")
    vm.ops = []
    for b in range(2):
        for aa in range(2):
            d = QA + 16 * (aa + 2 * b)
            for hh in range(2):
                t = ST + 4 * (2 * (aa + 2 * b) + hh)
                for q in range(4):
                    a(f"  v_cvt_pk_bf16_f32 v{t+q}, v{d+8*hh+2*q}, v{d+8*hh+2*q+1}")
                a(f"  s_mov_b32 s85, {(2*b+hh)*65536}")
                vm.issue("st", f"  buffer_store_dwordx4 v[{t}:{t+3}], v3, s[12:15], s85 offen offset:{aa*1024} sc1")
    finish()
    a("L_vpath:")
    mainloop(True)
    a(f"""
  v_and_b32 v3, 15, v2
  v_lshrrev_b32 v12, 5, v2
  v_lshlrev_b32 v3, 4, v3
  v_lshl_add_u32 v3, v12, 8, v3
  v_bfe_u32 v12, v2, 4, 1
  v_lshl_add_u32 v3, v12, 16, v3
  s_and_b32 s83, s37, 3
  s_lshl_b32 s83, s83, 3
  s_lshl_b32 s84, s89, 2
  s_add_u32 s83, s83, s84
  s_lshl_b32 s83, s83, 16
  s_lshl_b32 s84, s36, 2
  s_lshl_b32 s85, s88, 1
  s_add_u32 s84, s84, s85
  s_lshl_b32 s84, s84, 10
  s_add_u32 s83, s83, s84
  s_add_u32 s83, s83, {WS_V:#x}
  v_add_u32 v3, s83, v3
""")
    vm.ops = []
    for b in range(2):
        for aa in range(2):
            d = QA + 16 * (aa + 2 * b)
            for tt in range(2):
                t = ST + 4 * (2 * (aa + 2 * b) + tt)
                for q in range(4):
                    a(f"  v_cvt_pk_bf16_f32 v{t+q}, v{d+8*tt+2*q}, v{d+8*tt+2*q+1}")
                a(f"  s_mov_b32 s85, {2*b*65536}")
                vm.issue("st", f"  buffer_store_dwordx4 v[{t}:{t+3}], v3, s[12:15], s85 offen offset:{aa*1024 + tt*512} sc1")
    finish()


def ln(a, vm):
    vm.ops = []
    HOFF = L_QS
    XR, GR, FX = 16, 48, 80
    srd_ = []
    a("L_ln:")
    srd(a, 36, P_GATE, 1024)
    a(f"""
  s_sub_u32 s90, s2, 192             ; a
  v_lshrrev_b32 v3, 3, v2
  v_and_b32 v4, 7, v2
  s_lshl_b32 s83, s90, 5
  s_lshl_b32 s84, s3, 3
  s_add_u32 s83, s83, s84
  v_add_u32 v5, s83, v3              ; row
  v_lshlrev_b32 v6, 4, v4
  v_lshl_add_u32 v7, v5, 10, v6
""")
    for i in range(8):
        vm.issue("x", f"  buffer_load_dwordx4 v[{XR+4*i}:{XR+4*i+3}], v7, s[4:7], 0 offen offset:{i*128}")
    for i in range(8):
        vm.issue("x", f"  buffer_load_dwordx4 v[{GR+4*i}:{GR+4*i+3}], v6, s[36:39], 0 offen offset:{i*128}")
    vm.issue("tok", f"  buffer_load_dwordx2 v[144:145], v252, s[{S_DBG}:{S_DBG+3}], 0 offen sc1")
    stamp(a, 1)
    vm.wait("x")
    stamp(a, 2)
    for i in range(32):
        a(f"  v_lshlrev_b32 v{FX+2*i}, 16, v{XR+i}")
        a(f"  v_and_b32 v{FX+2*i+1}, 0xffff0000, v{XR+i}")
    for c in range(4):
        a(f"  v_add_f32 v{9+c}, v{FX+c}, v{FX+4+c}")
    for i in range(8, 64):
        a(f"  v_add_f32 v{9+(i&3)}, v{9+(i&3)}, v{FX+i}")
    a(f"  v_mov_b32 v13, 0")
    a(f"  v_mov_b32 v14, 0")
    for i in range(32):
        a(f"  v_dot2_f32_bf16 v{13+(i&1)}, v{XR+i}, v{GR+i}, v{13+(i&1)}")
    a("""
  v_add_f32 v9, v9, v10
  v_add_f32 v11, v11, v12
  v_add_f32 v9, v9, v11
  s_nop 2
  v_add_f32 v13, v13, v14
""")

    def red8(r):
        a(f"  s_nop 1")
        a(f"  v_add_f32_dpp v{r}, v{r}, v{r} quad_perm:[1,0,3,2] row_mask:0xf bank_mask:0xf")
        a(f"  s_nop 1")
        a(f"  v_add_f32_dpp v{r}, v{r}, v{r} quad_perm:[2,3,0,1] row_mask:0xf bank_mask:0xf")
        a(f"  s_nop 1")
        a(f"  v_add_f32_dpp v{r}, v{r}, v{r} row_half_mirror row_mask:0xf bank_mask:0xf")

    red8(9)
    red8(13)
    a(f"  v_mul_f32 v9, {f32bits(1.0/512):#x}, v9")
    for i in range(64):
        a(f"  v_sub_f32 v{FX+i}, v{FX+i}, v9")
    for c in range(4):
        a(f"  v_mul_f32 v{9+c}, v{FX+c}, v{FX+c}")
    for i in range(4, 64):
        a(f"  v_fmac_f32 v{9+(i&3)}, v{FX+i}, v{FX+i}")
    a("""
  v_add_f32 v9, v9, v10
  v_add_f32 v11, v11, v12
  v_add_f32 v9, v9, v11
""")
    red8(9)
    a(f"""
  v_mov_b32 v10, {f32bits(1e-5):#x}
  v_fmac_f32 v10, {f32bits(1.0/512):#x}, v9
  v_rsq_f32 v10, v10
  v_mul_f32 v13, {f32bits(-math.log2(math.e)):#x}, v13
  v_exp_f32 v13, v13
  s_nop 0
  v_add_f32 v13, 1.0, v13
  v_rcp_f32 v13, v13
  v_lshlrev_b32 v5, 2, v5
  v_add_u32 v5, {WS_G:#x}, v5
  v_cmp_eq_u32 vcc, 0, v4
  s_and_saveexec_b64 s[84:85], vcc
""")
    vm.issue("st", "  buffer_store_dword v13, v5, s[12:15], 0 offen sc1")
    a("  s_mov_b64 exec, -1")
    for i in range(64):
        a(f"  v_mul_f32 v{FX+i}, v{FX+i}, v10")
    for i in range(32):
        a(f"  v_cvt_pk_bf16_f32 v{XR+i}, v{FX+2*i}, v{FX+2*i+1}")
    a(f"""
  s_lshl_b32 s84, s3, 3
  v_add_u32 v3, s84, v3
  s_movk_i32 s85, 1088
  v_mul_lo_u32 v3, v3, s85
  v_add_u32 v3, v3, v6
  v_add_u32 v3, {HOFF}, v3
""")
    for i in range(8):
        a(f"  ds_write_b128 v3, v[{XR+4*i}:{XR+4*i+3}] offset:{i*128}")
    a(f"""
  v_and_b32 v3, 15, v2
  v_lshrrev_b32 v4, 2, v3
  v_lshrrev_b32 v5, 5, v2
  v_lshl_add_u32 v4, v5, 2, v4
  v_bfe_u32 v5, v2, 4, 1
  v_lshlrev_b32 v5, 5, v5
  v_and_b32 v3, 3, v3
  v_lshl_add_u32 v5, v3, 3, v5
  s_movk_i32 s85, 1088
  v_mul_lo_u32 v6, v4, s85
  v_add_u32 v6, v6, v5
  s_lshl_b32 s84, s3, 8
  s_add_u32 s84, s84, {HOFF}
  v_add_u32 v6, s84, v6
  s_lshl_b32 s83, s90, 11
  s_lshl_b32 s84, s3, 19
  s_add_u32 s84, s84, s83
  s_add_u32 s84, s84, {WS_H:#x}
  v_add_u32 v9, s84, v250
  s_waitcnt lgkmcnt(0)
""")
    lds_barrier(a, 24, 4, 251, 10)
    T = 16
    n = 0
    for db in range(4):
        for t in range(2):
            off = t * 17408 + db * 64
            a(f"  ds_read_b64_tr_b16 v[{T+4*n}:{T+4*n+1}], v6 offset:{off}")
            a(f"  ds_read_b64_tr_b16 v[{T+4*n+2}:{T+4*n+3}], v6 offset:{off+8*1088}")
            n += 1
    a("  s_waitcnt lgkmcnt(0)")
    lds_signal(a, 28, 251, 10)
    n = 0
    for db in range(4):
        for t2 in range(2):
            a(f"  s_mov_b32 s85, {db*131072}")
            vm.issue("st", f"  buffer_store_dwordx4 v[{T+4*n}:{T+4*n+3}], v9, s[12:15], s85 offen offset:{t2*1024} sc1")
            n += 1
    stamp(a, 3)
    vm.wait("tok")
    Lok = a.label("tokok")
    a(f"  v_readfirstlane_b32 s{TOK}, v144")
    a(f"  v_readfirstlane_b32 s{TOK+1}, v145")
    a(f"  s_cmp_lg_u32 s{TOK}, 0")
    a(f"  s_cbranch_scc1 {Lok}")
    keep = list(vm.ops)
    get_token(a, vm, 144, 252)
    vm.ops = keep
    a(f"{Lok}:")
    a(f"""
  s_lshl_b32 s83, s90, 2
  s_add_u32 s83, s83, s3
  s_lshl_b32 s83, s83, 6
  s_add_u32 s83, s83, {FL_LN:#x}
""")
    a("  s_mov_b32 s91, s83")
    publish(a, vm, "st", "s83", 144, 252)
    lds_signal(a, 32, 251, 10)
    lds_wait(a, 28, 4, 251, 10)


def awaves(a):
    vm = VM(a)
    S = 32
    MF, MD = 80, 96
    CM, CF, CD = 112, 128, 144
    KF = 160
    QF = 200
    VF = 208
    OA = 224
    NEG, GV, MX, MX2 = 240, 242, 244, 246
    CS = 248
    mask_pairs = [4, 6, 8, 10] + list(range(16, 40, 2))
    assert len(mask_pairs) == 16
    cscale = 0.25 * math.log2(math.e)
    a(f"""
L_attn:
  s_sub_u32 s3, s3, 4                ; aw
  s_setprio {os.environ.get("QPRIO", "2")}
  s_or_b32 s83, s2, s3
  s_cmp_lg_u32 s83, 0
  s_cbranch_scc1 L_a_notok
  s_memrealtime s[70:71]
  s_waitcnt lgkmcnt(0)
  s_or_b32 s70, s70, 1
  v_mov_b32 v4, s70
  v_mov_b32 v5, s71
  s_mov_b64 exec, 1
  buffer_store_dwordx2 v[4:5], v252, s[{S_DBG}:{S_DBG+3}], 0 offen sc1
  s_mov_b64 exec, -1
L_a_notok:
  s_cmp_lt_u32 s2, 192
  s_cbranch_scc0 L_a_noqkv
""")
    if "chainB" in EXP:
        lds_signal(a, 20, 251, 30)
        a("  s_endpgm")
    qkv(a)
    a("L_a_noqkv:")
    lds_signal(a, 20, 251, 30)
    if "nomall" not in EXP:
        srd(a, 76, P_W1, 2048 * 1376 * 2)
        srd(a, 84, P_W2, 1376 * 2048 * 2)
        srd(a, 88, P_WO, 512 * 512 * 2)
        a(f"""
  s_setprio 0
  s_sub_u32 s92, s2, 192
  s_lshl_b32 s92, s92, 2
  s_add_u32 s92, s92, s3
  s_mul_i32 s93, s92, 22016
  v_lshlrev_b32 v13, 7, v2
  s_lshl_b32 s94, s92, 11
""")
        lds_wait(a, int(os.environ.get("PFCNT", "32")), 4, 251, 30)
        for k in range(3 if "now1t" in EXP else 0):
            a(f"  s_add_u32 s95, s93, {k*8192}")
            a(f"  buffer_load_dword v{32+k}, v13, s[76:79], s95 offen")
        for k in range(3):
            a(f"  s_add_u32 s95, s93, {k*8192}")
            a(f"  buffer_load_dword v{36+k}, v13, s[84:87], s95 offen")
        a(f"  v_cmp_gt_u32 vcc, 16, v2")
        a(f"  s_and_saveexec_b64 s[92:93], vcc")
        a(f"  buffer_load_dword v40, v13, s[88:91], s94 offen")
        a(f"  s_mov_b64 exec, -1")
    a("L_a_p1done:")
    if "chainB" in EXP:
        a("  s_endpgm")
    a(f"""
  s_setprio 2
  s_lshl_b32 s70, s81, 2
  s_lshr_b32 s83, s82, 3
  s_add_u32 s70, s70, s83            ; head
  s_and_b32 s83, s82, 7
  s_lshl_b32 s71, s83, 3             ; qb0
  s_lshl_b32 s83, s3, 1
  s_add_u32 s72, s71, s83
  v_and_b32 v3, 31, v2
  v_lshrrev_b32 v4, 5, v2
  v_lshlrev_b32 v5, 5, v3
  v_lshl_add_u32 v5, v4, 4, v5
  s_lshl_b32 s83, s70, 16
  v_add_u32 v5, s83, v5
  v_and_b32 v6, 15, v2
  v_lshlrev_b32 v6, 4, v6
  v_lshl_add_u32 v6, v4, 8, v6
  v_add_u32 v9, {L_AV}, v6
  v_add_u32 v6, s83, v6
  v_add_u32 v6, {WS_V:#x}, v6
  v_lshlrev_b32 v7, 4, v2
  s_lshl_b32 s83, s70, 10
  s_add_u32 s83, s83, {WS_O:#x}
  v_add_u32 v7, s83, v7
  v_lshlrev_b32 v8, 2, v3
  v_add_u32 v8, {WS_G:#x}, v8
  v_mov_b32 v{NEG}, {f32bits(-1e30):#x}
  v_mov_b32 v{CS}, {f32bits(cscale):#x}
  v_mov_b32 v{CS+1}, {f32bits(cscale):#x}
  v_lshlrev_b32 v10, 2, v4
""")
    for r in range(16):
        a(f"  v_add_u32 v11, {(r&3) + 8*(r>>2)}, v10")
        a(f"  v_cmp_le_u32 vcc, v11, v3")
        a(f"  s_nop 1")
        a(f"  v_cndmask_b32 v{MF+r}, 0, v{NEG}, vcc")
        a(f"  v_cndmask_b32 v{MD+r}, v{NEG}, v252, vcc")
    for i in range(16):
        a(f"  v_mov_b32 v{VF+i}, 0x3f803f80")
    a(f"  v_cmp_gt_u32 s[74:75], 16, v3")
    a(f"""
  s_lshr_b32 s84, s70, 2
  s_lshr_b32 s85, s72, 1
  s_lshl_b32 s86, s84, 5
  s_add_u32 s86, s86, s85
  s_lshl_b32 s86, s86, 6
  s_add_u32 s86, s86, {FL_QKV:#x}    ; Q flag
  v_mov_b32 v12, s86
""")
    lane = 1
    for t in range(5):
        a(f"  s_add_u32 s86, s85, {t}")
        a(f"  s_max_u32 s86, s86, 4")
        a(f"  s_sub_u32 s86, s86, 4")
        a(f"  s_add_u32 s87, s84, 8")
        a(f"  s_lshl_b32 s87, s87, 5")
        a(f"  s_add_u32 s86, s86, s87")
        a(f"  s_lshl_b32 s86, s86, 6")
        a(f"  s_add_u32 s86, s86, {FL_QKV:#x}")
        a(f"  v_writelane_b32 v12, s86, {lane}")
        lane += 1
    for t in range(2):
        a(f"  s_lshr_b32 s86, s71, 1")
        a(f"  s_lshl_b32 s87, s3, 1")
        a(f"  s_add_u32 s86, s86, s87")
        a(f"  s_add_u32 s86, s86, {t}")
        a(f"  s_max_u32 s86, s86, 4")
        a(f"  s_sub_u32 s86, s86, 4")
        a(f"  s_add_u32 s87, s84, 16")
        a(f"  s_lshl_b32 s87, s87, 5")
        a(f"  s_add_u32 s86, s86, s87")
        a(f"  s_lshl_b32 s86, s86, 6")
        a(f"  s_add_u32 s86, s86, {FL_QKV:#x}")
        a(f"  v_writelane_b32 v12, s86, {lane}")
        lane += 1
    for t in range(8):
        a(f"  s_lshl_b32 s86, s72, 2")
        a(f"  s_add_u32 s86, s86, {t}")
        a(f"  s_lshl_b32 s86, s86, 6")
        a(f"  s_add_u32 s86, s86, {FL_LN:#x}")
        a(f"  v_writelane_b32 v12, s86, {lane}")
        lane += 1
    stamp(a, 1)
    get_token(a, vm, 14, 252)
    flag_load(vm, "fl", 14, 12)
    flag_check(a, vm, "fl", 14, 12)
    vm.drained()
    stamp(a, 2)
    a(f"  s_mov_b64 exec, s[74:75]")
    for jj in range(4):
        a(f"  s_lshl_b32 s83, s3, 2")
        a(f"  s_add_u32 s83, s83, s71")
        a(f"  s_add_u32 s83, s83, {jj}")
        a(f"  s_max_u32 s83, s83, 8")
        a(f"  s_sub_u32 s83, s83, 8")
        a(f"  s_lshl_b32 s83, s83, 10")
        vm.issue("v", f"  buffer_load_dwordx4 v[{S+8*jj}:{S+8*jj+3}], v6, s[12:15], s83 offen sc1")
        vm.issue("v", f"  buffer_load_dwordx4 v[{S+8*jj+4}:{S+8*jj+7}], v6, s[12:15], s83 offen offset:512 sc1")
    a(f"  s_mov_b64 exec, -1")
    a(f"  s_lshl_b32 s83, s72, 10")
    vm.issue("q", f"  buffer_load_dwordx4 v[{QF}:{QF+3}], v5, s[12:15], s83 offen sc1")
    vm.issue("q", f"  buffer_load_dwordx4 v[{QF+4}:{QF+7}], v5, s[12:15], s83 offen offset:1024 sc1")
    for i in range(10):
        a(f"  s_add_u32 s83, s72, {i}")
        a(f"  s_max_u32 s83, s83, 8")
        a(f"  s_sub_u32 s83, s83, 8")
        a(f"  s_lshl_b32 s83, s83, 10")
        a(f"  s_add_u32 s83, s83, {WS_K:#x}")
        vm.issue(("k", i), f"  buffer_load_dwordx4 v[{KF+4*i}:{KF+4*i+3}], v5, s[12:15], s83 offen sc1")
    a(f"  s_lshl_b32 s83, s72, 7")
    vm.issue("g", f"  buffer_load_dword v{GV}, v8, s[12:15], s83 offen sc1")
    vm.issue("g", f"  buffer_load_dword v{GV+1}, v8, s[12:15], s83 offen offset:128 sc1")
    vm.wait("v")
    a(f"  s_lshl_b32 s83, s3, 12")
    a(f"  v_add_u32 v11, s83, v9")
    a(f"  s_mov_b64 exec, s[74:75]")
    for jj in range(4):
        a(f"  ds_write_b128 v11, v[{S+8*jj}:{S+8*jj+3}] offset:{jj*1024}")
        a(f"  ds_write_b128 v11, v[{S+8*jj+4}:{S+8*jj+7}] offset:{jj*1024+512}")
    a(f"  s_mov_b64 exec, -1")
    a(f"  s_waitcnt lgkmcnt(0)")
    lds_barrier(a, 8, 4, 251, 14)
    vm.wait("g")
    if "hiprio" not in EXP:
        a("  s_setprio 0")
    stamp(a, 3)
    cstamp(a, 14)
    a(f"  s_lshl_b32 s83, s3, 11")
    a(f"  v_add_u32 v9, s83, v9")

    def vread(i):
        r = VF + 8 * (i & 1)
        a(f"  s_mov_b64 exec, s[74:75]")
        a(f"  ds_read_b128 v[{r}:{r+3}], v9 offset:{i*1024}")
        a(f"  ds_read_b128 v[{r+4}:{r+7}], v9 offset:{i*1024+512}")
        a(f"  s_mov_b64 exec, -1")

    def qk(i, buf, cmode, slow):
        d = S + 16 * buf
        if i == 0:
            c = MF if cmode == 0 else CF
        elif i == 8:
            c = MD if cmode == 0 else CD
        else:
            c = None if cmode == 0 else CM
        cs = "0" if c is None else f"v[{c}:{c+15}]"
        ins = f"  {MFMA} v[{d}:{d+15}], v[{KF+4*i}:{KF+4*i+3}], v[{QF}:{QF+3}], {cs}"
        if slow and i < 8:
            L1, L2 = a.label("inv"), a.label("invd")
            a(f"  s_cmp_gt_u32 s76, {i}")
            a(f"  s_cbranch_scc1 {L1}")
            a(ins)
            a(f"  s_branch {L2}")
            a(f"{L1}:")
            a("  s_nop 7")
            a("  s_nop 7")
            for r in range(16):
                a(f"  v_mov_b32 v{d+r}, v{NEG}")
            a(f"{L2}:")
        else:
            a(ins)

    def unit_core(slow):
        qk(0, 0, 0, slow)
        qk(1, 1, 0, slow)
        vread(0)
        for i in range(0, 16, 2):
            a(f"  v_pk_mov_b32 v[{OA+i}:{OA+i+1}], v[252:253], v[252:253] op_sel:[0,0]")
        a(f"  v_mov_b32 v{MX}, v{NEG}")
        a(f"  v_mov_b32 v{MX2}, v{NEG}")
        for i in range(9):
            if i + 2 < 9:
                qk(i + 2, (i + 2) % 3, 0, slow)
            else:
                a("  s_nop 3")
            b = S + 16 * (i % 3)
            for r in range(0, 16, 2):
                m = MX if (r & 2) == 0 else MX2
                a(f"  v_max3_f32 v{m}, v{m}, v{b+r}, v{b+r+1}")
        a(f"""
  v_max_f32 v{MX}, v{MX}, v{MX2}
  v_mov_b32 v{MX2}, v{MX}
  s_nop 1
  v_permlane32_swap_b32 v{MX}, v{MX2}
  s_nop 1
  v_max_f32 v{MX}, v{MX}, v{MX2}
  v_sub_f32 v{MX}, 0, v{MX}
  v_mov_b32 v{MX+1}, v{MX}
""")
        for r in range(0, 16, 2):
            a(f"  v_pk_mov_b32 v[{CM+r}:{CM+r+1}], v[{MX}:{MX+1}], v[{MX}:{MX+1}] op_sel:[0,1]")
        for r in range(0, 16, 2):
            a(f"  v_pk_add_f32 v[{CF+r}:{CF+r+1}], v[{MF+r}:{MF+r+1}], v[{MX}:{MX+1}]")
        a("  s_nop 1")
        qk(0, 0, 1, slow)
        qk(1, 1, 1, slow)
        for r in range(0, 16, 2):
            a(f"  v_pk_add_f32 v[{CD+r}:{CD+r+1}], v[{MD+r}:{MD+r+1}], v[{MX}:{MX+1}]")
        a("  s_nop 3")
        def pv(i, half):
            b = S + 16 * (i % 3)
            r = VF + 8 * (i & 1)
            a(f"  {MFMA} v[{OA}:{OA+15}], v[{r+4*half}:{r+4*half+3}], v[{b+4*half}:{b+4*half+3}], v[{OA}:{OA+15}]")

        for i in range(9):
            b = S + 16 * (i % 3)
            for r in range(16):
                a(f"  v_exp_f32 v{b+r}, v{b+r}")
                if i > 0 and r == 1:
                    a(f"  s_waitcnt lgkmcnt(0)")
                    pv(i - 1, 0)
                if i > 0 and r == 6:
                    pv(i - 1, 1)
                    vread(i)
                if r == 11 and i + 2 < 9 and i > 0:
                    qk(i + 2, (i + 2) % 3, 1, slow)
                if r == 3 and i == 0:
                    qk(2, 2, 1, slow)
            a("  s_nop 0")
            for q in range(8):
                a(f"  v_cvt_pk_bf16_f32 v{b+q}, v{b+2*q}, v{b+2*q+1}")
        a(f"  s_waitcnt lgkmcnt(0)")
        pv(8, 0)
        pv(8, 1)

    a(f"""
  s_mov_b32 s73, s72                 ; qb
  s_mov_b32 s77, 0
L_a_unit:
  s_sub_u32 s76, 8, s73
  s_cmp_gt_u32 s73, 8
  s_cselect_b32 s76, 0, s76
  s_cmp_lg_u32 s76, 0
  s_cbranch_scc1 L_a_slow
""")
    unit_core(False)
    a("L_a_join:")
    for i in range(0, 36, 2):
        a(f"  v_pk_mov_b32 v[{KF+i}:{KF+i+1}], v[{KF+4+i}:{KF+5+i}], v[{KF+4+i}:{KF+5+i}] op_sel:[0,1]")
    for i in range(0, 4, 2):
        a(f"  v_pk_mov_b32 v[{QF+i}:{QF+i+1}], v[{QF+4+i}:{QF+5+i}], v[{QF+4+i}:{QF+5+i}] op_sel:[0,1]")
    a(f"""
  v_add_u32 v9, 0x400, v9
  s_lshl_b32 s83, s73, 15
  v_rcp_f32 v10, v{OA+8}
  s_nop 0
  v_mul_f32 v10, v10, v{GV}
""")
    for r in range(8):
        a(f"  v_mul_f32 v{OA+r}, v{OA+r}, v10")
    a(f"  s_cmp_eq_u32 s77, 0")
    a(f"  s_cbranch_scc0 L_a_unit2")
    for q in range(4):
        a(f"  v_cvt_pk_bf16_f32 v{12+q}, v{OA+2*q}, v{OA+2*q+1}")
    vm.issue("st", f"  buffer_store_dwordx4 v[12:15], v7, s[12:15], s83 offen sc1")
    a(f"  v_mov_b32 v{GV}, v{GV+1}")
    stamp(a, 4)
    a(f"""
  s_add_u32 s73, s73, 1
  s_mov_b32 s77, 1
  s_branch L_a_unit
L_a_unit2:
""")
    for q in range(4):
        a(f"  v_cvt_pk_bf16_f32 v{QF+q}, v{OA+2*q}, v{OA+2*q+1}")
    vm.issue("st", f"  buffer_store_dwordx4 v[{QF}:{QF+3}], v7, s[12:15], s83 offen sc1")
    stamp(a, 5)
    cstamp(a, 15)
    a("  s_setprio 2")
    a(f"""
  s_lshl_b32 s83, s70, 5
  s_lshr_b32 s84, s72, 1
  s_add_u32 s83, s83, s84
  s_lshl_b32 s83, s83, 6
  s_add_u32 s83, s83, {FL_AT:#x}
""")
    publish(a, vm, "st", "s83", 10, 252)
    stamp(a, 11)
    if STAMPS:
        a("  s_waitcnt vmcnt(0)")
    stamp(a, 12)
    stamp_flush(a)
    a("  s_endpgm")
    a("L_a_slow:")
    unit_core(True)
    a("  s_branch L_a_join")


def main():
    ref = open(f"cdna_kernels/{NAME}.s.ref").read().split("\n")
    hdr = [l for l in ref if l.startswith(";") and "@launch" not in l]
    a = Asm()
    for l in hdr:
        a(l)
    a(f"; @launch grid=(256,1,1) block=(512,1,1) lds={LDS_BYTES}")
    a('.amdgcn_target "amdgcn-amd-amdhsa--gfx950"')
    gen(a)
    a(f"""
.section .rodata,"a"
.p2align 6
.amdhsa_kernel {KN}
  .amdhsa_next_free_vgpr 256
  .amdhsa_next_free_sgpr 102
  .amdhsa_accum_offset 256
  .amdhsa_group_segment_fixed_size 0
  .amdhsa_kernarg_size 96
  .amdhsa_user_sgpr_count 2
  .amdhsa_user_sgpr_kernarg_segment_ptr 1
  .amdhsa_system_sgpr_workgroup_id_x 1
.end_amdhsa_kernel
""")
    out = sys.argv[1] if len(sys.argv) > 1 else f"cdna_kernels/{NAME}.s"
    txt = a.text()
    if "nosc1ld" in EXP:
        txt = "\n".join(l.replace(" sc1", "") if ("buffer_load_dwordx4" in l) else l for l in txt.split("\n"))
    open(out, "w").write(txt)


if __name__ == "__main__":
    main()
```

```python
import math
import os
import struct
import sys

NAME = "gated_mix__sliding_block__mixer_token_mlp__prompt"
KN = NAME + "_kernel"

WS_Q = 0x000000
WS_K = 0x200000
WS_V = 0x400000
WS_H = 0x600000
WS_G = 0x800000
WS_O = 0x900000
WS_U = 0xB00000
WS_FL = 0xD00000
FL_LN = WS_FL
FL_QKV = WS_FL + 256 * 64
FL_U = WS_FL + 1024 * 64
FL_AT = WS_FL + 1792 * 64
WS_DBG = 0xE00000
WS_END = 0x1000000

STAMPS = os.environ.get("STAMPS", "0") == "1"
MFMA = "v_mfma_f32_32x32x16_bf16"
SPIN_MAX = 200000
QSCALE = 0.25 * math.log2(math.e)
SLEEP = int(os.environ.get("SLEEP", "1"))
EXP = set(os.environ.get("EXP", "").split(","))

L_R0 = 0
L_QS = 40960
L_YB0 = L_QS + 65536
L_AV = L_QS + 98304
L_CNT = L_AV + 16384
LDS_BYTES = L_CNT + 256


def f32bits(x):
    return struct.unpack("<I", struct.pack("<f", x))[0]


class Asm:
    def __init__(self):
        self.l = []
        self.n = 0

    def __call__(self, s):
        for line in s.strip("\n").split("\n"):
            self.l.append(line)

    def label(self, base):
        self.n += 1
        return f"L_{base}_{self.n}"

    def text(self):
        return "\n".join(self.l) + "\n"


class VM:
    def __init__(self, a):
        self.a = a
        self.ops = []

    def issue(self, tag, text):
        self.a(text)
        self.ops.append(tag)

    def wait(self, tags, extra=""):
        if not isinstance(tags, (list, tuple, set)):
            tags = [tags]
        idx = [i for i, t in enumerate(self.ops) if t in tags]
        if not idx:
            if extra:
                self.a(f"  s_waitcnt {extra}")
            return
        last = max(idx)
        n = len(self.ops) - 1 - last
        self.a(f"  s_waitcnt vmcnt({min(n, 63)}) {extra}".rstrip())
        self.ops = self.ops[last + 1:]

    def drained(self):
        self.ops = []


def srd(a, dst, ptr, nbytes, off=0):
    if off:
        a(f"  s_add_u32 s{dst}, s{ptr}, {off:#x}")
        a(f"  s_addc_u32 s{dst+1}, s{ptr+1}, 0")
        a(f"  s_and_b32 s{dst+1}, s{dst+1}, 0xffff")
    else:
        a(f"  s_mov_b32 s{dst}, s{ptr}")
        a(f"  s_and_b32 s{dst+1}, s{ptr+1}, 0xffff")
    a(f"  s_mov_b32 s{dst+2}, {nbytes:#x}")
    a(f"  s_mov_b32 s{dst+3}, 0x00020000")


def stamp(a, k):
    if not STAMPS:
        return
    a(f"  s_memrealtime s[98:99]")
    a(f"  s_waitcnt lgkmcnt(0)")
    a(f"  v_writelane_b32 v255, s98, {k}")


def cstamp(a, k):
    if not STAMPS:
        return
    a(f"  s_memtime s[98:99]")
    a(f"  s_waitcnt lgkmcnt(0)")
    a(f"  v_writelane_b32 v255, s98, {k}")


def stamp_flush(a):
    if not STAMPS:
        return
    a(f"  s_lshl_b32 s96, s2, 9")
    a(f"  s_add_u32 s96, s96, {WS_DBG:#x}")
    a(f"  v_lshrrev_b32 v254, 6, v0")
    a(f"  v_lshlrev_b32 v254, 6, v254")
    a(f"  v_and_b32 v253, 63, v0")
    a(f"  v_lshl_add_u32 v254, v253, 2, v254")
    a(f"  v_cmp_gt_u32 vcc, 16, v253")
    a(f"  s_and_saveexec_b64 s[100:101], vcc")
    a(f"  buffer_store_dword v255, v254, s[12:15], s96 offen")
    a(f"  s_mov_b64 exec, s[100:101]")


P_X, P_WQKV, P_WO, P_BX, P_W1, P_B1, P_W2, P_B2, P_GATE, P_OUT, P_DBG, P_WS = [40 + 2 * i for i in range(12)]
S_WS = 12
S_DBG = 64
TOK = 68


def get_token(a, vm, vt, vz):
    L = a.label("tok")
    Ld = a.label("tokd")
    a(f"  s_mov_b32 s97, 0")
    a(f"{L}:")
    a(f"  buffer_load_dwordx2 v[{vt}:{vt+1}], v{vz}, s[{S_DBG}:{S_DBG+3}], 0 offen sc1")
    a(f"  s_waitcnt vmcnt(0)")
    a(f"  v_readfirstlane_b32 s{TOK}, v{vt}")
    a(f"  v_readfirstlane_b32 s{TOK+1}, v{vt+1}")
    a(f"  s_add_u32 s97, s97, 1")
    a(f"  s_cmp_lg_u32 s{TOK}, 0")
    a(f"  s_cbranch_scc1 {Ld}")
    a(f"  s_cmp_gt_u32 s97, {SPIN_MAX}")
    a(f"  s_cbranch_scc1 {Ld}")
    a(f"  s_sleep 1")
    a(f"  s_branch {L}")
    a(f"{Ld}:")
    vm.drained()


def flag_load(vm, tag, vt, vaddr):
    vm.issue(tag, f"  buffer_load_dwordx2 v[{vt}:{vt+1}], v{vaddr}, s[{S_WS}:{S_WS+3}], 0 offen sc1")


def publish_pending(a, vm, vt):
    a(f"  v_mov_b32 v{vt}, s{TOK}")
    a(f"  v_mov_b32 v{vt+1}, s{TOK+1}")
    a(f"  s_mov_b64 exec, 1")
    vm.issue("flagst", f"  buffer_store_dwordx2 v[{vt}:{vt+1}], v252, s[{S_WS}:{S_WS+3}], s91 offen sc1")
    a(f"  s_mov_b64 exec, -1")


def flag_check(a, vm, tag, vt, vaddr, pend=None):
    vm.wait(tag)
    if pend is not None:
        publish_pending(a, vm, pend)
    if "isoU" in EXP or "isoY" in EXP:
        return
    L = a.label("fl")
    L1 = a.label("fl1")
    L2 = a.label("fl2")
    Ld = a.label("fld")
    a(f"  s_mov_b32 s97, 0")
    a(f"  v_cmp_eq_u64 vcc, s[{TOK}:{TOK+1}], v[{vt}:{vt+1}]")
    a(f"  s_cmp_eq_u64 vcc, exec")
    a(f"  s_cbranch_scc1 {Ld}")
    a(f"  s_andn2_b64 s[94:95], exec, vcc")
    a(f"  s_ff1_i32_b64 s96, s[94:95]")
    a(f"  s_lshl_b64 s[94:95], 1, s96")
    a(f"  s_mov_b64 exec, s[94:95]")
    a(f"{L1}:")
    a(f"  s_sleep {SLEEP}")
    a(f"  buffer_load_dwordx2 v[{vt}:{vt+1}], v{vaddr}, s[{S_WS}:{S_WS+3}], 0 offen sc1")
    a(f"  s_add_u32 s97, s97, 1")
    a(f"  s_waitcnt vmcnt(0)")
    a(f"  v_cmp_eq_u64 vcc, s[{TOK}:{TOK+1}], v[{vt}:{vt+1}]")
    a(f"  s_cmp_eq_u64 vcc, exec")
    a(f"  s_cbranch_scc1 {L2}")
    a(f"  s_cmp_gt_u32 s97, {SPIN_MAX}")
    a(f"  s_cbranch_scc0 {L1}")
    a(f"{L2}:")
    a(f"  s_mov_b64 exec, -1")
    a(f"{L}:")
    a(f"  v_cmp_eq_u64 vcc, s[{TOK}:{TOK+1}], v[{vt}:{vt+1}]")
    a(f"  s_cmp_eq_u64 vcc, exec")
    a(f"  s_cbranch_scc1 {Ld}")
    a(f"  s_add_u32 s97, s97, 1")
    a(f"  s_cmp_gt_u32 s97, {SPIN_MAX}")
    a(f"  s_cbranch_scc1 {Ld}")
    a(f"  s_andn2_b64 exec, exec, vcc")
    a(f"  buffer_load_dwordx2 v[{vt}:{vt+1}], v{vaddr}, s[{S_WS}:{S_WS+3}], 0 offen sc1")
    a(f"  s_mov_b64 exec, -1")
    a(f"  s_waitcnt vmcnt(0)")
    a(f"  s_branch {L}")
    a(f"{Ld}:")


def publish(a, vm, tags, s_off, vt, vz):
    a(f"  v_mov_b32 v{vt}, s{TOK}")
    a(f"  v_mov_b32 v{vt+1}, s{TOK+1}")
    vm.wait(tags)
    a(f"  s_mov_b64 exec, 1")
    vm.issue("flagst", f"  buffer_store_dwordx2 v[{vt}:{vt+1}], v{vz}, s[{S_WS}:{S_WS+3}], {s_off} offen sc1")
    a(f"  s_mov_b64 exec, -1")


def lds_barrier(a, cnt_off, target, vaddr, vt):
    L = a.label("lb")
    Ld = a.label("lbd")
    a(f"  v_mov_b32 v{vt}, 1")
    a(f"  s_mov_b64 exec, 1")
    a(f"  ds_add_u32 v{vaddr}, v{vt} offset:{cnt_off}")
    a(f"  s_mov_b64 exec, -1")
    a(f"  s_mov_b32 s97, 0")
    a(f"{L}:")
    a(f"  ds_read_b32 v{vt+1}, v{vaddr} offset:{cnt_off}")
    a(f"  s_waitcnt lgkmcnt(0)")
    a(f"  v_readfirstlane_b32 s96, v{vt+1}")
    a(f"  s_add_u32 s97, s97, 1")
    a(f"  s_cmp_ge_u32 s96, {target}")
    a(f"  s_cbranch_scc1 {Ld}")
    a(f"  s_cmp_gt_u32 s97, {SPIN_MAX*4}")
    a(f"  s_cbranch_scc1 {Ld}")
    a(f"  s_branch {L}")
    a(f"{Ld}:")


def lds_wait(a, cnt_off, target, vaddr, vt):
    L = a.label("lw")
    Ld = a.label("lwd")
    a(f"  s_mov_b32 s97, 0")
    a(f"{L}:")
    a(f"  ds_read_b32 v{vt+1}, v{vaddr} offset:{cnt_off}")
    a(f"  s_waitcnt lgkmcnt(0)")
    a(f"  v_readfirstlane_b32 s96, v{vt+1}")
    a(f"  s_add_u32 s97, s97, 1")
    a(f"  s_cmp_ge_u32 s96, {target}")
    a(f"  s_cbranch_scc1 {Ld}")
    a(f"  s_cmp_gt_u32 s97, {SPIN_MAX*4}")
    a(f"  s_cbranch_scc1 {Ld}")
    a(f"  s_branch {L}")
    a(f"{Ld}:")


def lds_signal(a, cnt_off, vaddr, vt):
    a(f"  v_mov_b32 v{vt}, 1")
    a(f"  s_mov_b64 exec, 1")
    a(f"  ds_add_u32 v{vaddr}, v{vt} offset:{cnt_off}")
    a(f"  s_mov_b64 exec, -1")


def cap(a, fn, *args):
    saved = a.l
    a.l = []
    fn(*args)
    out = a.l
    a.l = saved
    return out


def groups(lines):
    out, cur = [], []
    for l in lines:
        cur.append(l)
        if "buffer_load" in l:
            out.append("\n".join(cur))
            cur = []
    if cur:
        if out:
            out[-1] += "\n" + "\n".join(cur)
        else:
            out.append("\n".join(cur))
    return out


def weave(a, mf, fill):
    per = (len(fill) + len(mf) - 1) // len(mf) if fill else 0
    for i, m in enumerate(mf):
        a(m)
        for x in fill[i * per:(i + 1) * per]:
            a(x)


def gen(a):
    a(f"""
.text
.globl {KN}
.p2align 8
.type {KN},@function
{KN}:
  s_cmp_ge_u32 s2, 256
  s_cbranch_scc1 L_end
  s_load_dwordx16 s[40:55], s[0:1], 0
  s_load_dwordx8 s[56:63], s[0:1], 64
  v_lshrrev_b32 v1, 6, v0
  v_and_b32 v2, 63, v0
  v_mov_b32 v252, 0
""")
    if "nocodepf" not in EXP:
        a(f"""
  s_getpc_b64 s[84:85]
L_pc0:
  s_and_b32 s84, s84, 0xffffff00
  s_and_b32 s85, s85, 0xffff
  s_mov_b32 s86, L_end - {KN}
  s_mov_b32 s87, 0x00020000
  v_lshlrev_b32 v3, 7, v0
  buffer_load_dword v253, v3, s[84:87], 0 offen
""")
    a(f"""
  v_mov_b32 v251, {L_CNT}
  v_readfirstlane_b32 s3, v1
  v_lshlrev_b32 v4, 2, v2
  v_add_u32 v4, {L_CNT}, v4
  ds_write_b32 v4, v252
  s_and_b32 s81, s2, 7               ; xcd
  s_lshr_b32 s82, s2, 3              ; idx
  s_waitcnt lgkmcnt(0)
  s_barrier
""")
    srd(a, S_WS, P_WS, WS_END)
    srd(a, S_DBG, P_DBG, 256)
    stamp(a, 0)
    a("""
  s_cmp_ge_u32 s3, 4
  s_cbranch_scc1 L_attn
""")
    gwaves(a)
    awaves(a)
    a("""
L_end:
  s_endpgm
""")


DR = 16
LF = 80
ACC = 96
NY, NO, NU = 22, 8, 32
NYS = 17


def yslot(k):
    if k < 4:
        return 0, k * 2048
    if k < 12:
        return 1, (k - 4) * 2048
    return 2, (k - 12) * 2048


REG_M0 = {0: "s76", 1: "s77", 2: "s74"}
REG_TR = {0: 232, 1: 234, 2: 246}


def trreads(a, reg, off, buf):
    f = LF + 8 * buf
    base = REG_TR[reg]
    for b in range(2):
        a(f"  ds_read_b64_tr_b16 v[{f+4*b}:{f+4*b+1}], v{base+b} offset:{off}")
        a(f"  ds_read_b64_tr_b16 v[{f+4*b+2}:{f+4*b+3}], v{base+b} offset:{off+1024}")


def dma_y(a, vm, i):
    reg, off = yslot(i % NYS)
    if i < NY:
        a(f"  s_lshl_b32 s87, s46, 16")
        v0, sd = 242, 20
        adv = ["  s_add_u32 s46, s46, 1", "  s_cmp_eq_u32 s46, 22\n  s_cselect_b32 s46, 0, s46"]
    else:
        a(f"  s_lshl_b32 s87, s44, 14")
        v0, sd = 244, 24
        adv = ["  s_add_u32 s44, s44, 1", "  s_and_b32 s44, s44, 7"]
    a(f"  s_add_u32 m0, {REG_M0[reg]}, {off}")
    a(adv[0])
    vm.issue(("yd", i), f"  buffer_load_dwordx4 v{v0}, s[{sd}:{sd+3}], s87 offen lds")
    a(f"  s_add_u32 m0, {REG_M0[reg]}, {off+1024}")
    a(adv[1])
    vm.issue(("yd", i), f"  buffer_load_dwordx4 v{v0+1}, s[{sd}:{sd+3}], s87 offen lds")


def dma_u(a, vm, i):
    off = (i % 5) * 2048
    a(f"  s_mul_i32 s87, s42, {16*2752}")
    a(f"  s_add_u32 m0, s74, {off}")
    a(f"  s_add_u32 s42, s42, 1")
    vm.issue(("uw", i), f"  buffer_load_dwordx4 v240, s[16:19], s87 offen lds")
    a(f"  s_add_u32 m0, s74, {off+1024}")
    a(f"  s_and_b32 s42, s42, 31")
    vm.issue(("uw", i), f"  buffer_load_dwordx4 v241, s[16:19], s87 offen lds")


def gwaves(a):
    vm = VM(a)
    srd(a, 4, P_X, 2048 * 512 * 2)
    srd(a, 16, P_W1, 2048 * 1376 * 2)
    srd(a, 20, P_W2, 1376 * 2048 * 2)
    srd(a, 24, P_WO, 512 * 512 * 2)
    srd(a, 28, P_WS, 86 * 16 * 1024, WS_U)
    srd(a, 32, P_OUT, 2048 * 512 * 2)
    a(f"""
  s_and_b32 s83, s81, 3
  s_mul_i32 s83, s83, 22
  s_add_u32 s83, s83, s82
  s_lshr_b32 s70, s83, 2             ; U ft
  s_lshr_b32 s84, s81, 2
  s_lshl_b32 s84, s84, 2
  s_and_b32 s83, s83, 3
  s_add_u32 s71, s84, s83            ; U dt
  s_lshl_b32 s72, s81, 2
  s_and_b32 s83, s82, 3
  s_add_u32 s72, s72, s83            ; Y st
  s_lshr_b32 s73, s82, 2             ; Y dt
  s_mul_i32 s74, s3, 10240
  s_lshl_b32 s76, s3, 13
  s_add_u32 s76, s76, {L_YB0}
  s_lshl_b32 s77, s3, 14
  s_add_u32 s77, s77, {L_QS}
  v_lshlrev_b32 v250, 4, v2
  v_lshrrev_b32 v7, 3, v2
  v_and_b32 v8, 7, v2
  v_bfe_u32 v9, v7, 1, 1
  v_lshlrev_b32 v9, 2, v9
  v_xor_b32 v8, v8, v9
  v_lshlrev_b32 v8, 4, v8
  s_movk_i32 s83, 2752
  v_mul_lo_u32 v9, v7, s83
  v_add_u32 v9, v9, v8
  s_mul_i32 s83, s3, {512*2752}
  s_lshl_b32 s84, s70, 7
  s_add_u32 s83, s83, s84
  v_add_u32 v240, s83, v9
  v_add_u32 v241, {8*2752}, v240
  s_mul_i32 s42, s82, 3
  s_lshr_b32 s42, s42, 1
  s_and_b32 s42, s42, {0 if "norotU" in EXP else 31}
  s_mov_b32 s43, s42
  s_cmp_lt_u32 s2, 176
  s_cbranch_scc0 L_g_nopf
""")
    for i in range(5):
        dma_u(a, vm, i)
    if "now1t" not in EXP:
        a(f"""
  s_and_b32 s83, s81, 3
  s_mul_i32 s83, s83, 22
  s_lshr_b32 s83, s83, 2
  s_lshl_b32 s83, s83, 7
  s_lshl_b32 s84, s82, 2
  s_add_u32 s84, s84, s3
  s_mul_i32 s84, s84, 24
  v_add_u32 v13, s84, v7
  s_movk_i32 s85, 2752
  v_mul_lo_u32 v13, v13, s85
  v_add_u32 v13, s83, v13
  v_and_b32 v13, 0xffffff80, v13
  v_and_b32 v14, 7, v2
  v_lshl_add_u32 v13, v14, 7, v13
""")
        for k in range(3):
            a(f"  s_mov_b32 s85, {k*8*2752}")
            a(f"  buffer_load_dword v{208+k}, v13, s[16:19], s85 offen{' nt' if 'w1nt' in EXP else ''}")
    a(f"""
L_g_nopf:
  s_mul_i32 s83, s3, {22*16*4096}
  s_lshl_b32 s84, s72, 7
  s_add_u32 s83, s83, s84
  v_lshl_add_u32 v9, v7, 12, v8
  v_add_u32 v242, s83, v9
  v_add_u32 v243, 0x8000, v242
  s_lshl_b32 s83, s3, 17
  s_lshl_b32 s84, s73, 7
  s_add_u32 s83, s83, s84
  v_lshl_add_u32 v9, v7, 10, v8
  v_add_u32 v244, s83, v9
  v_add_u32 v245, 0x2000, v244
  v_and_b32 v7, 15, v2
  v_lshrrev_b32 v8, 2, v7
  v_lshrrev_b32 v9, 5, v2
  v_lshl_add_u32 v9, v9, 2, v8
  v_lshlrev_b32 v10, 7, v9
  v_bfe_u32 v9, v9, 1, 1
  v_lshl_add_u32 v10, v9, 6, v10
  v_bfe_u32 v9, v2, 4, 1
  v_lshl_add_u32 v10, v9, 5, v10
  v_and_b32 v7, 3, v7
  v_lshl_add_u32 v10, v7, 3, v10
  v_xor_b32 v11, 64, v10
  v_add_u32 v246, s74, v10
  v_add_u32 v247, s74, v11
  v_add_u32 v232, s76, v10
  v_add_u32 v233, s76, v11
  v_add_u32 v234, s77, v10
  v_add_u32 v235, s77, v11
  s_and_b32 s44, s82, 3
  s_lshl_b32 s44, s44, 1
  s_lshr_b32 s45, s82, 2
  s_add_u32 s44, s44, s45
  s_and_b32 s44, s44, {0 if "norotY" in EXP else 7}
  s_mov_b32 s45, s44
  s_mul_i32 s46, s82, {0 if "norotY" in EXP else 22}
  s_lshr_b32 s46, s46, 5
  s_mov_b32 s47, s46
  s_cmp_ge_u32 s2, 192
  s_cbranch_scc1 L_ln
""")
    get_token(a, vm, 4, 252)
    stamp(a, 4)
    a("""
  s_cmp_lt_u32 s2, 176
  s_cbranch_scc0 L_nou
""")
    uphase(a, vm)
    a("  s_branch L_ystart")
    ln(a, vm)
    stamp(a, 4)
    a("L_nou:")
    vm.ops = []
    a(f"""
  s_lshl_b32 s91, s2, 2
  s_add_u32 s91, s91, s3
  s_lshl_b32 s91, s91, 6
  s_add_u32 s91, s91, {WS_FL + 3000*64:#x}
  s_sub_u32 s83, s82, 22
  s_lshl_b32 s83, s83, 2
  s_add_u32 s83, s83, s3
  v_lshrrev_b32 v3, 2, v2
  v_and_b32 v4, 3, v2
  s_lshl_b32 s84, s83, 4
  v_add_u32 v3, s84, v3
  v_lshlrev_b32 v3, 12, v3
  v_lshl_add_u32 v3, v4, 7, v3
  s_lshl_b32 s84, s81, 9
  v_add_u32 v3, s84, v3
  s_lshl_b32 s84, s83, 13
  v_lshlrev_b32 v4, 7, v2
  v_add_u32 v4, s84, v4
""")
    if "nopf" not in EXP:
        for k in range(3):
            a(f"  s_mov_b32 s85, {k*640*4096}")
            a(f"  buffer_load_dword v{208+k}, v3, s[20:23], s85 offen")
        for k in range(2):
            a(f"  s_mov_b32 s85, {k*40*8192}")
            a(f"  buffer_load_dword v{212+k}, v4, s[24:27], s85 offen")
    lds_wait(a, 20, 4, 251, 10)
    for i in range(7):
        dma_y(a, vm, i)
    a("L_ystart:")
    vm.ops = []
    yphase(a, vm)


def uphase(a, vm):
    BIAS = 224
    srd(a, 36, P_B1, 1376 * 2)
    a(f"""
  v_and_b32 v3, 15, v2
  s_lshl_b32 s83, s3, 4
  v_add_u32 v3, s83, v3
  v_lshlrev_b32 v3, 2, v3
  s_lshr_b32 s83, s71, 1
  v_add_u32 v3, s83, v3
  v_lshlrev_b32 v3, 6, v3
  v_add_u32 v3, {FL_LN:#x}, v3
""")
    flag_load(vm, "fl", 4, 3)
    a(f"""
  s_lshl_b32 s83, s71, 18
  s_lshl_b32 s84, s3, 15
  s_add_u32 s83, s83, s84
  s_add_u32 s83, s83, {WS_H:#x}
  v_add_u32 v6, s83, v250
  v_add_u32 v7, 0x20000, v6
  v_lshrrev_b32 v8, 5, v2
  v_lshlrev_b32 v8, 3, v8
  s_lshl_b32 s83, s70, 7
  s_and_b32 s84, s3, 1
  s_lshl_b32 s84, s84, 6
  s_add_u32 s83, s83, s84
  v_add_u32 v8, s83, v8
""")
    for q in range(4):
        vm.issue("bias", f"  buffer_load_dwordx2 v[{BIAS+2*q}:{BIAS+2*q+1}], v8, s[36:39], 0 offen offset:{q*16}")
    flag_check(a, vm, "fl", 4, 3)
    stamp(a, 5)

    def direct(i):
        r = DR + 8 * (i % 8)
        a(f"  s_lshl_b32 s86, s43, 10")
        vm.issue(("ud", i), f"  buffer_load_dwordx4 v[{r}:{r+3}], v6, s[12:15], s86 offen sc1")
        a(f"  s_add_u32 s43, s43, 1")
        vm.issue(("ud", i), f"  buffer_load_dwordx4 v[{r+4}:{r+7}], v7, s[12:15], s86 offen sc1")
        a(f"  s_and_b32 s43, s43, 31")

    for i in range(8):
        direct(i)
    trreads(a, 2, 0, 0)
    vm.wait([("ud", 0)])
    for i in range(NU):
        if i + 1 < NU:
            vm.wait([("ud", i + 1), ("uw", i + 1)], "lgkmcnt(0)")
        else:
            a(f"  s_waitcnt lgkmcnt(0)")
        if i == 26:
            lds_wait(a, 20, 4, 251, 10)
        r = DR + 8 * (i % 8)
        f = LF + 8 * (i & 1)
        mf = []
        for b in range(2):
            for aa in range(2):
                d = ACC + 16 * (aa + 2 * b)
                c = "0" if i == 0 else f"v[{d}:{d+15}]"
                mf.append(f"  {MFMA} v[{d}:{d+15}], v[{f+4*aa}:{f+4*aa+3}], v[{r+4*b}:{r+4*b+3}], {c}")
        fill = []
        if i + 1 < NU:
            fill += cap(a, trreads, a, 2, ((i + 1) % 5) * 2048, (i + 1) & 1)
        if i + 5 < NU:
            fill += groups(cap(a, dma_u, a, vm, i + 5))
        if 27 <= i < 31:
            fill += groups(cap(a, dma_y, a, vm, i - 27))
        weave(a, mf, fill)
        if i + 8 < NU:
            direct(i + 8)
    stamp(a, 6)
    a(f"""
  v_add_u32 v8, s77, v250
  s_lshl_b32 s83, s3, 12
  s_add_u32 s83, s83, {L_QS}
  v_add_u32 v9, s83, v250
  s_nop 7
  s_nop 7
""")
    for tau in range(4):
        for q in range(4):
            a(f"  ds_write_b128 v8, v[{ACC+16*tau+4*q}:{ACC+16*tau+4*q+3}] offset:{tau*4096 + q*1024}")
    a("  s_waitcnt lgkmcnt(0)")
    lds_barrier(a, 0, 4, 251, 10)
    R = DR
    for sg in range(4):
        for q in range(4):
            a(f"  ds_read_b128 v[{R+16*sg+4*q}:{R+16*sg+4*q+3}], v9 offset:{sg*16384 + q*1024}")
    for q in range(4):
        a(f"  v_lshlrev_b32 v{ACC+4*q}, 16, v{BIAS+2*q}")
        a(f"  v_and_b32 v{ACC+4*q+1}, 0xffff0000, v{BIAS+2*q}")
        a(f"  v_lshlrev_b32 v{ACC+4*q+2}, 16, v{BIAS+2*q+1}")
        a(f"  v_and_b32 v{ACC+4*q+3}, 0xffff0000, v{BIAS+2*q+1}")
    a("  s_waitcnt lgkmcnt(0)")
    lds_signal(a, 12, 251, 10)
    for i in range(16):
        a(f"  v_add_f32 v{R+i}, v{R+i}, v{R+16+i}")
        a(f"  v_add_f32 v{R+32+i}, v{R+32+i}, v{R+48+i}")
        a(f"  v_add_f32 v{ACC+i}, v{ACC+i}, v{R+i}")
        a(f"  v_add_f32 v{ACC+i}, v{ACC+i}, v{R+32+i}")
    k = math.sqrt(2.0 / math.pi)
    c1 = -2.0 * k * math.log2(math.e)
    c2 = c1 * 0.044715
    a(f"  s_mov_b32 s83, {f32bits(c2):#x}")
    a(f"  v_mov_b32 v10, {f32bits(c1):#x}")
    for i in range(16):
        a(f"  v_mul_f32 v{R+i}, v{ACC+i}, v{ACC+i}")
    for i in range(16):
        a(f"  v_fma_f32 v{R+i}, v{R+i}, s83, v10")
    for i in range(16):
        a(f"  v_mul_f32 v{R+i}, v{R+i}, v{ACC+i}")
    for i in range(16):
        a(f"  v_exp_f32 v{R+i}, v{R+i}")
    for i in range(16):
        a(f"  v_add_f32 v{R+i}, 1.0, v{R+i}")
    for i in range(16):
        a(f"  v_rcp_f32 v{R+i}, v{R+i}")
    for i in range(16):
        a(f"  v_mul_f32 v{R+i}, v{R+i}, v{ACC+i}")
    for i in range(8):
        a(f"  v_cvt_pk_bf16_f32 v{R+16+i}, v{R+2*i}, v{R+2*i+1}")
    a(f"""
  s_lshl_b32 s83, s70, 1
  s_and_b32 s84, s3, 1
  s_add_u32 s83, s83, s84
  s_lshl_b32 s84, s71, 1
  s_lshr_b32 s85, s3, 1
  s_add_u32 s84, s84, s85
  s_lshl_b32 s85, s83, 15
  s_lshl_b32 s86, s84, 10
  s_add_u32 s85, s85, s86
  v_add_u32 v8, s85, v250
  s_movk_i32 s86, 0x4000
""")
    vm.issue("st", f"  buffer_store_dwordx4 v[{R+16}:{R+19}], v8, s[28:31], 0 offen sc1")
    vm.issue("st", f"  buffer_store_dwordx4 v[{R+20}:{R+23}], v8, s[28:31], s86 offen sc1")
    a(f"""
  s_lshl_b32 s83, s83, 4
  s_add_u32 s83, s83, s84
  s_lshl_b32 s83, s83, 6
  s_add_u32 s91, s83, {FL_U:#x}
""")
    lds_wait(a, 12, 4, 251, 10)
    for i in range(4, 7):
        dma_y(a, vm, i)
    publish(a, vm, "st", "s91", 10, 252)
    stamp(a, 7)


def yphase(a, vm):
    NS = NY + NO
    GV = 224
    srd(a, 36, P_B2, 2048 * 2)
    a(f"""
  v_min_u32 v3, 21, v2
  v_lshrrev_b32 v4, 1, v3
  s_mul_i32 s83, s3, 11
  v_add_u32 v4, s83, v4
  v_min_u32 v4, 42, v4
  v_lshlrev_b32 v4, 4, v4
  v_and_b32 v3, 1, v3
  s_lshl_b32 s83, s73, 1
  v_add3_u32 v3, v3, v4, s83
  v_lshlrev_b32 v3, 6, v3
  v_add_u32 v3, {FL_U:#x}, v3
  v_subrev_u32 v4, 22, v2
  v_and_b32 v4, 7, v4
  s_lshl_b32 s83, s72, 3
  v_add_u32 v4, s83, v4
  v_lshlrev_b32 v4, 6, v4
  v_add_u32 v4, {FL_LN:#x}, v4
  v_cmp_lt_u32 vcc, 21, v2
  s_nop 1
  v_cndmask_b32 v3, v3, v4, vcc
""")
    flag_load(vm, "fl", 4, 3)
    for i in range(7, NYS):
        dma_y(a, vm, i)
    a(f"""
  v_and_b32 v8, 7, v2
  s_lshl_b32 s83, s3, 3
  v_add_u32 v8, s83, v8
  v_lshlrev_b32 v8, 5, v8
  v_add_u32 v8, s72, v8
  v_lshlrev_b32 v8, 6, v8
  v_add_u32 v8, {FL_AT:#x}, v8
  s_mul_i32 s83, s3, {22*16384}
  s_lshl_b32 s84, s73, 11
  s_add_u32 s83, s83, s84
  v_add_u32 v12, s83, v250
  s_lshl_b32 s83, s72, 16
  s_lshl_b32 s84, s3, 13
  s_add_u32 s83, s83, s84
  s_add_u32 s83, s83, {WS_O:#x}
  v_add_u32 v13, s83, v250
  v_add_u32 v14, 0x8000, v13
  v_and_b32 v7, 31, v2
  s_lshl_b32 s83, s72, 6
  v_add_u32 v7, s83, v7
  v_lshlrev_b32 v9, 1, v7
""")
    vm.issue("g", f"  buffer_load_ushort v{GV+2}, v9, s[36:39], 0 offen")
    vm.issue("g", f"  buffer_load_ushort v{GV+3}, v9, s[36:39], 0 offen offset:64")
    flag_check(a, vm, "fl", 4, 3)
    stamp(a, 8)
    a(f"""
  v_lshlrev_b32 v9, 2, v7
  v_add_u32 v9, {WS_G:#x}, v9
""")
    vm.issue("g", f"  buffer_load_dword v{GV}, v9, s[12:15], 0 offen sc1")
    vm.issue("g", f"  buffer_load_dword v{GV+1}, v9, s[12:15], 0 offen offset:128 sc1")

    def direct(i):
        r = DR + 8 * (i % 8)
        if i < NY:
            a(f"  s_lshl_b32 s86, s47, 14")
            vm.issue(("yr", i), f"  buffer_load_dwordx4 v[{r}:{r+3}], v12, s[28:31], s86 offen sc1")
            a(f"  s_add_u32 s47, s47, 1")
            vm.issue(("yr", i), f"  buffer_load_dwordx4 v[{r+4}:{r+7}], v12, s[28:31], s86 offen offset:1024 sc1")
            a(f"  s_cmp_eq_u32 s47, 22")
            a(f"  s_cselect_b32 s47, 0, s47")
        else:
            a(f"  s_lshl_b32 s86, s45, 10")
            vm.issue(("yr", i), f"  buffer_load_dwordx4 v[{r}:{r+3}], v13, s[12:15], s86 offen sc1")
            a(f"  s_add_u32 s45, s45, 1")
            vm.issue(("yr", i), f"  buffer_load_dwordx4 v[{r+4}:{r+7}], v14, s[12:15], s86 offen sc1")
            a(f"  s_and_b32 s45, s45, 7")

    for i in range(8):
        direct(i)
    ACHK = int(os.environ.get("ACHK", "18"))
    nextd = 8
    vm.wait([("yr", 0), ("yd", 0)])
    trreads(a, *yslot(0), 0)
    for i in range(NS):
        if i + 1 < NS:
            vm.wait([("yr", i + 1), ("yd", i + 1)], "lgkmcnt(0)")
        else:
            a(f"  s_waitcnt lgkmcnt(0)")
        r = DR + 8 * (i % 8)
        f = LF + 8 * (i & 1)
        if i == NY:
            stamp(a, 9)
            a("  s_nop 7")
            a("  s_nop 7")
            a(f"  v_sub_f32 v{GV+4}, 1.0, v{GV}")
            a(f"  v_sub_f32 v{GV+5}, 1.0, v{GV+1}")
            for b in range(2):
                for aa in range(2):
                    d = ACC + 16 * (aa + 2 * b)
                    for q in range(16):
                        a(f"  v_mul_f32 v{d+q}, v{d+q}, v{GV+4+b}")
            a("  s_nop 1")
        mf = []
        for b in range(2):
            for aa in range(2):
                d = ACC + 16 * (aa + 2 * b)
                c = "0" if i == 0 else f"v[{d}:{d+15}]"
                if i < NY:
                    A = f"v[{r+4*aa}:{r+4*aa+3}]"
                    B = f"v[{f+4*b}:{f+4*b+3}]"
                else:
                    A = f"v[{f+4*aa}:{f+4*aa+3}]"
                    B = f"v[{r+4*b}:{r+4*b+3}]"
                mf.append(f"  {MFMA} v[{d}:{d+15}], {A}, {B}, {c}")
        fill = []
        if i + 1 < NS:
            fill += cap(a, trreads, a, *yslot((i + 1) % NYS), (i + 1) & 1)
        if i + NYS < NS:
            fill += groups(cap(a, dma_y, a, vm, i + NYS))
        weave(a, mf, fill)
        if i == ACHK - 4:
            flag_load(vm, "fa", 10, 8)
        if i == ACHK:
            if "chainB" not in EXP:
                flag_check(a, vm, "fa", 10, 8)
            stamp(a, 13)
        while nextd <= i + 8 and nextd < NS and (nextd < NY or i >= ACHK):
            direct(nextd)
            nextd += 1
    stamp(a, 10)
    a(f"""
  v_add_u32 v8, s77, v250
  s_lshl_b32 s83, s3, 12
  s_add_u32 s83, s83, {L_QS}
  v_add_u32 v9, s83, v250
  s_nop 7
  s_nop 7
""")
    for i in range(16):
        a(f"  ds_write_b128 v8, v[{ACC+4*i}:{ACC+4*i+3}] offset:{i*1024}")
    a("  s_waitcnt lgkmcnt(0)")
    lds_barrier(a, 4, 4, 251, 10)
    R = DR
    for sg in range(4):
        for q in range(4):
            a(f"  ds_read_b128 v[{R+16*sg+4*q}:{R+16*sg+4*q+3}], v9 offset:{sg*16384 + q*1024}")
    a(f"""
  s_lshr_b32 s83, s3, 1
  s_cmp_eq_u32 s83, 0
  s_cselect_b64 vcc, -1, 0
  v_cndmask_b32 v10, v{GV+5}, v{GV+4}, vcc
  v_cndmask_b32 v11, v{GV+3}, v{GV+2}, vcc
  v_lshlrev_b32 v11, 16, v11
  v_mul_f32 v10, v10, v11
  s_lshl_b32 s84, s83, 5
  v_add_u32 v7, s84, v7
  v_lshlrev_b32 v7, 10, v7
  s_lshl_b32 s84, s73, 7
  s_and_b32 s85, s3, 1
  s_lshl_b32 s85, s85, 6
  s_add_u32 s84, s84, s85
  v_add_u32 v7, s84, v7
  v_lshrrev_b32 v8, 5, v2
  v_lshl_add_u32 v7, v8, 4, v7
  s_waitcnt lgkmcnt(0)
""")
    for i in range(16):
        a(f"  v_add_f32 v{R+i}, v{R+i}, v{R+16+i}")
        a(f"  v_add_f32 v{R+32+i}, v{R+32+i}, v{R+48+i}")
        a(f"  v_add_f32 v{R+i}, v{R+i}, v10")
        a(f"  v_add_f32 v{R+i}, v{R+i}, v{R+32+i}")
    P = R + 16
    for q in range(4):
        a(f"  v_cvt_pk_bf16_f32 v{P+2*q}, v{R+4*q}, v{R+4*q+1}")
        a(f"  v_cvt_pk_bf16_f32 v{P+2*q+1}, v{R+4*q+2}, v{R+4*q+3}")
    a("  s_nop 1")
    for q in (0, 2):
        a(f"  v_permlane32_swap_b32 v{P+2*q}, v{P+2*q+2}")
        a(f"  v_permlane32_swap_b32 v{P+2*q+1}, v{P+2*q+3}")
    a(f"  buffer_store_dwordx4 v[{P}:{P+3}], v7, s[32:35], 0 offen")
    a(f"  buffer_store_dwordx4 v[{P+4}:{P+7}], v7, s[32:35], 0 offen offset:32")
    stamp(a, 11)
    if STAMPS:
        a("  s_waitcnt vmcnt(0)")
    stamp(a, 12)
    stamp_flush(a)
    if "dbgspan" in EXP:
        a(f"""
  s_waitcnt vmcnt(0)
  s_memrealtime s[98:99]
  s_waitcnt lgkmcnt(0)
  s_sub_u32 s98, s98, s{TOK}
  v_mov_b32 v10, s98
  s_mov_b64 exec, 1
  buffer_atomic_umax v10, v252, s[{S_DBG}:{S_DBG+3}], 0 offen offset:8
""")
    a("  s_endpgm")


def qkv(a):
    srd(a, 4, P_X, 2048 * 512 * 2)
    srd(a, 8, P_WQKV, 512 * 1536 * 2)
    a(f"""
  s_and_b32 s83, s81, 3
  s_lshl_b32 s83, s83, 2
  s_and_b32 s84, s82, 3
  s_add_u32 s36, s83, s84            ; st
  s_lshr_b32 s83, s81, 2
  s_mul_i32 s83, s83, 6
  s_lshr_b32 s84, s82, 2
  s_add_u32 s37, s83, s84            ; nt
  s_lshl_b32 s38, s3, 12
  s_add_u32 s38, s38, {L_QS}
""")
    VXA, VWA = 4, 8
    a("  v_lshrrev_b32 v3, 3, v2")
    a("  v_and_b32 v12, 7, v2")
    a("  s_lshl_b32 s83, s36, 17")
    for i in range(4):
        a(f"  s_lshl_b32 s84, s3, 5")
        a(f"  s_add_u32 s84, s84, {8*i}")
        a(f"  v_add_u32 v13, s84, v3")
        a(f"  v_lshrrev_b32 v14, 1, v13")
        a(f"  v_and_b32 v14, 7, v14")
        a(f"  v_xor_b32 v14, v14, v12")
        a(f"  v_lshlrev_b32 v14, 4, v14")
        a(f"  v_lshl_add_u32 v14, v13, 10, v14")
        a(f"  v_add_u32 v{VXA+i}, s83, v14")
    a("""
  v_lshrrev_b32 v3, 4, v2
  v_and_b32 v12, 15, v2
  v_lshrrev_b32 v13, 2, v12
  v_xor_b32 v13, v13, v3
  v_lshlrev_b32 v13, 2, v13
  v_and_b32 v12, 3, v12
  v_or_b32 v13, v13, v12
  v_lshlrev_b32 v13, 4, v13
  s_lshl_b32 s83, s37, 8
  v_add_u32 v13, s83, v13
  s_movk_i32 s85, 3072
""")
    for i in range(4):
        a(f"  s_lshl_b32 s84, s3, 4")
        a(f"  s_add_u32 s84, s84, {4*i}")
        a(f"  v_add_u32 v14, s84, v3")
        a(f"  v_mul_lo_u32 v14, v14, s85")
        a(f"  v_add_u32 v{VWA+i}, v14, v13")
    a(f"  s_and_b32 s39, s82, {0 if 'norotQ' in EXP else 7}")
    a("  s_mov_b32 s16, 0")

    def issue_chunk():
        a(f"  s_mul_i32 s87, s39, 196608")
        a(f"  s_lshl_b32 s86, s39, 7")
        a(f"  s_add_u32 s17, s38, s16")
        for i in range(4):
            a(f"  s_add_u32 m0, s17, {i*1024}")
            a(f"  s_nop 0")
            a(f"  buffer_load_dwordx4 v{VXA+i}, s[4:7], s86 offen lds")
            a(f"  s_add_u32 m0, s17, {16384 + i*1024}")
            a(f"  s_nop 0")
            a(f"  buffer_load_dwordx4 v{VWA+i}, s[8:11], s87 offen lds")
        a(f"  s_add_u32 s39, s39, 1")
        a(f"  s_and_b32 s39, s39, 7")
        a(f"  s_add_u32 s16, s16, 32768")
        a(f"  s_cmp_eq_u32 s16, 98304")
        a(f"  s_cselect_b32 s16, 0, s16")

    for c in range(3):
        issue_chunk()
    VXB, VWB, VXR, VWR = 16, 20, 22, 26
    a(f"""
  buffer_load_dwordx2 v[28:29], v252, s[{S_DBG}:{S_DBG+3}], 0 offen sc1
  s_and_b32 s88, s3, 1
  s_lshr_b32 s89, s3, 1
  v_and_b32 v3, 31, v2
  v_lshrrev_b32 v12, 5, v2
  s_lshl_b32 s84, s88, 6
  v_add_u32 v13, s84, v3
  v_lshrrev_b32 v14, 1, v13
  v_and_b32 v14, 7, v14
  v_lshlrev_b32 v13, 7, v13
  v_add_u32 v13, {L_QS}, v13
""")
    for ks in range(4):
        a(f"  v_or_b32 v15, {2*ks}, v12")
        a(f"  v_xor_b32 v15, v15, v14")
        a(f"  v_lshl_add_u32 v{VXB+ks}, v15, 4, v13")
        a(f"  v_mov_b32 v{VXR+ks}, v{VXB+ks}")
    a(f"""
  v_and_b32 v3, 15, v2
  v_lshrrev_b32 v13, 2, v3
  v_lshlrev_b32 v14, 11, v12
  v_lshl_add_u32 v14, v13, 8, v14
  v_bfe_u32 v15, v2, 4, 1
  v_lshl_add_u32 v14, v15, 5, v14
  v_and_b32 v15, 3, v3
  v_lshl_add_u32 v14, v15, 3, v14
  v_add_u32 v14, {L_QS + 0x4000}, v14
  s_lshl_b32 s84, s89, 1
""")
    for b in range(2):
        a(f"  s_add_u32 s85, s84, {b}")
        a(f"  v_xor_b32 v15, s85, v13")
        a(f"  v_lshl_add_u32 v{VWB+b}, v15, 6, v14")
        a(f"  v_mov_b32 v{VWR+b}, v{VWB+b}")
    FR, QA = 32, 96
    for i in range(0, 64, 2):
        a(f"  v_pk_mov_b32 v[{QA+i}:{QA+i+1}], v[252:253], v[252:253] op_sel:[0,0]")

    def reads(ks):
        f = FR + 16 * ks
        for aa in range(2):
            a(f"  ds_read_b128 v[{f+4*aa}:{f+4*aa+3}], v{VXR+ks} offset:{aa*4096}")
        for b in range(2):
            a(f"  ds_read_b64_tr_b16 v[{f+8+4*b}:{f+8+4*b+1}], v{VWR+b} offset:{ks*4096}")
            a(f"  ds_read_b64_tr_b16 v[{f+8+4*b+2}:{f+8+4*b+3}], v{VWR+b} offset:{ks*4096 + 1024}")

    def mfmas(ks, vmode):
        f = FR + 16 * ks
        for b in range(2):
            for aa in range(2):
                d = QA + 16 * (aa + 2 * b)
                xa = f"v[{f+4*aa}:{f+4*aa+3}]"
                wb = f"v[{f+8+4*b}:{f+8+4*b+3}]"
                if vmode:
                    a(f"  {MFMA} v[{d}:{d+15}], {xa}, {wb}, v[{d}:{d+15}]")
                else:
                    a(f"  {MFMA} v[{d}:{d+15}], {wb}, {xa}, v[{d}:{d+15}]")

    def poll(target_sgpr):
        L, Ld = a.label("qp"), a.label("qpd")
        a(f"  s_mov_b32 s97, 0")
        a(f"{L}:")
        a(f"  ds_read_b32 v31, v251 offset:16")
        a(f"  s_waitcnt lgkmcnt(0)")
        a(f"  v_readfirstlane_b32 s96, v31")
        a(f"  s_add_u32 s97, s97, 1")
        a(f"  s_cmp_ge_u32 s96, {target_sgpr}")
        a(f"  s_cbranch_scc1 {Ld}")
        a(f"  s_cmp_gt_u32 s97, {SPIN_MAX*4}")
        a(f"  s_cbranch_scc0 {L}")
        a(f"{Ld}:")

    def mainloop(vmode):
        L, L1, L2, L3 = a.label("qkv"), a.label("q1"), a.label("q2"), a.label("q3")
        stamp(a, 6)
        a("  s_waitcnt vmcnt(17)")
        lds_signal(a, 16, 251, 30)
        a("  s_mov_b32 s18, 4")
        poll("s18")
        stamp(a, 7)
        reads(0)
        reads(1)
        a("  s_mov_b32 s90, 0")
        a("  s_mov_b32 s19, 0")
        a(f"{L}:")
        a("  s_waitcnt lgkmcnt(6)")
        weave(a, cap(a, mfmas, 0, vmode), cap(a, reads, 2))
        a("  s_waitcnt lgkmcnt(6)")
        weave(a, cap(a, mfmas, 1, vmode), cap(a, reads, 3))
        a(f"  s_cmp_lt_u32 s90, 6")
        a(f"  s_cbranch_scc1 {L1}")
        a("  s_waitcnt vmcnt(0)")
        a(f"{L1}:")
        a("  s_waitcnt vmcnt(8) lgkmcnt(0)")
        lds_signal(a, 16, 251, 30)
        a("  s_add_u32 s18, s18, 4")
        a("  s_add_u32 s19, s19, 32768")
        a("  s_cmp_eq_u32 s19, 98304")
        a("  s_cselect_b32 s19, 0, s19")
        adv = [f"  v_add_u32 v{VXR+k}, s19, v{VXB+k}" for k in range(4)] + [f"  v_add_u32 v{VWR+k}, s19, v{VWB+k}" for k in range(2)]
        weave(a, cap(a, mfmas, 2, vmode), adv)
        poll("s18")
        weave(a, cap(a, mfmas, 3, vmode), cap(a, reads, 0) + cap(a, reads, 1))
        a(f"  s_cmp_lt_u32 s90, 5")
        a(f"  s_cbranch_scc0 {L2}")
        issue_chunk()
        a(f"{L2}:")
        a(f"  s_add_u32 s90, s90, 1")
        a(f"  s_cmp_lt_u32 s90, 8")
        a(f"  s_cbranch_scc1 {L}")
        a("  s_waitcnt lgkmcnt(0)")
        lds_signal(a, 20, 251, 30)
        stamp(a, 8)

    ST = 160
    vm = VM(a)

    def finish():
        Lok = a.label("tokok")
        a(f"  v_readfirstlane_b32 s{TOK}, v28")
        a(f"  v_readfirstlane_b32 s{TOK+1}, v29")
        a(f"  s_cmp_lg_u32 s{TOK}, 0")
        a(f"  s_cbranch_scc1 {Lok}")
        keep = list(vm.ops)
        get_token(a, vm, 28, 252)
        vm.ops = keep
        a(f"{Lok}:")
        a(f"""
  s_lshl_b32 s83, s37, 1
  s_add_u32 s83, s83, s89
  s_lshl_b32 s83, s83, 5
  s_lshl_b32 s84, s36, 1
  s_add_u32 s84, s84, s88
  s_add_u32 s83, s83, s84
  s_lshl_b32 s83, s83, 6
  s_add_u32 s91, s83, {FL_QKV:#x}
""")
        publish(a, vm, "st", "s91", 28, 252)
        stamp(a, 9)
        a("  s_branch L_a_p1done")

    a("  s_cmp_ge_u32 s37, 8")
    a("  s_cbranch_scc1 L_vpath")
    mainloop(False)
    a("""
  v_and_b32 v3, 31, v2
  v_lshrrev_b32 v12, 5, v2
  s_lshl_b32 s83, s36, 7
  s_lshl_b32 s84, s88, 6
  s_add_u32 s83, s83, s84
  v_add_u32 v3, s83, v3
  v_lshlrev_b32 v3, 5, v3
  v_lshl_add_u32 v3, v12, 4, v3
  s_and_b32 s83, s37, 3
  s_lshl_b32 s83, s83, 3
  s_lshl_b32 s84, s89, 2
  s_add_u32 s83, s83, s84
  s_lshl_b32 s83, s83, 16
  s_lshr_b32 s84, s37, 2
  s_lshl_b32 s84, s84, 21
  s_add_u32 s83, s83, s84
  v_add_u32 v3, s83, v3
  s_cmp_ge_u32 s37, 4
  s_cbranch_scc1 L_noqs
""")
    a(f"  v_mov_b32 v4, {f32bits(QSCALE):#x}")
    a(f"  v_mov_b32 v5, {f32bits(QSCALE):#x}")
    for i in range(0, 64, 2):
        a(f"  v_pk_mul_f32 v[{QA+i}:{QA+i+1}], v[{QA+i}:{QA+i+1}], v[4:5]")
    a("L_noqs:")
    vm.ops = []
    for b in range(2):
        for aa in range(2):
            d = QA + 16 * (aa + 2 * b)
            for hh in range(2):
                t = ST + 4 * (2 * (aa + 2 * b) + hh)
                for q in range(4):
                    a(f"  v_cvt_pk_bf16_f32 v{t+q}, v{d+8*hh+2*q}, v{d+8*hh+2*q+1}")
                a(f"  s_mov_b32 s85, {(2*b+hh)*65536}")
                vm.issue("st", f"  buffer_store_dwordx4 v[{t}:{t+3}], v3, s[12:15], s85 offen offset:{aa*1024} sc1")
    finish()
    a("L_vpath:")
    mainloop(True)
    a(f"""
  v_and_b32 v3, 15, v2
  v_lshrrev_b32 v12, 5, v2
  v_lshlrev_b32 v3, 4, v3
  v_lshl_add_u32 v3, v12, 8, v3
  v_bfe_u32 v12, v2, 4, 1
  v_lshl_add_u32 v3, v12, 16, v3
  s_and_b32 s83, s37, 3
  s_lshl_b32 s83, s83, 3
  s_lshl_b32 s84, s89, 2
  s_add_u32 s83, s83, s84
  s_lshl_b32 s83, s83, 16
  s_lshl_b32 s84, s36, 2
  s_lshl_b32 s85, s88, 1
  s_add_u32 s84, s84, s85
  s_lshl_b32 s84, s84, 10
  s_add_u32 s83, s83, s84
  s_add_u32 s83, s83, {WS_V:#x}
  v_add_u32 v3, s83, v3
""")
    vm.ops = []
    for b in range(2):
        for aa in range(2):
            d = QA + 16 * (aa + 2 * b)
            for tt in range(2):
                t = ST + 4 * (2 * (aa + 2 * b) + tt)
                for q in range(4):
                    a(f"  v_cvt_pk_bf16_f32 v{t+q}, v{d+8*tt+2*q}, v{d+8*tt+2*q+1}")
                a(f"  s_mov_b32 s85, {2*b*65536}")
                vm.issue("st", f"  buffer_store_dwordx4 v[{t}:{t+3}], v3, s[12:15], s85 offen offset:{aa*1024 + tt*512} sc1")
    finish()


def ln(a, vm):
    vm.ops = []
    HOFF = L_QS
    XR, GR, FX = 16, 48, 80
    srd_ = []
    a("L_ln:")
    srd(a, 36, P_GATE, 1024)
    a(f"""
  s_sub_u32 s90, s2, 192             ; a
  v_lshrrev_b32 v3, 3, v2
  v_and_b32 v4, 7, v2
  s_lshl_b32 s83, s90, 5
  s_lshl_b32 s84, s3, 3
  s_add_u32 s83, s83, s84
  v_add_u32 v5, s83, v3              ; row
  v_lshlrev_b32 v6, 4, v4
  v_lshl_add_u32 v7, v5, 10, v6
""")
    for i in range(8):
        vm.issue("x", f"  buffer_load_dwordx4 v[{XR+4*i}:{XR+4*i+3}], v7, s[4:7], 0 offen offset:{i*128}")
    for i in range(8):
        vm.issue("x", f"  buffer_load_dwordx4 v[{GR+4*i}:{GR+4*i+3}], v6, s[36:39], 0 offen offset:{i*128}")
    vm.issue("tok", f"  buffer_load_dwordx2 v[144:145], v252, s[{S_DBG}:{S_DBG+3}], 0 offen sc1")
    stamp(a, 1)
    vm.wait("x")
    stamp(a, 2)
    for i in range(32):
        a(f"  v_lshlrev_b32 v{FX+2*i}, 16, v{XR+i}")
        a(f"  v_and_b32 v{FX+2*i+1}, 0xffff0000, v{XR+i}")
    for c in range(4):
        a(f"  v_add_f32 v{9+c}, v{FX+c}, v{FX+4+c}")
    for i in range(8, 64):
        a(f"  v_add_f32 v{9+(i&3)}, v{9+(i&3)}, v{FX+i}")
    a(f"  v_mov_b32 v13, 0")
    a(f"  v_mov_b32 v14, 0")
    for i in range(32):
        a(f"  v_dot2_f32_bf16 v{13+(i&1)}, v{XR+i}, v{GR+i}, v{13+(i&1)}")
    a("""
  v_add_f32 v9, v9, v10
  v_add_f32 v11, v11, v12
  v_add_f32 v9, v9, v11
  s_nop 2
  v_add_f32 v13, v13, v14
""")

    def red8(r):
        a(f"  s_nop 1")
        a(f"  v_add_f32_dpp v{r}, v{r}, v{r} quad_perm:[1,0,3,2] row_mask:0xf bank_mask:0xf")
        a(f"  s_nop 1")
        a(f"  v_add_f32_dpp v{r}, v{r}, v{r} quad_perm:[2,3,0,1] row_mask:0xf bank_mask:0xf")
        a(f"  s_nop 1")
        a(f"  v_add_f32_dpp v{r}, v{r}, v{r} row_half_mirror row_mask:0xf bank_mask:0xf")

    red8(9)
    red8(13)
    a(f"  v_mul_f32 v9, {f32bits(1.0/512):#x}, v9")
    for i in range(64):
        a(f"  v_sub_f32 v{FX+i}, v{FX+i}, v9")
    for c in range(4):
        a(f"  v_mul_f32 v{9+c}, v{FX+c}, v{FX+c}")
    for i in range(4, 64):
        a(f"  v_fmac_f32 v{9+(i&3)}, v{FX+i}, v{FX+i}")
    a("""
  v_add_f32 v9, v9, v10
  v_add_f32 v11, v11, v12
  v_add_f32 v9, v9, v11
""")
    red8(9)
    a(f"""
  v_mov_b32 v10, {f32bits(1e-5):#x}
  v_fmac_f32 v10, {f32bits(1.0/512):#x}, v9
  v_rsq_f32 v10, v10
  v_mul_f32 v13, {f32bits(-math.log2(math.e)):#x}, v13
  v_exp_f32 v13, v13
  s_nop 0
  v_add_f32 v13, 1.0, v13
  v_rcp_f32 v13, v13
  v_lshlrev_b32 v5, 2, v5
  v_add_u32 v5, {WS_G:#x}, v5
  v_cmp_eq_u32 vcc, 0, v4
  s_and_saveexec_b64 s[84:85], vcc
""")
    vm.issue("st", "  buffer_store_dword v13, v5, s[12:15], 0 offen sc1")
    a("  s_mov_b64 exec, -1")
    for i in range(64):
        a(f"  v_mul_f32 v{FX+i}, v{FX+i}, v10")
    for i in range(32):
        a(f"  v_cvt_pk_bf16_f32 v{XR+i}, v{FX+2*i}, v{FX+2*i+1}")
    a(f"""
  s_lshl_b32 s84, s3, 3
  v_add_u32 v3, s84, v3
  s_movk_i32 s85, 1088
  v_mul_lo_u32 v3, v3, s85
  v_add_u32 v3, v3, v6
  v_add_u32 v3, {HOFF}, v3
""")
    for i in range(8):
        a(f"  ds_write_b128 v3, v[{XR+4*i}:{XR+4*i+3}] offset:{i*128}")
    a(f"""
  v_and_b32 v3, 15, v2
  v_lshrrev_b32 v4, 2, v3
  v_lshrrev_b32 v5, 5, v2
  v_lshl_add_u32 v4, v5, 2, v4
  v_bfe_u32 v5, v2, 4, 1
  v_lshlrev_b32 v5, 5, v5
  v_and_b32 v3, 3, v3
  v_lshl_add_u32 v5, v3, 3, v5
  s_movk_i32 s85, 1088
  v_mul_lo_u32 v6, v4, s85
  v_add_u32 v6, v6, v5
  s_lshl_b32 s84, s3, 8
  s_add_u32 s84, s84, {HOFF}
  v_add_u32 v6, s84, v6
  s_lshl_b32 s83, s90, 11
  s_lshl_b32 s84, s3, 19
  s_add_u32 s84, s84, s83
  s_add_u32 s84, s84, {WS_H:#x}
  v_add_u32 v9, s84, v250
  s_waitcnt lgkmcnt(0)
""")
    lds_barrier(a, 24, 4, 251, 10)
    T = 16
    n = 0
    for db in range(4):
        for t in range(2):
            off = t * 17408 + db * 64
            a(f"  ds_read_b64_tr_b16 v[{T+4*n}:{T+4*n+1}], v6 offset:{off}")
            a(f"  ds_read_b64_tr_b16 v[{T+4*n+2}:{T+4*n+3}], v6 offset:{off+8*1088}")
            n += 1
    a("  s_waitcnt lgkmcnt(0)")
    lds_signal(a, 28, 251, 10)
    n = 0
    for db in range(4):
        for t2 in range(2):
            a(f"  s_mov_b32 s85, {db*131072}")
            vm.issue("st", f"  buffer_store_dwordx4 v[{T+4*n}:{T+4*n+3}], v9, s[12:15], s85 offen offset:{t2*1024} sc1")
            n += 1
    stamp(a, 3)
    vm.wait("tok")
    Lok = a.label("tokok")
    a(f"  v_readfirstlane_b32 s{TOK}, v144")
    a(f"  v_readfirstlane_b32 s{TOK+1}, v145")
    a(f"  s_cmp_lg_u32 s{TOK}, 0")
    a(f"  s_cbranch_scc1 {Lok}")
    keep = list(vm.ops)
    get_token(a, vm, 144, 252)
    vm.ops = keep
    a(f"{Lok}:")
    a(f"""
  s_lshl_b32 s83, s90, 2
  s_add_u32 s83, s83, s3
  s_lshl_b32 s83, s83, 6
  s_add_u32 s83, s83, {FL_LN:#x}
""")
    a("  s_mov_b32 s91, s83")
    publish(a, vm, "st", "s83", 144, 252)
    lds_signal(a, 32, 251, 10)
    lds_wait(a, 28, 4, 251, 10)


def awaves(a):
    vm = VM(a)
    S = 32
    MF, MD = 80, 96
    CM, CF, CD = 112, 128, 144
    KF = 160
    QF = 200
    VF = 208
    OA = 224
    NEG, GV, MX, MX2 = 240, 242, 244, 246
    CS = 248
    mask_pairs = [4, 6, 8, 10] + list(range(16, 40, 2))
    assert len(mask_pairs) == 16
    cscale = 0.25 * math.log2(math.e)
    a(f"""
L_attn:
  s_sub_u32 s3, s3, 4                ; aw
  s_setprio {os.environ.get("QPRIO", "2")}
  s_or_b32 s83, s2, s3
  s_cmp_lg_u32 s83, 0
  s_cbranch_scc1 L_a_notok
  s_memrealtime s[70:71]
  s_waitcnt lgkmcnt(0)
  s_or_b32 s70, s70, 1
  v_mov_b32 v4, s70
  v_mov_b32 v5, s71
  s_mov_b64 exec, 1
  buffer_store_dwordx2 v[4:5], v252, s[{S_DBG}:{S_DBG+3}], 0 offen sc1
  s_mov_b64 exec, -1
L_a_notok:
  s_cmp_lt_u32 s2, 192
  s_cbranch_scc0 L_a_noqkv
""")
    if "chainB" in EXP:
        lds_signal(a, 20, 251, 30)
        a("  s_endpgm")
    qkv(a)
    a("L_a_noqkv:")
    lds_signal(a, 20, 251, 30)
    if "nomall" not in EXP:
        srd(a, 76, P_W1, 2048 * 1376 * 2)
        srd(a, 84, P_W2, 1376 * 2048 * 2)
        srd(a, 88, P_WO, 512 * 512 * 2)
        a(f"""
  s_setprio 0
  s_sub_u32 s92, s2, 192
  s_lshl_b32 s92, s92, 2
  s_add_u32 s92, s92, s3
  s_mul_i32 s93, s92, 22016
  v_lshlrev_b32 v13, 7, v2
  s_lshl_b32 s94, s92, 11
""")
        lds_wait(a, int(os.environ.get("PFCNT", "32")), 4, 251, 30)
        for k in range(3 if "now1t" in EXP else 0):
            a(f"  s_add_u32 s95, s93, {k*8192}")
            a(f"  buffer_load_dword v{32+k}, v13, s[76:79], s95 offen")
        for k in range(3):
            a(f"  s_add_u32 s95, s93, {k*8192}")
            a(f"  buffer_load_dword v{36+k}, v13, s[84:87], s95 offen")
        a(f"  v_cmp_gt_u32 vcc, 16, v2")
        a(f"  s_and_saveexec_b64 s[92:93], vcc")
        a(f"  buffer_load_dword v40, v13, s[88:91], s94 offen")
        a(f"  s_mov_b64 exec, -1")
    a("L_a_p1done:")
    if "chainB" in EXP:
        a("  s_endpgm")
    a(f"""
  s_setprio 2
  s_lshl_b32 s70, s81, 2
  s_lshr_b32 s83, s82, 3
  s_add_u32 s70, s70, s83            ; head
  s_and_b32 s83, s82, 7
  s_lshl_b32 s71, s83, 3             ; qb0
  s_lshl_b32 s83, s3, 1
  s_add_u32 s72, s71, s83
  v_and_b32 v3, 31, v2
  v_lshrrev_b32 v4, 5, v2
  v_lshlrev_b32 v5, 5, v3
  v_lshl_add_u32 v5, v4, 4, v5
  s_lshl_b32 s83, s70, 16
  v_add_u32 v5, s83, v5
  v_and_b32 v6, 15, v2
  v_lshlrev_b32 v6, 4, v6
  v_lshl_add_u32 v6, v4, 8, v6
  v_add_u32 v9, {L_AV}, v6
  v_add_u32 v6, s83, v6
  v_add_u32 v6, {WS_V:#x}, v6
  v_lshlrev_b32 v7, 4, v2
  s_lshl_b32 s83, s70, 10
  s_add_u32 s83, s83, {WS_O:#x}
  v_add_u32 v7, s83, v7
  v_lshlrev_b32 v8, 2, v3
  v_add_u32 v8, {WS_G:#x}, v8
  v_mov_b32 v{NEG}, {f32bits(-1e30):#x}
  v_mov_b32 v{CS}, {f32bits(cscale):#x}
  v_mov_b32 v{CS+1}, {f32bits(cscale):#x}
  v_lshlrev_b32 v10, 2, v4
""")
    for r in range(16):
        a(f"  v_add_u32 v11, {(r&3) + 8*(r>>2)}, v10")
        a(f"  v_cmp_le_u32 vcc, v11, v3")
        a(f"  s_nop 1")
        a(f"  v_cndmask_b32 v{MF+r}, 0, v{NEG}, vcc")
        a(f"  v_cndmask_b32 v{MD+r}, v{NEG}, v252, vcc")
    for i in range(16):
        a(f"  v_mov_b32 v{VF+i}, 0x3f803f80")
    a(f"  v_cmp_gt_u32 s[74:75], 16, v3")
    a(f"""
  s_lshr_b32 s84, s70, 2
  s_lshr_b32 s85, s72, 1
  s_lshl_b32 s86, s84, 5
  s_add_u32 s86, s86, s85
  s_lshl_b32 s86, s86, 6
  s_add_u32 s86, s86, {FL_QKV:#x}    ; Q flag
  v_mov_b32 v12, s86
""")
    lane = 1
    for t in range(5):
        a(f"  s_add_u32 s86, s85, {t}")
        a(f"  s_max_u32 s86, s86, 4")
        a(f"  s_sub_u32 s86, s86, 4")
        a(f"  s_add_u32 s87, s84, 8")
        a(f"  s_lshl_b32 s87, s87, 5")
        a(f"  s_add_u32 s86, s86, s87")
        a(f"  s_lshl_b32 s86, s86, 6")
        a(f"  s_add_u32 s86, s86, {FL_QKV:#x}")
        a(f"  v_writelane_b32 v12, s86, {lane}")
        lane += 1
    for t in range(2):
        a(f"  s_lshr_b32 s86, s71, 1")
        a(f"  s_lshl_b32 s87, s3, 1")
        a(f"  s_add_u32 s86, s86, s87")
        a(f"  s_add_u32 s86, s86, {t}")
        a(f"  s_max_u32 s86, s86, 4")
        a(f"  s_sub_u32 s86, s86, 4")
        a(f"  s_add_u32 s87, s84, 16")
        a(f"  s_lshl_b32 s87, s87, 5")
        a(f"  s_add_u32 s86, s86, s87")
        a(f"  s_lshl_b32 s86, s86, 6")
        a(f"  s_add_u32 s86, s86, {FL_QKV:#x}")
        a(f"  v_writelane_b32 v12, s86, {lane}")
        lane += 1
    for t in range(8):
        a(f"  s_lshl_b32 s86, s72, 2")
        a(f"  s_add_u32 s86, s86, {t}")
        a(f"  s_lshl_b32 s86, s86, 6")
        a(f"  s_add_u32 s86, s86, {FL_LN:#x}")
        a(f"  v_writelane_b32 v12, s86, {lane}")
        lane += 1
    stamp(a, 1)
    get_token(a, vm, 14, 252)
    flag_load(vm, "fl", 14, 12)
    flag_check(a, vm, "fl", 14, 12)
    vm.drained()
    stamp(a, 2)
    a(f"  s_mov_b64 exec, s[74:75]")
    for jj in range(4):
        a(f"  s_lshl_b32 s83, s3, 2")
        a(f"  s_add_u32 s83, s83, s71")
        a(f"  s_add_u32 s83, s83, {jj}")
        a(f"  s_max_u32 s83, s83, 8")
        a(f"  s_sub_u32 s83, s83, 8")
        a(f"  s_lshl_b32 s83, s83, 10")
        vm.issue("v", f"  buffer_load_dwordx4 v[{S+8*jj}:{S+8*jj+3}], v6, s[12:15], s83 offen sc1")
        vm.issue("v", f"  buffer_load_dwordx4 v[{S+8*jj+4}:{S+8*jj+7}], v6, s[12:15], s83 offen offset:512 sc1")
    a(f"  s_mov_b64 exec, -1")
    a(f"  s_lshl_b32 s83, s72, 10")
    vm.issue("q", f"  buffer_load_dwordx4 v[{QF}:{QF+3}], v5, s[12:15], s83 offen sc1")
    vm.issue("q", f"  buffer_load_dwordx4 v[{QF+4}:{QF+7}], v5, s[12:15], s83 offen offset:1024 sc1")
    for i in range(10):
        a(f"  s_add_u32 s83, s72, {i}")
        a(f"  s_max_u32 s83, s83, 8")
        a(f"  s_sub_u32 s83, s83, 8")
        a(f"  s_lshl_b32 s83, s83, 10")
        a(f"  s_add_u32 s83, s83, {WS_K:#x}")
        vm.issue(("k", i), f"  buffer_load_dwordx4 v[{KF+4*i}:{KF+4*i+3}], v5, s[12:15], s83 offen sc1")
    a(f"  s_lshl_b32 s83, s72, 7")
    vm.issue("g", f"  buffer_load_dword v{GV}, v8, s[12:15], s83 offen sc1")
    vm.issue("g", f"  buffer_load_dword v{GV+1}, v8, s[12:15], s83 offen offset:128 sc1")
    vm.wait("v")
    a(f"  s_lshl_b32 s83, s3, 12")
    a(f"  v_add_u32 v11, s83, v9")
    a(f"  s_mov_b64 exec, s[74:75]")
    for jj in range(4):
        a(f"  ds_write_b128 v11, v[{S+8*jj}:{S+8*jj+3}] offset:{jj*1024}")
        a(f"  ds_write_b128 v11, v[{S+8*jj+4}:{S+8*jj+7}] offset:{jj*1024+512}")
    a(f"  s_mov_b64 exec, -1")
    a(f"  s_waitcnt lgkmcnt(0)")
    lds_barrier(a, 8, 4, 251, 14)
    vm.wait("g")
    if "hiprio" not in EXP:
        a("  s_setprio 0")
    stamp(a, 3)
    cstamp(a, 14)
    a(f"  s_lshl_b32 s83, s3, 11")
    a(f"  v_add_u32 v9, s83, v9")

    def vread(i):
        r = VF + 8 * (i & 1)
        a(f"  s_mov_b64 exec, s[74:75]")
        a(f"  ds_read_b128 v[{r}:{r+3}], v9 offset:{i*1024}")
        a(f"  ds_read_b128 v[{r+4}:{r+7}], v9 offset:{i*1024+512}")
        a(f"  s_mov_b64 exec, -1")

    def qk(i, buf, cmode, slow):
        d = S + 16 * buf
        if i == 0:
            c = MF if cmode == 0 else CF
        elif i == 8:
            c = MD if cmode == 0 else CD
        else:
            c = None if cmode == 0 else CM
        cs = "0" if c is None else f"v[{c}:{c+15}]"
        ins = f"  {MFMA} v[{d}:{d+15}], v[{KF+4*i}:{KF+4*i+3}], v[{QF}:{QF+3}], {cs}"
        if slow and i < 8:
            L1, L2 = a.label("inv"), a.label("invd")
            a(f"  s_cmp_gt_u32 s76, {i}")
            a(f"  s_cbranch_scc1 {L1}")
            a(ins)
            a(f"  s_branch {L2}")
            a(f"{L1}:")
            a("  s_nop 7")
            a("  s_nop 7")
            for r in range(16):
                a(f"  v_mov_b32 v{d+r}, v{NEG}")
            a(f"{L2}:")
        else:
            a(ins)

    def unit_core(slow):
        qk(0, 0, 0, slow)
        qk(1, 1, 0, slow)
        vread(0)
        for i in range(0, 16, 2):
            a(f"  v_pk_mov_b32 v[{OA+i}:{OA+i+1}], v[252:253], v[252:253] op_sel:[0,0]")
        a(f"  v_mov_b32 v{MX}, v{NEG}")
        a(f"  v_mov_b32 v{MX2}, v{NEG}")
        for i in range(9):
            if i + 2 < 9:
                qk(i + 2, (i + 2) % 3, 0, slow)
            else:
                a("  s_nop 3")
            b = S + 16 * (i % 3)
            for r in range(0, 16, 2):
                m = MX if (r & 2) == 0 else MX2
                a(f"  v_max3_f32 v{m}, v{m}, v{b+r}, v{b+r+1}")
        a(f"""
  v_max_f32 v{MX}, v{MX}, v{MX2}
  v_mov_b32 v{MX2}, v{MX}
  s_nop 1
  v_permlane32_swap_b32 v{MX}, v{MX2}
  s_nop 1
  v_max_f32 v{MX}, v{MX}, v{MX2}
  v_sub_f32 v{MX}, 0, v{MX}
  v_mov_b32 v{MX+1}, v{MX}
""")
        for r in range(0, 16, 2):
            a(f"  v_pk_mov_b32 v[{CM+r}:{CM+r+1}], v[{MX}:{MX+1}], v[{MX}:{MX+1}] op_sel:[0,1]")
        for r in range(0, 16, 2):
            a(f"  v_pk_add_f32 v[{CF+r}:{CF+r+1}], v[{MF+r}:{MF+r+1}], v[{MX}:{MX+1}]")
        a("  s_nop 1")
        qk(0, 0, 1, slow)
        qk(1, 1, 1, slow)
        for r in range(0, 16, 2):
            a(f"  v_pk_add_f32 v[{CD+r}:{CD+r+1}], v[{MD+r}:{MD+r+1}], v[{MX}:{MX+1}]")
        a("  s_nop 3")
        def pv(i, half):
            b = S + 16 * (i % 3)
            r = VF + 8 * (i & 1)
            a(f"  {MFMA} v[{OA}:{OA+15}], v[{r+4*half}:{r+4*half+3}], v[{b+4*half}:{b+4*half+3}], v[{OA}:{OA+15}]")

        for i in range(9):
            b = S + 16 * (i % 3)
            for r in range(16):
                a(f"  v_exp_f32 v{b+r}, v{b+r}")
                if i > 0 and r == 1:
                    a(f"  s_waitcnt lgkmcnt(0)")
                    pv(i - 1, 0)
                if i > 0 and r == 6:
                    pv(i - 1, 1)
                    vread(i)
                if r == 11 and i + 2 < 9 and i > 0:
                    qk(i + 2, (i + 2) % 3, 1, slow)
                if r == 3 and i == 0:
                    qk(2, 2, 1, slow)
            a("  s_nop 0")
            for q in range(8):
                a(f"  v_cvt_pk_bf16_f32 v{b+q}, v{b+2*q}, v{b+2*q+1}")
        a(f"  s_waitcnt lgkmcnt(0)")
        pv(8, 0)
        pv(8, 1)

    a(f"""
  s_mov_b32 s73, s72                 ; qb
  s_mov_b32 s77, 0
L_a_unit:
  s_sub_u32 s76, 8, s73
  s_cmp_gt_u32 s73, 8
  s_cselect_b32 s76, 0, s76
  s_cmp_lg_u32 s76, 0
  s_cbranch_scc1 L_a_slow
""")
    unit_core(False)
    a("L_a_join:")
    for i in range(0, 36, 2):
        a(f"  v_pk_mov_b32 v[{KF+i}:{KF+i+1}], v[{KF+4+i}:{KF+5+i}], v[{KF+4+i}:{KF+5+i}] op_sel:[0,1]")
    for i in range(0, 4, 2):
        a(f"  v_pk_mov_b32 v[{QF+i}:{QF+i+1}], v[{QF+4+i}:{QF+5+i}], v[{QF+4+i}:{QF+5+i}] op_sel:[0,1]")
    a(f"""
  v_add_u32 v9, 0x400, v9
  s_lshl_b32 s83, s73, 15
  v_rcp_f32 v10, v{OA+8}
  s_nop 0
  v_mul_f32 v10, v10, v{GV}
""")
    for r in range(8):
        a(f"  v_mul_f32 v{OA+r}, v{OA+r}, v10")
    a(f"  s_cmp_eq_u32 s77, 0")
    a(f"  s_cbranch_scc0 L_a_unit2")
    for q in range(4):
        a(f"  v_cvt_pk_bf16_f32 v{12+q}, v{OA+2*q}, v{OA+2*q+1}")
    vm.issue("st", f"  buffer_store_dwordx4 v[12:15], v7, s[12:15], s83 offen sc1")
    a(f"  v_mov_b32 v{GV}, v{GV+1}")
    stamp(a, 4)
    a(f"""
  s_add_u32 s73, s73, 1
  s_mov_b32 s77, 1
  s_branch L_a_unit
L_a_unit2:
""")
    for q in range(4):
        a(f"  v_cvt_pk_bf16_f32 v{QF+q}, v{OA+2*q}, v{OA+2*q+1}")
    vm.issue("st", f"  buffer_store_dwordx4 v[{QF}:{QF+3}], v7, s[12:15], s83 offen sc1")
    stamp(a, 5)
    cstamp(a, 15)
    a("  s_setprio 2")
    a(f"""
  s_lshl_b32 s83, s70, 5
  s_lshr_b32 s84, s72, 1
  s_add_u32 s83, s83, s84
  s_lshl_b32 s83, s83, 6
  s_add_u32 s83, s83, {FL_AT:#x}
""")
    publish(a, vm, "st", "s83", 10, 252)
    stamp(a, 11)
    if STAMPS:
        a("  s_waitcnt vmcnt(0)")
    stamp(a, 12)
    stamp_flush(a)
    a("  s_endpgm")
    a("L_a_slow:")
    unit_core(True)
    a("  s_branch L_a_join")


def main():
    ref = open(f"cdna_kernels/{NAME}.s.ref").read().split("\n")
    hdr = [l for l in ref if l.startswith(";") and "@launch" not in l]
    a = Asm()
    for l in hdr:
        a(l)
    a(f"; @launch grid=(256,1,1) block=(512,1,1) lds={LDS_BYTES}")
    a('.amdgcn_target "amdgcn-amd-amdhsa--gfx950"')
    gen(a)
    a(f"""
.section .rodata,"a"
.p2align 6
.amdhsa_kernel {KN}
  .amdhsa_next_free_vgpr 256
  .amdhsa_next_free_sgpr 102
  .amdhsa_accum_offset 256
  .amdhsa_group_segment_fixed_size 0
  .amdhsa_kernarg_size 96
  .amdhsa_user_sgpr_count 2
  .amdhsa_user_sgpr_kernarg_segment_ptr 1
  .amdhsa_system_sgpr_workgroup_id_x 1
.end_amdhsa_kernel
""")
    out = sys.argv[1] if len(sys.argv) > 1 else f"cdna_kernels/{NAME}.s"
    txt = a.text()
    if "nosc1ld" in EXP:
        txt = "\n".join(l.replace(" sc1", "") if ("buffer_load_dwordx4" in l) else l for l in txt.split("\n"))
    open(out, "w").write(txt)


if __name__ == "__main__":
    main()
```

```python
import math
import os
import struct
import sys

NAME = "gated_mix__sliding_block__mixer_token_mlp__prompt"
KN = NAME + "_kernel"

WS_Q = 0x000000
WS_K = 0x200000
WS_V = 0x400000
WS_H = 0x600000
WS_G = 0x800000
WS_O = 0x900000
WS_U = 0xB00000
WS_FL = 0xD00000
FL_LN = WS_FL
FL_QKV = WS_FL + 256 * 64
FL_U = WS_FL + 1024 * 64
FL_AT = WS_FL + 1792 * 64
WS_DBG = 0xE00000
WS_END = 0x1000000

STAMPS = os.environ.get("STAMPS", "0") == "1"
MFMA = "v_mfma_f32_32x32x16_bf16"
SPIN_MAX = 200000
QSCALE = 0.25 * math.log2(math.e)
SLEEP = int(os.environ.get("SLEEP", "1"))
EXP = set(os.environ.get("EXP", "").split(","))

L_R0 = 0
L_QS = 40960
L_YB0 = L_QS + 65536
L_AV = L_QS + 98304
L_CNT = L_AV + 16384
LDS_BYTES = L_CNT + 256


def f32bits(x):
    return struct.unpack("<I", struct.pack("<f", x))[0]


class Asm:
    def __init__(self):
        self.l = []
        self.n = 0

    def __call__(self, s):
        for line in s.strip("\n").split("\n"):
            self.l.append(line)

    def label(self, base):
        self.n += 1
        return f"L_{base}_{self.n}"

    def text(self):
        return "\n".join(self.l) + "\n"


class VM:
    def __init__(self, a):
        self.a = a
        self.ops = []

    def issue(self, tag, text):
        self.a(text)
        self.ops.append(tag)

    def wait(self, tags, extra=""):
        if not isinstance(tags, (list, tuple, set)):
            tags = [tags]
        idx = [i for i, t in enumerate(self.ops) if t in tags]
        if not idx:
            if extra:
                self.a(f"  s_waitcnt {extra}")
            return
        last = max(idx)
        n = len(self.ops) - 1 - last
        self.a(f"  s_waitcnt vmcnt({min(n, 63)}) {extra}".rstrip())
        self.ops = self.ops[last + 1:]

    def drained(self):
        self.ops = []


def srd(a, dst, ptr, nbytes, off=0):
    if off:
        a(f"  s_add_u32 s{dst}, s{ptr}, {off:#x}")
        a(f"  s_addc_u32 s{dst+1}, s{ptr+1}, 0")
        a(f"  s_and_b32 s{dst+1}, s{dst+1}, 0xffff")
    else:
        a(f"  s_mov_b32 s{dst}, s{ptr}")
        a(f"  s_and_b32 s{dst+1}, s{ptr+1}, 0xffff")
    a(f"  s_mov_b32 s{dst+2}, {nbytes:#x}")
    a(f"  s_mov_b32 s{dst+3}, 0x00020000")


def stamp(a, k):
    if not STAMPS:
        return
    a(f"  s_memrealtime s[98:99]")
    a(f"  s_waitcnt lgkmcnt(0)")
    a(f"  v_writelane_b32 v255, s98, {k}")


def cstamp(a, k):
    if not STAMPS:
        return
    a(f"  s_memtime s[98:99]")
    a(f"  s_waitcnt lgkmcnt(0)")
    a(f"  v_writelane_b32 v255, s98, {k}")


def stamp_flush(a):
    if not STAMPS:
        return
    a(f"  s_lshl_b32 s96, s2, 9")
    a(f"  s_add_u32 s96, s96, {WS_DBG:#x}")
    a(f"  v_lshrrev_b32 v254, 6, v0")
    a(f"  v_lshlrev_b32 v254, 6, v254")
    a(f"  v_and_b32 v253, 63, v0")
    a(f"  v_lshl_add_u32 v254, v253, 2, v254")
    a(f"  v_cmp_gt_u32 vcc, 16, v253")
    a(f"  s_and_saveexec_b64 s[100:101], vcc")
    a(f"  buffer_store_dword v255, v254, s[12:15], s96 offen")
    a(f"  s_mov_b64 exec, s[100:101]")


P_X, P_WQKV, P_WO, P_BX, P_W1, P_B1, P_W2, P_B2, P_GATE, P_OUT, P_DBG, P_WS = [40 + 2 * i for i in range(12)]
S_WS = 12
S_DBG = 64
TOK = 68


def get_token(a, vm, vt, vz):
    L = a.label("tok")
    Ld = a.label("tokd")
    a(f"  s_mov_b32 s97, 0")
    a(f"{L}:")
    a(f"  buffer_load_dwordx2 v[{vt}:{vt+1}], v{vz}, s[{S_DBG}:{S_DBG+3}], 0 offen sc1")
    a(f"  s_waitcnt vmcnt(0)")
    a(f"  v_readfirstlane_b32 s{TOK}, v{vt}")
    a(f"  v_readfirstlane_b32 s{TOK+1}, v{vt+1}")
    a(f"  s_add_u32 s97, s97, 1")
    a(f"  s_cmp_lg_u32 s{TOK}, 0")
    a(f"  s_cbranch_scc1 {Ld}")
    a(f"  s_cmp_gt_u32 s97, {SPIN_MAX}")
    a(f"  s_cbranch_scc1 {Ld}")
    a(f"  s_sleep 1")
    a(f"  s_branch {L}")
    a(f"{Ld}:")
    vm.drained()


def flag_load(vm, tag, vt, vaddr):
    vm.issue(tag, f"  buffer_load_dwordx2 v[{vt}:{vt+1}], v{vaddr}, s[{S_WS}:{S_WS+3}], 0 offen sc1")


def publish_pending(a, vm, vt):
    a(f"  v_mov_b32 v{vt}, s{TOK}")
    a(f"  v_mov_b32 v{vt+1}, s{TOK+1}")
    a(f"  s_mov_b64 exec, 1")
    vm.issue("flagst", f"  buffer_store_dwordx2 v[{vt}:{vt+1}], v252, s[{S_WS}:{S_WS+3}], s91 offen sc1")
    a(f"  s_mov_b64 exec, -1")


def flag_check(a, vm, tag, vt, vaddr, pend=None):
    vm.wait(tag)
    if pend is not None:
        publish_pending(a, vm, pend)
    if "isoU" in EXP or "isoY" in EXP:
        return
    L = a.label("fl")
    L1 = a.label("fl1")
    L2 = a.label("fl2")
    Ld = a.label("fld")
    a(f"  s_mov_b32 s97, 0")
    a(f"  v_cmp_eq_u64 vcc, s[{TOK}:{TOK+1}], v[{vt}:{vt+1}]")
    a(f"  s_cmp_eq_u64 vcc, exec")
    a(f"  s_cbranch_scc1 {Ld}")
    a(f"  s_andn2_b64 s[94:95], exec, vcc")
    a(f"  s_ff1_i32_b64 s96, s[94:95]")
    a(f"  s_lshl_b64 s[94:95], 1, s96")
    a(f"  s_mov_b64 exec, s[94:95]")
    a(f"{L1}:")
    a(f"  s_sleep {SLEEP}")
    a(f"  buffer_load_dwordx2 v[{vt}:{vt+1}], v{vaddr}, s[{S_WS}:{S_WS+3}], 0 offen sc1")
    a(f"  s_add_u32 s97, s97, 1")
    a(f"  s_waitcnt vmcnt(0)")
    a(f"  v_cmp_eq_u64 vcc, s[{TOK}:{TOK+1}], v[{vt}:{vt+1}]")
    a(f"  s_cmp_eq_u64 vcc, exec")
    a(f"  s_cbranch_scc1 {L2}")
    a(f"  s_cmp_gt_u32 s97, {SPIN_MAX}")
    a(f"  s_cbranch_scc0 {L1}")
    a(f"{L2}:")
    a(f"  s_mov_b64 exec, -1")
    a(f"{L}:")
    a(f"  v_cmp_eq_u64 vcc, s[{TOK}:{TOK+1}], v[{vt}:{vt+1}]")
    a(f"  s_cmp_eq_u64 vcc, exec")
    a(f"  s_cbranch_scc1 {Ld}")
    a(f"  s_add_u32 s97, s97, 1")
    a(f"  s_cmp_gt_u32 s97, {SPIN_MAX}")
    a(f"  s_cbranch_scc1 {Ld}")
    a(f"  s_andn2_b64 exec, exec, vcc")
    a(f"  buffer_load_dwordx2 v[{vt}:{vt+1}], v{vaddr}, s[{S_WS}:{S_WS+3}], 0 offen sc1")
    a(f"  s_mov_b64 exec, -1")
    a(f"  s_waitcnt vmcnt(0)")
    a(f"  s_branch {L}")
    a(f"{Ld}:")


def publish(a, vm, tags, s_off, vt, vz):
    a(f"  v_mov_b32 v{vt}, s{TOK}")
    a(f"  v_mov_b32 v{vt+1}, s{TOK+1}")
    vm.wait(tags)
    a(f"  s_mov_b64 exec, 1")
    vm.issue("flagst", f"  buffer_store_dwordx2 v[{vt}:{vt+1}], v{vz}, s[{S_WS}:{S_WS+3}], {s_off} offen sc1")
    a(f"  s_mov_b64 exec, -1")


def lds_barrier(a, cnt_off, target, vaddr, vt):
    L = a.label("lb")
    Ld = a.label("lbd")
    a(f"  v_mov_b32 v{vt}, 1")
    a(f"  s_mov_b64 exec, 1")
    a(f"  ds_add_u32 v{vaddr}, v{vt} offset:{cnt_off}")
    a(f"  s_mov_b64 exec, -1")
    a(f"  s_mov_b32 s97, 0")
    a(f"{L}:")
    a(f"  ds_read_b32 v{vt+1}, v{vaddr} offset:{cnt_off}")
    a(f"  s_waitcnt lgkmcnt(0)")
    a(f"  v_readfirstlane_b32 s96, v{vt+1}")
    a(f"  s_add_u32 s97, s97, 1")
    a(f"  s_cmp_ge_u32 s96, {target}")
    a(f"  s_cbranch_scc1 {Ld}")
    a(f"  s_cmp_gt_u32 s97, {SPIN_MAX*4}")
    a(f"  s_cbranch_scc1 {Ld}")
    a(f"  s_branch {L}")
    a(f"{Ld}:")


def lds_wait(a, cnt_off, target, vaddr, vt):
    L = a.label("lw")
    Ld = a.label("lwd")
    a(f"  s_mov_b32 s97, 0")
    a(f"{L}:")
    a(f"  ds_read_b32 v{vt+1}, v{vaddr} offset:{cnt_off}")
    a(f"  s_waitcnt lgkmcnt(0)")
    a(f"  v_readfirstlane_b32 s96, v{vt+1}")
    a(f"  s_add_u32 s97, s97, 1")
    a(f"  s_cmp_ge_u32 s96, {target}")
    a(f"  s_cbranch_scc1 {Ld}")
    a(f"  s_cmp_gt_u32 s97, {SPIN_MAX*4}")
    a(f"  s_cbranch_scc1 {Ld}")
    a(f"  s_branch {L}")
    a(f"{Ld}:")


def lds_wait_sleep(a, cnt_off, target, vaddr, vt):
    L = a.label("lws")
    Ld = a.label("lwsd")
    a(f"  s_mov_b32 s97, 0")
    a(f"{L}:")
    a(f"  ds_read_b32 v{vt+1}, v{vaddr} offset:{cnt_off}")
    a(f"  s_waitcnt lgkmcnt(0)")
    a(f"  v_readfirstlane_b32 s96, v{vt+1}")
    a(f"  s_add_u32 s97, s97, 1")
    a(f"  s_cmp_ge_u32 s96, {target}")
    a(f"  s_cbranch_scc1 {Ld}")
    a(f"  s_cmp_gt_u32 s97, {SPIN_MAX*4}")
    a(f"  s_cbranch_scc1 {Ld}")
    a(f"  s_sleep 4")
    a(f"  s_branch {L}")
    a(f"{Ld}:")


def lds_signal(a, cnt_off, vaddr, vt):
    a(f"  v_mov_b32 v{vt}, 1")
    a(f"  s_mov_b64 exec, 1")
    a(f"  ds_add_u32 v{vaddr}, v{vt} offset:{cnt_off}")
    a(f"  s_mov_b64 exec, -1")


def cap(a, fn, *args):
    saved = a.l
    a.l = []
    fn(*args)
    out = a.l
    a.l = saved
    return out


def groups(lines):
    out, cur = [], []
    for l in lines:
        cur.append(l)
        if "buffer_load" in l:
            out.append("\n".join(cur))
            cur = []
    if cur:
        if out:
            out[-1] += "\n" + "\n".join(cur)
        else:
            out.append("\n".join(cur))
    return out


def weave(a, mf, fill):
    per = (len(fill) + len(mf) - 1) // len(mf) if fill else 0
    for i, m in enumerate(mf):
        a(m)
        for x in fill[i * per:(i + 1) * per]:
            a(x)


def gen(a):
    a(f"""
.text
.globl {KN}
.p2align 8
.type {KN},@function
{KN}:
  s_cmp_ge_u32 s2, 256
  s_cbranch_scc1 L_end
  s_load_dwordx16 s[40:55], s[0:1], 0
  s_load_dwordx8 s[56:63], s[0:1], 64
  v_lshrrev_b32 v1, 6, v0
  v_and_b32 v2, 63, v0
  v_mov_b32 v252, 0
""")
    if "nocodepf" not in EXP:
        a(f"""
  s_getpc_b64 s[84:85]
L_pc0:
  s_and_b32 s84, s84, 0xffffff00
  s_and_b32 s85, s85, 0xffff
  s_mov_b32 s86, L_end - {KN}
  s_mov_b32 s87, 0x00020000
  v_lshlrev_b32 v3, 7, v0
  buffer_load_dword v253, v3, s[84:87], 0 offen
""")
    a(f"""
  v_mov_b32 v251, {L_CNT}
  v_readfirstlane_b32 s3, v1
  v_lshlrev_b32 v4, 2, v2
  v_add_u32 v4, {L_CNT}, v4
  ds_write_b32 v4, v252
  s_and_b32 s81, s2, 7               ; xcd
  s_lshr_b32 s82, s2, 3              ; idx
  s_waitcnt lgkmcnt(0)
  s_barrier
""")
    srd(a, S_WS, P_WS, WS_END)
    srd(a, S_DBG, P_DBG, 256)
    stamp(a, 0)
    a("""
  s_cmp_ge_u32 s3, 4
  s_cbranch_scc1 L_attn
""")
    gwaves(a)
    awaves(a)
    a("""
L_end:
  s_endpgm
""")


DR = 16
LF = 80
ACC = 96
NY, NO, NU = 22, 8, 32
NYS = 17


def yslot(k):
    if k < 4:
        return 0, k * 2048
    if k < 12:
        return 1, (k - 4) * 2048
    return 2, (k - 12) * 2048


REG_M0 = {0: "s76", 1: "s77", 2: "s74"}
REG_TR = {0: 232, 1: 234, 2: 246}


def trreads(a, reg, off, buf):
    f = LF + 8 * buf
    base = REG_TR[reg]
    for b in range(2):
        a(f"  ds_read_b64_tr_b16 v[{f+4*b}:{f+4*b+1}], v{base+b} offset:{off}")
        a(f"  ds_read_b64_tr_b16 v[{f+4*b+2}:{f+4*b+3}], v{base+b} offset:{off+1024}")


def dma_y(a, vm, i):
    reg, off = yslot(i % NYS)
    if i < NY:
        a(f"  s_lshl_b32 s87, s46, 16")
        v0, sd = 242, 20
        adv = ["  s_add_u32 s46, s46, 1", "  s_cmp_eq_u32 s46, 22\n  s_cselect_b32 s46, 0, s46"]
    else:
        a(f"  s_lshl_b32 s87, s44, 14")
        v0, sd = 244, 24
        adv = ["  s_add_u32 s44, s44, 1", "  s_and_b32 s44, s44, 7"]
    a(f"  s_add_u32 m0, {REG_M0[reg]}, {off}")
    a(adv[0])
    nt = " nt" if ("w2nt" in EXP and i < NY) else ""
    vm.issue(("yd", i), f"  buffer_load_dwordx4 v{v0}, s[{sd}:{sd+3}], s87 offen{nt} lds")
    a(f"  s_add_u32 m0, {REG_M0[reg]}, {off+1024}")
    a(adv[1])
    vm.issue(("yd", i), f"  buffer_load_dwordx4 v{v0+1}, s[{sd}:{sd+3}], s87 offen{nt} lds")


def dma_u(a, vm, i):
    off = (i % 5) * 2048
    a(f"  s_mul_i32 s87, s42, {16*2752}")
    a(f"  s_add_u32 m0, s74, {off}")
    a(f"  s_add_u32 s42, s42, 1")
    nt = " nt" if "w1dnt" in EXP else ""
    vm.issue(("uw", i), f"  buffer_load_dwordx4 v240, s[16:19], s87 offen{nt} lds")
    a(f"  s_add_u32 m0, s74, {off+1024}")
    a(f"  s_and_b32 s42, s42, 31")
    vm.issue(("uw", i), f"  buffer_load_dwordx4 v241, s[16:19], s87 offen{nt} lds")


def gwaves(a):
    vm = VM(a)
    srd(a, 4, P_X, 2048 * 512 * 2)
    srd(a, 16, P_W1, 2048 * 1376 * 2)
    srd(a, 20, P_W2, 1376 * 2048 * 2)
    srd(a, 24, P_WO, 512 * 512 * 2)
    srd(a, 28, P_WS, 86 * 16 * 1024, WS_U)
    srd(a, 32, P_OUT, 2048 * 512 * 2)
    a(f"""
  s_and_b32 s83, s81, 3
  s_mul_i32 s83, s83, 22
  s_add_u32 s83, s83, s82
  s_lshr_b32 s70, s83, 2             ; U ft
  s_lshr_b32 s84, s81, 2
  s_lshl_b32 s84, s84, 2
  s_and_b32 s83, s83, 3
  s_add_u32 s71, s84, s83            ; U dt
  s_lshl_b32 s72, s81, 2
  s_and_b32 s83, s82, 3
  s_add_u32 s72, s72, s83            ; Y st
  s_lshr_b32 s73, s82, 2             ; Y dt
  s_mul_i32 s74, s3, 10240
  s_lshl_b32 s76, s3, 13
  s_add_u32 s76, s76, {L_YB0}
  s_lshl_b32 s77, s3, 14
  s_add_u32 s77, s77, {L_QS}
  v_lshlrev_b32 v250, 4, v2
  v_lshrrev_b32 v7, 3, v2
  v_and_b32 v8, 7, v2
  v_bfe_u32 v9, v7, 1, 1
  v_lshlrev_b32 v9, 2, v9
  v_xor_b32 v8, v8, v9
  v_lshlrev_b32 v8, 4, v8
  s_movk_i32 s83, 2752
  v_mul_lo_u32 v9, v7, s83
  v_add_u32 v9, v9, v8
  s_mul_i32 s83, s3, {512*2752}
  s_lshl_b32 s84, s70, 7
  s_add_u32 s83, s83, s84
  v_add_u32 v240, s83, v9
  v_add_u32 v241, {8*2752}, v240
  s_mul_i32 s42, s82, 3
  s_lshr_b32 s42, s42, 1
  s_and_b32 s42, s42, {0 if "norotU" in EXP else 31}
  s_mov_b32 s43, s42
  s_cmp_lt_u32 s2, 176
  s_cbranch_scc0 L_g_nopf
""")
    for i in range(5):
        dma_u(a, vm, i)
    if "now1t" not in EXP:
        a(f"""
  s_and_b32 s83, s81, 3
  s_mul_i32 s83, s83, 22
  s_lshr_b32 s83, s83, 2
  s_lshl_b32 s83, s83, 7
  s_lshl_b32 s84, s82, 2
  s_add_u32 s84, s84, s3
  s_mul_i32 s84, s84, 24
  v_add_u32 v13, s84, v7
  s_movk_i32 s85, 2752
  v_mul_lo_u32 v13, v13, s85
  v_add_u32 v13, s83, v13
  v_and_b32 v13, 0xffffff80, v13
  v_and_b32 v14, 7, v2
  v_lshl_add_u32 v13, v14, 7, v13
""")
        for k in range(3):
            a(f"  s_mov_b32 s85, {k*8*2752}")
            a(f"  buffer_load_dword v{208+k}, v13, s[16:19], s85 offen{' nt' if 'w1nt' in EXP else ''}")
    a(f"""
L_g_nopf:
  s_mul_i32 s83, s3, {22*16*4096}
  s_lshl_b32 s84, s72, 7
  s_add_u32 s83, s83, s84
  v_lshl_add_u32 v9, v7, 12, v8
  v_add_u32 v242, s83, v9
  v_add_u32 v243, 0x8000, v242
  s_lshl_b32 s83, s3, 17
  s_lshl_b32 s84, s73, 7
  s_add_u32 s83, s83, s84
  v_lshl_add_u32 v9, v7, 10, v8
  v_add_u32 v244, s83, v9
  v_add_u32 v245, 0x2000, v244
  v_and_b32 v7, 15, v2
  v_lshrrev_b32 v8, 2, v7
  v_lshrrev_b32 v9, 5, v2
  v_lshl_add_u32 v9, v9, 2, v8
  v_lshlrev_b32 v10, 7, v9
  v_bfe_u32 v9, v9, 1, 1
  v_lshl_add_u32 v10, v9, 6, v10
  v_bfe_u32 v9, v2, 4, 1
  v_lshl_add_u32 v10, v9, 5, v10
  v_and_b32 v7, 3, v7
  v_lshl_add_u32 v10, v7, 3, v10
  v_xor_b32 v11, 64, v10
  v_add_u32 v246, s74, v10
  v_add_u32 v247, s74, v11
  v_add_u32 v232, s76, v10
  v_add_u32 v233, s76, v11
  v_add_u32 v234, s77, v10
  v_add_u32 v235, s77, v11
  s_and_b32 s44, s82, 3
  s_lshl_b32 s44, s44, 1
  s_lshr_b32 s45, s82, 2
  s_add_u32 s44, s44, s45
  s_and_b32 s44, s44, {0 if "norotY" in EXP else 7}
  s_mov_b32 s45, s44
  s_mul_i32 s46, s82, {0 if "norotY" in EXP else 22}
  s_lshr_b32 s46, s46, 5
  s_mov_b32 s47, s46
  s_cmp_ge_u32 s2, 192
  s_cbranch_scc1 L_ln
""")
    get_token(a, vm, 4, 252)
    stamp(a, 4)
    a("""
  s_cmp_lt_u32 s2, 176
  s_cbranch_scc0 L_nou
""")
    uphase(a, vm)
    a("  s_branch L_ystart")
    ln(a, vm)
    stamp(a, 4)
    a("L_nou:")
    vm.ops = []
    a(f"""
  s_lshl_b32 s91, s2, 2
  s_add_u32 s91, s91, s3
  s_lshl_b32 s91, s91, 6
  s_add_u32 s91, s91, {WS_FL + 3000*64:#x}
  s_sub_u32 s83, s82, 22
  s_lshl_b32 s83, s83, 2
  s_add_u32 s83, s83, s3
  v_lshrrev_b32 v3, 2, v2
  v_and_b32 v4, 3, v2
  s_lshl_b32 s84, s83, 4
  v_add_u32 v3, s84, v3
  v_lshlrev_b32 v3, 12, v3
  v_lshl_add_u32 v3, v4, 7, v3
  s_lshl_b32 s84, s81, 9
  v_add_u32 v3, s84, v3
  s_lshl_b32 s84, s83, 13
  v_lshlrev_b32 v4, 7, v2
  v_add_u32 v4, s84, v4
""")
    if "nopf" not in EXP:
        for k in range(3):
            a(f"  s_mov_b32 s85, {k*640*4096}")
            a(f"  buffer_load_dword v{208+k}, v3, s[20:23], s85 offen")
        for k in range(2):
            a(f"  s_mov_b32 s85, {k*40*8192}")
            a(f"  buffer_load_dword v{212+k}, v4, s[24:27], s85 offen")
    lds_wait(a, 20, 4, 251, 10)
    for i in range(7):
        dma_y(a, vm, i)
    a("L_ystart:")
    vm.ops = []
    yphase(a, vm)


def uphase(a, vm):
    BIAS = 224
    srd(a, 36, P_B1, 1376 * 2)
    a(f"""
  v_and_b32 v3, 15, v2
  s_lshl_b32 s83, s3, 4
  v_add_u32 v3, s83, v3
  v_lshlrev_b32 v3, 2, v3
  s_lshr_b32 s83, s71, 1
  v_add_u32 v3, s83, v3
  v_lshlrev_b32 v3, 6, v3
  v_add_u32 v3, {FL_LN:#x}, v3
""")
    flag_load(vm, "fl", 4, 3)
    a(f"""
  s_lshl_b32 s83, s71, 18
  s_lshl_b32 s84, s3, 15
  s_add_u32 s83, s83, s84
  s_add_u32 s83, s83, {WS_H:#x}
  v_add_u32 v6, s83, v250
  v_add_u32 v7, 0x20000, v6
  v_lshrrev_b32 v8, 5, v2
  v_lshlrev_b32 v8, 3, v8
  s_lshl_b32 s83, s70, 7
  s_and_b32 s84, s3, 1
  s_lshl_b32 s84, s84, 6
  s_add_u32 s83, s83, s84
  v_add_u32 v8, s83, v8
""")
    for q in range(4):
        vm.issue("bias", f"  buffer_load_dwordx2 v[{BIAS+2*q}:{BIAS+2*q+1}], v8, s[36:39], 0 offen offset:{q*16}")
    flag_check(a, vm, "fl", 4, 3)
    if "uafterq" in EXP:
        lds_wait_sleep(a, int(os.environ.get("UQCNT", "20")), 4, 251, 10)
    stamp(a, 5)

    def direct(i):
        r = DR + 8 * (i % 8)
        a(f"  s_lshl_b32 s86, s43, 10")
        vm.issue(("ud", i), f"  buffer_load_dwordx4 v[{r}:{r+3}], v6, s[12:15], s86 offen sc1")
        a(f"  s_add_u32 s43, s43, 1")
        vm.issue(("ud", i), f"  buffer_load_dwordx4 v[{r+4}:{r+7}], v7, s[12:15], s86 offen sc1")
        a(f"  s_and_b32 s43, s43, 31")

    for i in range(8):
        direct(i)
    trreads(a, 2, 0, 0)
    vm.wait([("ud", 0)])
    for i in range(NU):
        if i + 1 < NU:
            vm.wait([("ud", i + 1), ("uw", i + 1)], "lgkmcnt(0)")
        else:
            a(f"  s_waitcnt lgkmcnt(0)")
        if i == 26:
            lds_wait(a, 20, 4, 251, 10)
        if i == int(os.environ.get("ADSTEP", "28")):
            lds_signal(a, 36, 251, 10)
        r = DR + 8 * (i % 8)
        f = LF + 8 * (i & 1)
        mf = []
        for b in range(2):
            for aa in range(2):
                d = ACC + 16 * (aa + 2 * b)
                c = "0" if i == 0 else f"v[{d}:{d+15}]"
                mf.append(f"  {MFMA} v[{d}:{d+15}], v[{f+4*aa}:{f+4*aa+3}], v[{r+4*b}:{r+4*b+3}], {c}")
        fill = []
        if i + 1 < NU:
            fill += cap(a, trreads, a, 2, ((i + 1) % 5) * 2048, (i + 1) & 1)
        if i + 5 < NU:
            fill += groups(cap(a, dma_u, a, vm, i + 5))
        if 27 <= i < 31:
            fill += groups(cap(a, dma_y, a, vm, i - 27))
        weave(a, mf, fill)
        if i + 8 < NU:
            direct(i + 8)
    stamp(a, 6)
    a(f"""
  v_add_u32 v8, s77, v250
  s_lshl_b32 s83, s3, 12
  s_add_u32 s83, s83, {L_QS}
  v_add_u32 v9, s83, v250
  s_nop 7
  s_nop 7
""")
    for tau in range(4):
        for q in range(4):
            a(f"  ds_write_b128 v8, v[{ACC+16*tau+4*q}:{ACC+16*tau+4*q+3}] offset:{tau*4096 + q*1024}")
    a("  s_waitcnt lgkmcnt(0)")
    lds_barrier(a, 0, 4, 251, 10)
    R = DR
    for sg in range(4):
        for q in range(4):
            a(f"  ds_read_b128 v[{R+16*sg+4*q}:{R+16*sg+4*q+3}], v9 offset:{sg*16384 + q*1024}")
    for q in range(4):
        a(f"  v_lshlrev_b32 v{ACC+4*q}, 16, v{BIAS+2*q}")
        a(f"  v_and_b32 v{ACC+4*q+1}, 0xffff0000, v{BIAS+2*q}")
        a(f"  v_lshlrev_b32 v{ACC+4*q+2}, 16, v{BIAS+2*q+1}")
        a(f"  v_and_b32 v{ACC+4*q+3}, 0xffff0000, v{BIAS+2*q+1}")
    a("  s_waitcnt lgkmcnt(0)")
    lds_signal(a, 12, 251, 10)
    for i in range(16):
        a(f"  v_add_f32 v{R+i}, v{R+i}, v{R+16+i}")
        a(f"  v_add_f32 v{R+32+i}, v{R+32+i}, v{R+48+i}")
        a(f"  v_add_f32 v{ACC+i}, v{ACC+i}, v{R+i}")
        a(f"  v_add_f32 v{ACC+i}, v{ACC+i}, v{R+32+i}")
    k = math.sqrt(2.0 / math.pi)
    c1 = -2.0 * k * math.log2(math.e)
    c2 = c1 * 0.044715
    a(f"  s_mov_b32 s83, {f32bits(c2):#x}")
    a(f"  v_mov_b32 v10, {f32bits(c1):#x}")
    for i in range(16):
        a(f"  v_mul_f32 v{R+i}, v{ACC+i}, v{ACC+i}")
    for i in range(16):
        a(f"  v_fma_f32 v{R+i}, v{R+i}, s83, v10")
    for i in range(16):
        a(f"  v_mul_f32 v{R+i}, v{R+i}, v{ACC+i}")
    for i in range(16):
        a(f"  v_exp_f32 v{R+i}, v{R+i}")
    for i in range(16):
        a(f"  v_add_f32 v{R+i}, 1.0, v{R+i}")
    for i in range(16):
        a(f"  v_rcp_f32 v{R+i}, v{R+i}")
    for i in range(16):
        a(f"  v_mul_f32 v{R+i}, v{R+i}, v{ACC+i}")
    for i in range(8):
        a(f"  v_cvt_pk_bf16_f32 v{R+16+i}, v{R+2*i}, v{R+2*i+1}")
    a(f"""
  s_lshl_b32 s83, s70, 1
  s_and_b32 s84, s3, 1
  s_add_u32 s83, s83, s84
  s_lshl_b32 s84, s71, 1
  s_lshr_b32 s85, s3, 1
  s_add_u32 s84, s84, s85
  s_lshl_b32 s85, s83, 15
  s_lshl_b32 s86, s84, 10
  s_add_u32 s85, s85, s86
  v_add_u32 v8, s85, v250
  s_movk_i32 s86, 0x4000
""")
    vm.issue("st", f"  buffer_store_dwordx4 v[{R+16}:{R+19}], v8, s[28:31], 0 offen sc1")
    vm.issue("st", f"  buffer_store_dwordx4 v[{R+20}:{R+23}], v8, s[28:31], s86 offen sc1")
    a(f"""
  s_lshl_b32 s83, s83, 4
  s_add_u32 s83, s83, s84
  s_lshl_b32 s83, s83, 6
  s_add_u32 s91, s83, {FL_U:#x}
""")
    lds_wait(a, 12, 4, 251, 10)
    for i in range(4, 7):
        dma_y(a, vm, i)
    publish(a, vm, "st", "s91", 10, 252)
    stamp(a, 7)


def yphase(a, vm):
    NS = NY + NO
    GV = 224
    srd(a, 36, P_B2, 2048 * 2)
    a(f"""
  v_min_u32 v3, 21, v2
  v_lshrrev_b32 v4, 1, v3
  s_mul_i32 s83, s3, 11
  v_add_u32 v4, s83, v4
  v_min_u32 v4, 42, v4
  v_lshlrev_b32 v4, 4, v4
  v_and_b32 v3, 1, v3
  s_lshl_b32 s83, s73, 1
  v_add3_u32 v3, v3, v4, s83
  v_lshlrev_b32 v3, 6, v3
  v_add_u32 v3, {FL_U:#x}, v3
  v_subrev_u32 v4, 22, v2
  v_and_b32 v4, 7, v4
  s_lshl_b32 s83, s72, 3
  v_add_u32 v4, s83, v4
  v_lshlrev_b32 v4, 6, v4
  v_add_u32 v4, {FL_LN:#x}, v4
  v_cmp_lt_u32 vcc, 21, v2
  s_nop 1
  v_cndmask_b32 v3, v3, v4, vcc
""")
    flag_load(vm, "fl", 4, 3)
    for i in range(7, NYS):
        dma_y(a, vm, i)
    a(f"""
  v_and_b32 v8, 7, v2
  s_lshl_b32 s83, s3, 3
  v_add_u32 v8, s83, v8
  v_lshlrev_b32 v8, 5, v8
  v_add_u32 v8, s72, v8
  v_lshlrev_b32 v8, 6, v8
  v_add_u32 v8, {FL_AT:#x}, v8
  s_mul_i32 s83, s3, {22*16384}
  s_lshl_b32 s84, s73, 11
  s_add_u32 s83, s83, s84
  v_add_u32 v12, s83, v250
  s_lshl_b32 s83, s72, 16
  s_lshl_b32 s84, s3, 13
  s_add_u32 s83, s83, s84
  s_add_u32 s83, s83, {WS_O:#x}
  v_add_u32 v13, s83, v250
  v_add_u32 v14, 0x8000, v13
  v_and_b32 v7, 31, v2
  s_lshl_b32 s83, s72, 6
  v_add_u32 v7, s83, v7
  v_lshlrev_b32 v9, 1, v7
""")
    vm.issue("g", f"  buffer_load_ushort v{GV+2}, v9, s[36:39], 0 offen")
    vm.issue("g", f"  buffer_load_ushort v{GV+3}, v9, s[36:39], 0 offen offset:64")
    flag_check(a, vm, "fl", 4, 3)
    stamp(a, 8)
    a(f"""
  v_lshlrev_b32 v9, 2, v7
  v_add_u32 v9, {WS_G:#x}, v9
""")
    vm.issue("g", f"  buffer_load_dword v{GV}, v9, s[12:15], 0 offen sc1")
    vm.issue("g", f"  buffer_load_dword v{GV+1}, v9, s[12:15], 0 offen offset:128 sc1")

    def direct(i):
        r = DR + 8 * (i % 8)
        if i < NY:
            a(f"  s_lshl_b32 s86, s47, 14")
            vm.issue(("yr", i), f"  buffer_load_dwordx4 v[{r}:{r+3}], v12, s[28:31], s86 offen sc1")
            a(f"  s_add_u32 s47, s47, 1")
            vm.issue(("yr", i), f"  buffer_load_dwordx4 v[{r+4}:{r+7}], v12, s[28:31], s86 offen offset:1024 sc1")
            a(f"  s_cmp_eq_u32 s47, 22")
            a(f"  s_cselect_b32 s47, 0, s47")
        else:
            a(f"  s_lshl_b32 s86, s45, 10")
            vm.issue(("yr", i), f"  buffer_load_dwordx4 v[{r}:{r+3}], v13, s[12:15], s86 offen sc1")
            a(f"  s_add_u32 s45, s45, 1")
            vm.issue(("yr", i), f"  buffer_load_dwordx4 v[{r+4}:{r+7}], v14, s[12:15], s86 offen sc1")
            a(f"  s_and_b32 s45, s45, 7")

    for i in range(8):
        direct(i)
    ACHK = int(os.environ.get("ACHK", "18"))
    nextd = 8
    vm.wait([("yr", 0), ("yd", 0)])
    trreads(a, *yslot(0), 0)
    for i in range(NS):
        if i + 1 < NS:
            vm.wait([("yr", i + 1), ("yd", i + 1)], "lgkmcnt(0)")
        else:
            a(f"  s_waitcnt lgkmcnt(0)")
        r = DR + 8 * (i % 8)
        f = LF + 8 * (i & 1)
        if i == NY:
            stamp(a, 9)
            a("  s_nop 7")
            a("  s_nop 7")
            a(f"  v_sub_f32 v{GV+4}, 1.0, v{GV}")
            a(f"  v_sub_f32 v{GV+5}, 1.0, v{GV+1}")
            for b in range(2):
                for aa in range(2):
                    d = ACC + 16 * (aa + 2 * b)
                    for q in range(16):
                        a(f"  v_mul_f32 v{d+q}, v{d+q}, v{GV+4+b}")
            a("  s_nop 1")
        mf = []
        for b in range(2):
            for aa in range(2):
                d = ACC + 16 * (aa + 2 * b)
                c = "0" if i == 0 else f"v[{d}:{d+15}]"
                if i < NY:
                    A = f"v[{r+4*aa}:{r+4*aa+3}]"
                    B = f"v[{f+4*b}:{f+4*b+3}]"
                else:
                    A = f"v[{f+4*aa}:{f+4*aa+3}]"
                    B = f"v[{r+4*b}:{r+4*b+3}]"
                mf.append(f"  {MFMA} v[{d}:{d+15}], {A}, {B}, {c}")
        fill = []
        if i + 1 < NS:
            fill += cap(a, trreads, a, *yslot((i + 1) % NYS), (i + 1) & 1)
        if i + NYS < NS:
            fill += groups(cap(a, dma_y, a, vm, i + NYS))
        weave(a, mf, fill)
        if i == ACHK - 4:
            flag_load(vm, "fa", 10, 8)
        if i == ACHK:
            if "chainB" not in EXP:
                flag_check(a, vm, "fa", 10, 8)
            stamp(a, 13)
        while nextd <= i + 8 and nextd < NS and (nextd < NY or i >= ACHK):
            direct(nextd)
            nextd += 1
    stamp(a, 10)
    a(f"""
  v_add_u32 v8, s77, v250
  s_lshl_b32 s83, s3, 12
  s_add_u32 s83, s83, {L_QS}
  v_add_u32 v9, s83, v250
  s_nop 7
  s_nop 7
""")
    for i in range(16):
        a(f"  ds_write_b128 v8, v[{ACC+4*i}:{ACC+4*i+3}] offset:{i*1024}")
    a("  s_waitcnt lgkmcnt(0)")
    lds_barrier(a, 4, 4, 251, 10)
    R = DR
    for sg in range(4):
        for q in range(4):
            a(f"  ds_read_b128 v[{R+16*sg+4*q}:{R+16*sg+4*q+3}], v9 offset:{sg*16384 + q*1024}")
    a(f"""
  s_lshr_b32 s83, s3, 1
  s_cmp_eq_u32 s83, 0
  s_cselect_b64 vcc, -1, 0
  v_cndmask_b32 v10, v{GV+5}, v{GV+4}, vcc
  v_cndmask_b32 v11, v{GV+3}, v{GV+2}, vcc
  v_lshlrev_b32 v11, 16, v11
  v_mul_f32 v10, v10, v11
  s_lshl_b32 s84, s83, 5
  v_add_u32 v7, s84, v7
  v_lshlrev_b32 v7, 10, v7
  s_lshl_b32 s84, s73, 7
  s_and_b32 s85, s3, 1
  s_lshl_b32 s85, s85, 6
  s_add_u32 s84, s84, s85
  v_add_u32 v7, s84, v7
  v_lshrrev_b32 v8, 5, v2
  v_lshl_add_u32 v7, v8, 4, v7
  s_waitcnt lgkmcnt(0)
""")
    for i in range(16):
        a(f"  v_add_f32 v{R+i}, v{R+i}, v{R+16+i}")
        a(f"  v_add_f32 v{R+32+i}, v{R+32+i}, v{R+48+i}")
        a(f"  v_add_f32 v{R+i}, v{R+i}, v10")
        a(f"  v_add_f32 v{R+i}, v{R+i}, v{R+32+i}")
    P = R + 16
    for q in range(4):
        a(f"  v_cvt_pk_bf16_f32 v{P+2*q}, v{R+4*q}, v{R+4*q+1}")
        a(f"  v_cvt_pk_bf16_f32 v{P+2*q+1}, v{R+4*q+2}, v{R+4*q+3}")
    a("  s_nop 1")
    for q in (0, 2):
        a(f"  v_permlane32_swap_b32 v{P+2*q}, v{P+2*q+2}")
        a(f"  v_permlane32_swap_b32 v{P+2*q+1}, v{P+2*q+3}")
    a(f"  buffer_store_dwordx4 v[{P}:{P+3}], v7, s[32:35], 0 offen")
    a(f"  buffer_store_dwordx4 v[{P+4}:{P+7}], v7, s[32:35], 0 offen offset:32")
    stamp(a, 11)
    if STAMPS:
        a("  s_waitcnt vmcnt(0)")
    stamp(a, 12)
    stamp_flush(a)
    if "dbgspan" in EXP:
        a(f"""
  s_waitcnt vmcnt(0)
  s_memrealtime s[98:99]
  s_waitcnt lgkmcnt(0)
  s_sub_u32 s98, s98, s{TOK}
  v_mov_b32 v10, s98
  s_mov_b64 exec, 1
  buffer_atomic_umax v10, v252, s[{S_DBG}:{S_DBG+3}], 0 offen offset:8
""")
    a("  s_endpgm")


def qkv(a):
    srd(a, 4, P_X, 2048 * 512 * 2)
    srd(a, 8, P_WQKV, 512 * 1536 * 2)
    a(f"""
  s_and_b32 s83, s81, 3
  s_lshl_b32 s83, s83, 2
  s_and_b32 s84, s82, 3
  s_add_u32 s36, s83, s84            ; st
  s_lshr_b32 s83, s81, 2
  s_mul_i32 s83, s83, 6
  s_lshr_b32 s84, s82, 2
  s_add_u32 s37, s83, s84            ; nt
  s_lshl_b32 s38, s3, 12
  s_add_u32 s38, s38, {L_QS}
""")
    VXA, VWA = 4, 8
    a("  v_lshrrev_b32 v3, 3, v2")
    a("  v_and_b32 v12, 7, v2")
    a("  s_lshl_b32 s83, s36, 17")
    for i in range(4):
        a(f"  s_lshl_b32 s84, s3, 5")
        a(f"  s_add_u32 s84, s84, {8*i}")
        a(f"  v_add_u32 v13, s84, v3")
        a(f"  v_lshrrev_b32 v14, 1, v13")
        a(f"  v_and_b32 v14, 7, v14")
        a(f"  v_xor_b32 v14, v14, v12")
        a(f"  v_lshlrev_b32 v14, 4, v14")
        a(f"  v_lshl_add_u32 v14, v13, 10, v14")
        a(f"  v_add_u32 v{VXA+i}, s83, v14")
    a("""
  v_lshrrev_b32 v3, 4, v2
  v_and_b32 v12, 15, v2
  v_lshrrev_b32 v13, 2, v12
  v_xor_b32 v13, v13, v3
  v_lshlrev_b32 v13, 2, v13
  v_and_b32 v12, 3, v12
  v_or_b32 v13, v13, v12
  v_lshlrev_b32 v13, 4, v13
  s_lshl_b32 s83, s37, 8
  v_add_u32 v13, s83, v13
  s_movk_i32 s85, 3072
""")
    for i in range(4):
        a(f"  s_lshl_b32 s84, s3, 4")
        a(f"  s_add_u32 s84, s84, {4*i}")
        a(f"  v_add_u32 v14, s84, v3")
        a(f"  v_mul_lo_u32 v14, v14, s85")
        a(f"  v_add_u32 v{VWA+i}, v14, v13")
    a(f"  s_and_b32 s39, s82, {0 if 'norotQ' in EXP else 7}")
    a("  s_mov_b32 s16, 0")

    def issue_chunk():
        a(f"  s_mul_i32 s87, s39, 196608")
        a(f"  s_lshl_b32 s86, s39, 7")
        a(f"  s_add_u32 s17, s38, s16")
        for i in range(4):
            a(f"  s_add_u32 m0, s17, {i*1024}")
            a(f"  s_nop 0")
            a(f"  buffer_load_dwordx4 v{VXA+i}, s[4:7], s86 offen lds")
            a(f"  s_add_u32 m0, s17, {16384 + i*1024}")
            a(f"  s_nop 0")
            a(f"  buffer_load_dwordx4 v{VWA+i}, s[8:11], s87 offen lds")
        a(f"  s_add_u32 s39, s39, 1")
        a(f"  s_and_b32 s39, s39, 7")
        a(f"  s_add_u32 s16, s16, 32768")
        a(f"  s_cmp_eq_u32 s16, 98304")
        a(f"  s_cselect_b32 s16, 0, s16")

    for c in range(3):
        issue_chunk()
    VXB, VWB, VXR, VWR = 16, 20, 22, 26
    a(f"""
  buffer_load_dwordx2 v[28:29], v252, s[{S_DBG}:{S_DBG+3}], 0 offen sc1
  s_and_b32 s88, s3, 1
  s_lshr_b32 s89, s3, 1
  v_and_b32 v3, 31, v2
  v_lshrrev_b32 v12, 5, v2
  s_lshl_b32 s84, s88, 6
  v_add_u32 v13, s84, v3
  v_lshrrev_b32 v14, 1, v13
  v_and_b32 v14, 7, v14
  v_lshlrev_b32 v13, 7, v13
  v_add_u32 v13, {L_QS}, v13
""")
    for ks in range(4):
        a(f"  v_or_b32 v15, {2*ks}, v12")
        a(f"  v_xor_b32 v15, v15, v14")
        a(f"  v_lshl_add_u32 v{VXB+ks}, v15, 4, v13")
        a(f"  v_mov_b32 v{VXR+ks}, v{VXB+ks}")
    a(f"""
  v_and_b32 v3, 15, v2
  v_lshrrev_b32 v13, 2, v3
  v_lshlrev_b32 v14, 11, v12
  v_lshl_add_u32 v14, v13, 8, v14
  v_bfe_u32 v15, v2, 4, 1
  v_lshl_add_u32 v14, v15, 5, v14
  v_and_b32 v15, 3, v3
  v_lshl_add_u32 v14, v15, 3, v14
  v_add_u32 v14, {L_QS + 0x4000}, v14
  s_lshl_b32 s84, s89, 1
""")
    for b in range(2):
        a(f"  s_add_u32 s85, s84, {b}")
        a(f"  v_xor_b32 v15, s85, v13")
        a(f"  v_lshl_add_u32 v{VWB+b}, v15, 6, v14")
        a(f"  v_mov_b32 v{VWR+b}, v{VWB+b}")
    FR, QA = 32, 96
    for i in range(0, 64, 2):
        a(f"  v_pk_mov_b32 v[{QA+i}:{QA+i+1}], v[252:253], v[252:253] op_sel:[0,0]")

    def reads(ks):
        f = FR + 16 * ks
        for aa in range(2):
            a(f"  ds_read_b128 v[{f+4*aa}:{f+4*aa+3}], v{VXR+ks} offset:{aa*4096}")
        for b in range(2):
            a(f"  ds_read_b64_tr_b16 v[{f+8+4*b}:{f+8+4*b+1}], v{VWR+b} offset:{ks*4096}")
            a(f"  ds_read_b64_tr_b16 v[{f+8+4*b+2}:{f+8+4*b+3}], v{VWR+b} offset:{ks*4096 + 1024}")

    def mfmas(ks, vmode):
        f = FR + 16 * ks
        for b in range(2):
            for aa in range(2):
                d = QA + 16 * (aa + 2 * b)
                xa = f"v[{f+4*aa}:{f+4*aa+3}]"
                wb = f"v[{f+8+4*b}:{f+8+4*b+3}]"
                if vmode:
                    a(f"  {MFMA} v[{d}:{d+15}], {xa}, {wb}, v[{d}:{d+15}]")
                else:
                    a(f"  {MFMA} v[{d}:{d+15}], {wb}, {xa}, v[{d}:{d+15}]")

    def poll(target_sgpr):
        L, Ld = a.label("qp"), a.label("qpd")
        a(f"  s_mov_b32 s97, 0")
        a(f"{L}:")
        a(f"  ds_read_b32 v31, v251 offset:16")
        a(f"  s_waitcnt lgkmcnt(0)")
        a(f"  v_readfirstlane_b32 s96, v31")
        a(f"  s_add_u32 s97, s97, 1")
        a(f"  s_cmp_ge_u32 s96, {target_sgpr}")
        a(f"  s_cbranch_scc1 {Ld}")
        a(f"  s_cmp_gt_u32 s97, {SPIN_MAX*4}")
        a(f"  s_cbranch_scc0 {L}")
        a(f"{Ld}:")

    def mainloop(vmode):
        L, L1, L2, L3 = a.label("qkv"), a.label("q1"), a.label("q2"), a.label("q3")
        stamp(a, 6)
        a("  s_waitcnt vmcnt(17)")
        lds_signal(a, 16, 251, 30)
        a("  s_mov_b32 s18, 4")
        poll("s18")
        stamp(a, 7)
        reads(0)
        reads(1)
        a("  s_mov_b32 s90, 0")
        a("  s_mov_b32 s19, 0")
        a(f"{L}:")
        a("  s_waitcnt lgkmcnt(6)")
        weave(a, cap(a, mfmas, 0, vmode), cap(a, reads, 2))
        a("  s_waitcnt lgkmcnt(6)")
        weave(a, cap(a, mfmas, 1, vmode), cap(a, reads, 3))
        a(f"  s_cmp_lt_u32 s90, 6")
        a(f"  s_cbranch_scc1 {L1}")
        a("  s_waitcnt vmcnt(0)")
        a(f"{L1}:")
        a("  s_waitcnt vmcnt(8) lgkmcnt(0)")
        lds_signal(a, 16, 251, 30)
        a("  s_add_u32 s18, s18, 4")
        a("  s_add_u32 s19, s19, 32768")
        a("  s_cmp_eq_u32 s19, 98304")
        a("  s_cselect_b32 s19, 0, s19")
        adv = [f"  v_add_u32 v{VXR+k}, s19, v{VXB+k}" for k in range(4)] + [f"  v_add_u32 v{VWR+k}, s19, v{VWB+k}" for k in range(2)]
        weave(a, cap(a, mfmas, 2, vmode), adv)
        poll("s18")
        weave(a, cap(a, mfmas, 3, vmode), cap(a, reads, 0) + cap(a, reads, 1))
        a(f"  s_cmp_lt_u32 s90, 5")
        a(f"  s_cbranch_scc0 {L2}")
        issue_chunk()
        a(f"{L2}:")
        a(f"  s_add_u32 s90, s90, 1")
        a(f"  s_cmp_lt_u32 s90, 8")
        a(f"  s_cbranch_scc1 {L}")
        a("  s_waitcnt lgkmcnt(0)")
        lds_signal(a, 20, 251, 30)
        stamp(a, 8)

    ST = 160
    vm = VM(a)

    def finish():
        Lok = a.label("tokok")
        a(f"  v_readfirstlane_b32 s{TOK}, v28")
        a(f"  v_readfirstlane_b32 s{TOK+1}, v29")
        a(f"  s_cmp_lg_u32 s{TOK}, 0")
        a(f"  s_cbranch_scc1 {Lok}")
        keep = list(vm.ops)
        get_token(a, vm, 28, 252)
        vm.ops = keep
        a(f"{Lok}:")
        a(f"""
  s_lshl_b32 s83, s37, 1
  s_add_u32 s83, s83, s89
  s_lshl_b32 s83, s83, 5
  s_lshl_b32 s84, s36, 1
  s_add_u32 s84, s84, s88
  s_add_u32 s83, s83, s84
  s_lshl_b32 s83, s83, 6
  s_add_u32 s91, s83, {FL_QKV:#x}
""")
        publish(a, vm, "st", "s91", 28, 252)
        lds_signal(a, 40, 251, 30)
        stamp(a, 9)
        a("  s_branch L_a_p1done")

    a("  s_cmp_ge_u32 s37, 8")
    a("  s_cbranch_scc1 L_vpath")
    mainloop(False)
    a("""
  v_and_b32 v3, 31, v2
  v_lshrrev_b32 v12, 5, v2
  s_lshl_b32 s83, s36, 7
  s_lshl_b32 s84, s88, 6
  s_add_u32 s83, s83, s84
  v_add_u32 v3, s83, v3
  v_lshlrev_b32 v3, 5, v3
  v_lshl_add_u32 v3, v12, 4, v3
  s_and_b32 s83, s37, 3
  s_lshl_b32 s83, s83, 3
  s_lshl_b32 s84, s89, 2
  s_add_u32 s83, s83, s84
  s_lshl_b32 s83, s83, 16
  s_lshr_b32 s84, s37, 2
  s_lshl_b32 s84, s84, 21
  s_add_u32 s83, s83, s84
  v_add_u32 v3, s83, v3
  s_cmp_ge_u32 s37, 4
  s_cbranch_scc1 L_noqs
""")
    a(f"  v_mov_b32 v4, {f32bits(QSCALE):#x}")
    a(f"  v_mov_b32 v5, {f32bits(QSCALE):#x}")
    for i in range(0, 64, 2):
        a(f"  v_pk_mul_f32 v[{QA+i}:{QA+i+1}], v[{QA+i}:{QA+i+1}], v[4:5]")
    a("L_noqs:")
    vm.ops = []
    for b in range(2):
        for aa in range(2):
            d = QA + 16 * (aa + 2 * b)
            for hh in range(2):
                t = ST + 4 * (2 * (aa + 2 * b) + hh)
                for q in range(4):
                    a(f"  v_cvt_pk_bf16_f32 v{t+q}, v{d+8*hh+2*q}, v{d+8*hh+2*q+1}")
                a(f"  s_mov_b32 s85, {(2*b+hh)*65536}")
                vm.issue("st", f"  buffer_store_dwordx4 v[{t}:{t+3}], v3, s[12:15], s85 offen offset:{aa*1024} sc1")
    finish()
    a("L_vpath:")
    mainloop(True)
    a(f"""
  v_and_b32 v3, 15, v2
  v_lshrrev_b32 v12, 5, v2
  v_lshlrev_b32 v3, 4, v3
  v_lshl_add_u32 v3, v12, 8, v3
  v_bfe_u32 v12, v2, 4, 1
  v_lshl_add_u32 v3, v12, 16, v3
  s_and_b32 s83, s37, 3
  s_lshl_b32 s83, s83, 3
  s_lshl_b32 s84, s89, 2
  s_add_u32 s83, s83, s84
  s_lshl_b32 s83, s83, 16
  s_lshl_b32 s84, s36, 2
  s_lshl_b32 s85, s88, 1
  s_add_u32 s84, s84, s85
  s_lshl_b32 s84, s84, 10
  s_add_u32 s83, s83, s84
  s_add_u32 s83, s83, {WS_V:#x}
  v_add_u32 v3, s83, v3
""")
    vm.ops = []
    for b in range(2):
        for aa in range(2):
            d = QA + 16 * (aa + 2 * b)
            for tt in range(2):
                t = ST + 4 * (2 * (aa + 2 * b) + tt)
                for q in range(4):
                    a(f"  v_cvt_pk_bf16_f32 v{t+q}, v{d+8*tt+2*q}, v{d+8*tt+2*q+1}")
                a(f"  s_mov_b32 s85, {2*b*65536}")
                vm.issue("st", f"  buffer_store_dwordx4 v[{t}:{t+3}], v3, s[12:15], s85 offen offset:{aa*1024 + tt*512} sc1")
    finish()


def ln(a, vm):
    vm.ops = []
    HOFF = L_QS
    XR, GR, FX = 16, 48, 80
    srd_ = []
    a("L_ln:")
    srd(a, 36, P_GATE, 1024)
    a(f"""
  s_sub_u32 s90, s2, 192             ; a
  v_lshrrev_b32 v3, 3, v2
  v_and_b32 v4, 7, v2
  s_lshl_b32 s83, s90, 5
  s_lshl_b32 s84, s3, 3
  s_add_u32 s83, s83, s84
  v_add_u32 v5, s83, v3              ; row
  v_lshlrev_b32 v6, 4, v4
  v_lshl_add_u32 v7, v5, 10, v6
""")
    for i in range(8):
        vm.issue("x", f"  buffer_load_dwordx4 v[{XR+4*i}:{XR+4*i+3}], v7, s[4:7], 0 offen offset:{i*128}")
    for i in range(8):
        vm.issue("x", f"  buffer_load_dwordx4 v[{GR+4*i}:{GR+4*i+3}], v6, s[36:39], 0 offen offset:{i*128}")
    vm.issue("tok", f"  buffer_load_dwordx2 v[144:145], v252, s[{S_DBG}:{S_DBG+3}], 0 offen sc1")
    stamp(a, 1)
    vm.wait("x")
    stamp(a, 2)
    for i in range(32):
        a(f"  v_lshlrev_b32 v{FX+2*i}, 16, v{XR+i}")
        a(f"  v_and_b32 v{FX+2*i+1}, 0xffff0000, v{XR+i}")
    for c in range(4):
        a(f"  v_add_f32 v{9+c}, v{FX+c}, v{FX+4+c}")
    for i in range(8, 64):
        a(f"  v_add_f32 v{9+(i&3)}, v{9+(i&3)}, v{FX+i}")
    a(f"  v_mov_b32 v13, 0")
    a(f"  v_mov_b32 v14, 0")
    for i in range(32):
        a(f"  v_dot2_f32_bf16 v{13+(i&1)}, v{XR+i}, v{GR+i}, v{13+(i&1)}")
    a("""
  v_add_f32 v9, v9, v10
  v_add_f32 v11, v11, v12
  v_add_f32 v9, v9, v11
  s_nop 2
  v_add_f32 v13, v13, v14
""")

    def red8(r):
        a(f"  s_nop 1")
        a(f"  v_add_f32_dpp v{r}, v{r}, v{r} quad_perm:[1,0,3,2] row_mask:0xf bank_mask:0xf")
        a(f"  s_nop 1")
        a(f"  v_add_f32_dpp v{r}, v{r}, v{r} quad_perm:[2,3,0,1] row_mask:0xf bank_mask:0xf")
        a(f"  s_nop 1")
        a(f"  v_add_f32_dpp v{r}, v{r}, v{r} row_half_mirror row_mask:0xf bank_mask:0xf")

    red8(9)
    red8(13)
    a(f"  v_mul_f32 v9, {f32bits(1.0/512):#x}, v9")
    for i in range(64):
        a(f"  v_sub_f32 v{FX+i}, v{FX+i}, v9")
    for c in range(4):
        a(f"  v_mul_f32 v{9+c}, v{FX+c}, v{FX+c}")
    for i in range(4, 64):
        a(f"  v_fmac_f32 v{9+(i&3)}, v{FX+i}, v{FX+i}")
    a("""
  v_add_f32 v9, v9, v10
  v_add_f32 v11, v11, v12
  v_add_f32 v9, v9, v11
""")
    red8(9)
    a(f"""
  v_mov_b32 v10, {f32bits(1e-5):#x}
  v_fmac_f32 v10, {f32bits(1.0/512):#x}, v9
  v_rsq_f32 v10, v10
  v_mul_f32 v13, {f32bits(-math.log2(math.e)):#x}, v13
  v_exp_f32 v13, v13
  s_nop 0
  v_add_f32 v13, 1.0, v13
  v_rcp_f32 v13, v13
  v_lshlrev_b32 v5, 2, v5
  v_add_u32 v5, {WS_G:#x}, v5
  v_cmp_eq_u32 vcc, 0, v4
  s_and_saveexec_b64 s[84:85], vcc
""")
    vm.issue("st", "  buffer_store_dword v13, v5, s[12:15], 0 offen sc1")
    a("  s_mov_b64 exec, -1")
    for i in range(64):
        a(f"  v_mul_f32 v{FX+i}, v{FX+i}, v10")
    for i in range(32):
        a(f"  v_cvt_pk_bf16_f32 v{XR+i}, v{FX+2*i}, v{FX+2*i+1}")
    a(f"""
  s_lshl_b32 s84, s3, 3
  v_add_u32 v3, s84, v3
  s_movk_i32 s85, 1088
  v_mul_lo_u32 v3, v3, s85
  v_add_u32 v3, v3, v6
  v_add_u32 v3, {HOFF}, v3
""")
    for i in range(8):
        a(f"  ds_write_b128 v3, v[{XR+4*i}:{XR+4*i+3}] offset:{i*128}")
    a(f"""
  v_and_b32 v3, 15, v2
  v_lshrrev_b32 v4, 2, v3
  v_lshrrev_b32 v5, 5, v2
  v_lshl_add_u32 v4, v5, 2, v4
  v_bfe_u32 v5, v2, 4, 1
  v_lshlrev_b32 v5, 5, v5
  v_and_b32 v3, 3, v3
  v_lshl_add_u32 v5, v3, 3, v5
  s_movk_i32 s85, 1088
  v_mul_lo_u32 v6, v4, s85
  v_add_u32 v6, v6, v5
  s_lshl_b32 s84, s3, 8
  s_add_u32 s84, s84, {HOFF}
  v_add_u32 v6, s84, v6
  s_lshl_b32 s83, s90, 11
  s_lshl_b32 s84, s3, 19
  s_add_u32 s84, s84, s83
  s_add_u32 s84, s84, {WS_H:#x}
  v_add_u32 v9, s84, v250
  s_waitcnt lgkmcnt(0)
""")
    lds_barrier(a, 24, 4, 251, 10)
    T = 16
    n = 0
    for db in range(4):
        for t in range(2):
            off = t * 17408 + db * 64
            a(f"  ds_read_b64_tr_b16 v[{T+4*n}:{T+4*n+1}], v6 offset:{off}")
            a(f"  ds_read_b64_tr_b16 v[{T+4*n+2}:{T+4*n+3}], v6 offset:{off+8*1088}")
            n += 1
    a("  s_waitcnt lgkmcnt(0)")
    lds_signal(a, 28, 251, 10)
    n = 0
    for db in range(4):
        for t2 in range(2):
            a(f"  s_mov_b32 s85, {db*131072}")
            vm.issue("st", f"  buffer_store_dwordx4 v[{T+4*n}:{T+4*n+3}], v9, s[12:15], s85 offen offset:{t2*1024} sc1")
            n += 1
    stamp(a, 3)
    vm.wait("tok")
    Lok = a.label("tokok")
    a(f"  v_readfirstlane_b32 s{TOK}, v144")
    a(f"  v_readfirstlane_b32 s{TOK+1}, v145")
    a(f"  s_cmp_lg_u32 s{TOK}, 0")
    a(f"  s_cbranch_scc1 {Lok}")
    keep = list(vm.ops)
    get_token(a, vm, 144, 252)
    vm.ops = keep
    a(f"{Lok}:")
    a(f"""
  s_lshl_b32 s83, s90, 2
  s_add_u32 s83, s83, s3
  s_lshl_b32 s83, s83, 6
  s_add_u32 s83, s83, {FL_LN:#x}
""")
    a("  s_mov_b32 s91, s83")
    publish(a, vm, "st", "s83", 144, 252)
    lds_signal(a, 32, 251, 10)
    lds_wait(a, 28, 4, 251, 10)


def awaves(a):
    vm = VM(a)
    S = 32
    MF, MD = 80, 96
    CM, CF, CD = 112, 128, 144
    KF = 160
    QF = 200
    VF = 208
    OA = 224
    NEG, GV, MX, MX2 = 240, 242, 244, 246
    CS = 248
    mask_pairs = [4, 6, 8, 10] + list(range(16, 40, 2))
    assert len(mask_pairs) == 16
    cscale = 0.25 * math.log2(math.e)
    a(f"""
L_attn:
  s_sub_u32 s3, s3, 4                ; aw
  s_setprio {os.environ.get("QPRIO", "2")}
  s_or_b32 s83, s2, s3
  s_cmp_lg_u32 s83, 0
  s_cbranch_scc1 L_a_notok
  s_memrealtime s[70:71]
  s_waitcnt lgkmcnt(0)
  s_or_b32 s70, s70, 1
  v_mov_b32 v4, s70
  v_mov_b32 v5, s71
  s_mov_b64 exec, 1
  buffer_store_dwordx2 v[4:5], v252, s[{S_DBG}:{S_DBG+3}], 0 offen sc1
  s_mov_b64 exec, -1
L_a_notok:
  s_cmp_lt_u32 s2, 192
  s_cbranch_scc0 L_a_noqkv
""")
    if "chainB" in EXP:
        lds_signal(a, 20, 251, 30)
        a("  s_endpgm")
    qkv(a)
    a("L_a_noqkv:")
    lds_signal(a, 20, 251, 30)
    if "nomall" not in EXP:
        srd(a, 76, P_W1, 2048 * 1376 * 2)
        srd(a, 84, P_W2, 1376 * 2048 * 2)
        srd(a, 88, P_WO, 512 * 512 * 2)
        a(f"""
  s_setprio 0
  s_sub_u32 s92, s2, 192
  s_lshl_b32 s92, s92, 2
  s_add_u32 s92, s92, s3
  s_mul_i32 s93, s92, 22016
  v_lshlrev_b32 v13, 7, v2           ; one lane per 128B line
  s_lshl_b32 s94, s92, 11
""")
        lds_wait(a, int(os.environ.get("PFCNT", "32")), 4, 251, 30)
        for k in range(3 if "now1t" in EXP else 0):
            a(f"  s_add_u32 s95, s93, {k*8192}")
            a(f"  buffer_load_dword v{32+k}, v13, s[76:79], s95 offen")
        for k in range(0 if "w2nt" in EXP else 3):
            a(f"  s_add_u32 s95, s93, {k*8192}")
            a(f"  buffer_load_dword v{36+k}, v13, s[84:87], s95 offen")
        a(f"  v_cmp_gt_u32 vcc, 16, v2")
        a(f"  s_and_saveexec_b64 s[92:93], vcc")
        a(f"  buffer_load_dword v40, v13, s[88:91], s94 offen")
        a(f"  s_mov_b64 exec, -1")
    a("L_a_p1done:")
    if "chainB" in EXP:
        a("  s_endpgm")
    a(f"""
  s_setprio 2
  s_lshl_b32 s70, s81, 2
  s_lshr_b32 s83, s82, 3
  s_add_u32 s70, s70, s83            ; head
  s_and_b32 s83, s82, 7
  s_lshl_b32 s71, s83, 3             ; qb0
  s_lshl_b32 s83, s3, 1
  s_add_u32 s72, s71, s83
  v_and_b32 v3, 31, v2
  v_lshrrev_b32 v4, 5, v2
  v_lshlrev_b32 v5, 5, v3
  v_lshl_add_u32 v5, v4, 4, v5
  s_lshl_b32 s83, s70, 16
  v_add_u32 v5, s83, v5
  v_and_b32 v6, 15, v2
  v_lshlrev_b32 v6, 4, v6
  v_lshl_add_u32 v6, v4, 8, v6
  v_add_u32 v9, {L_AV}, v6
  v_add_u32 v6, s83, v6
  v_add_u32 v6, {WS_V:#x}, v6
  v_lshlrev_b32 v7, 4, v2
  s_lshl_b32 s83, s70, 10
  s_add_u32 s83, s83, {WS_O:#x}
  v_add_u32 v7, s83, v7
  v_lshlrev_b32 v8, 2, v3
  v_add_u32 v8, {WS_G:#x}, v8        ; g base (+qb*128)
  v_mov_b32 v{NEG}, {f32bits(-1e30):#x}
  v_mov_b32 v{CS}, {f32bits(cscale):#x}
  v_mov_b32 v{CS+1}, {f32bits(cscale):#x}
  v_lshlrev_b32 v10, 2, v4
""")
    for r in range(16):
        a(f"  v_add_u32 v11, {(r&3) + 8*(r>>2)}, v10")
        a(f"  v_cmp_le_u32 vcc, v11, v3")
        a(f"  s_nop 1")
        a(f"  v_cndmask_b32 v{MF+r}, 0, v{NEG}, vcc")
        a(f"  v_cndmask_b32 v{MD+r}, v{NEG}, v252, vcc")
    for i in range(16):
        a(f"  v_mov_b32 v{VF+i}, 0x3f803f80")
    a(f"  v_cmp_gt_u32 s[74:75], 16, v3")
    a(f"""
  s_lshr_b32 s84, s70, 2
  s_lshr_b32 s85, s72, 1
  s_lshl_b32 s86, s84, 5
  s_add_u32 s86, s86, s85
  s_lshl_b32 s86, s86, 6
  s_add_u32 s86, s86, {FL_QKV:#x}    ; Q flag
  v_mov_b32 v12, s86
""")
    lane = 1
    for t in range(5):
        a(f"  s_add_u32 s86, s85, {t}")
        a(f"  s_max_u32 s86, s86, 4")
        a(f"  s_sub_u32 s86, s86, 4")
        a(f"  s_add_u32 s87, s84, 8")
        a(f"  s_lshl_b32 s87, s87, 5")
        a(f"  s_add_u32 s86, s86, s87")
        a(f"  s_lshl_b32 s86, s86, 6")
        a(f"  s_add_u32 s86, s86, {FL_QKV:#x}")
        a(f"  v_writelane_b32 v12, s86, {lane}")
        lane += 1
    for t in range(2):
        a(f"  s_lshr_b32 s86, s71, 1")
        a(f"  s_lshl_b32 s87, s3, 1")
        a(f"  s_add_u32 s86, s86, s87")
        a(f"  s_add_u32 s86, s86, {t}")
        a(f"  s_max_u32 s86, s86, 4")
        a(f"  s_sub_u32 s86, s86, 4")
        a(f"  s_add_u32 s87, s84, 16")
        a(f"  s_lshl_b32 s87, s87, 5")
        a(f"  s_add_u32 s86, s86, s87")
        a(f"  s_lshl_b32 s86, s86, 6")
        a(f"  s_add_u32 s86, s86, {FL_QKV:#x}")
        a(f"  v_writelane_b32 v12, s86, {lane}")
        lane += 1
    for t in range(8):
        a(f"  s_lshl_b32 s86, s72, 2")
        a(f"  s_add_u32 s86, s86, {t}")
        a(f"  s_lshl_b32 s86, s86, 6")
        a(f"  s_add_u32 s86, s86, {FL_LN:#x}")
        a(f"  v_writelane_b32 v12, s86, {lane}")
        lane += 1
    stamp(a, 1)
    get_token(a, vm, 14, 252)
    flag_load(vm, "fl", 14, 12)
    flag_check(a, vm, "fl", 14, 12)
    vm.drained()
    stamp(a, 2)
    a(f"  s_mov_b64 exec, s[74:75]")
    for jj in range(4):
        a(f"  s_lshl_b32 s83, s3, 2")
        a(f"  s_add_u32 s83, s83, s71")
        a(f"  s_add_u32 s83, s83, {jj}")
        a(f"  s_max_u32 s83, s83, 8")
        a(f"  s_sub_u32 s83, s83, 8")
        a(f"  s_lshl_b32 s83, s83, 10")
        vm.issue("v", f"  buffer_load_dwordx4 v[{S+8*jj}:{S+8*jj+3}], v6, s[12:15], s83 offen sc1")
        vm.issue("v", f"  buffer_load_dwordx4 v[{S+8*jj+4}:{S+8*jj+7}], v6, s[12:15], s83 offen offset:512 sc1")
    a(f"  s_mov_b64 exec, -1")
    a(f"  s_lshl_b32 s83, s72, 10")
    vm.issue("q", f"  buffer_load_dwordx4 v[{QF}:{QF+3}], v5, s[12:15], s83 offen sc1")
    vm.issue("q", f"  buffer_load_dwordx4 v[{QF+4}:{QF+7}], v5, s[12:15], s83 offen offset:1024 sc1")
    for i in range(10):
        a(f"  s_add_u32 s83, s72, {i}")
        a(f"  s_max_u32 s83, s83, 8")
        a(f"  s_sub_u32 s83, s83, 8")
        a(f"  s_lshl_b32 s83, s83, 10")
        a(f"  s_add_u32 s83, s83, {WS_K:#x}")
        vm.issue(("k", i), f"  buffer_load_dwordx4 v[{KF+4*i}:{KF+4*i+3}], v5, s[12:15], s83 offen sc1")
    a(f"  s_lshl_b32 s83, s72, 7")
    vm.issue("g", f"  buffer_load_dword v{GV}, v8, s[12:15], s83 offen sc1")
    vm.issue("g", f"  buffer_load_dword v{GV+1}, v8, s[12:15], s83 offen offset:128 sc1")
    vm.wait("v")
    a(f"  s_lshl_b32 s83, s3, 12")
    a(f"  v_add_u32 v11, s83, v9")
    a(f"  s_mov_b64 exec, s[74:75]")
    for jj in range(4):
        a(f"  ds_write_b128 v11, v[{S+8*jj}:{S+8*jj+3}] offset:{jj*1024}")
        a(f"  ds_write_b128 v11, v[{S+8*jj+4}:{S+8*jj+7}] offset:{jj*1024+512}")
    a(f"  s_mov_b64 exec, -1")
    a(f"  s_waitcnt lgkmcnt(0)")
    lds_barrier(a, 8, 4, 251, 14)
    vm.wait("g")
    if "hiprio" not in EXP:
        a("  s_setprio 0")
    if "adelay" in EXP:
        Lnd = a.label("nodelay")
        a("  s_cmp_lt_u32 s2, 176")
        a(f"  s_cbranch_scc0 {Lnd}")
        lds_wait_sleep(a, 36, 4, 251, 14)
        a(f"{Lnd}:")
    stamp(a, 3)
    cstamp(a, 14)
    a(f"  s_lshl_b32 s83, s3, 11")
    a(f"  v_add_u32 v9, s83, v9")

    def vread(i):
        r = VF + 8 * (i & 1)
        a(f"  s_mov_b64 exec, s[74:75]")
        a(f"  ds_read_b128 v[{r}:{r+3}], v9 offset:{i*1024}")
        a(f"  ds_read_b128 v[{r+4}:{r+7}], v9 offset:{i*1024+512}")
        a(f"  s_mov_b64 exec, -1")

    def qk(i, buf, cmode, slow):
        d = S + 16 * buf
        if i == 0:
            c = MF if cmode == 0 else CF
        elif i == 8:
            c = MD if cmode == 0 else CD
        else:
            c = None if cmode == 0 else CM
        cs = "0" if c is None else f"v[{c}:{c+15}]"
        ins = f"  {MFMA} v[{d}:{d+15}], v[{KF+4*i}:{KF+4*i+3}], v[{QF}:{QF+3}], {cs}"
        if slow and i < 8:
            L1, L2 = a.label("inv"), a.label("invd")
            a(f"  s_cmp_gt_u32 s76, {i}")
            a(f"  s_cbranch_scc1 {L1}")
            a(ins)
            a(f"  s_branch {L2}")
            a(f"{L1}:")
            a("  s_nop 7")
            a("  s_nop 7")
            for r in range(16):
                a(f"  v_mov_b32 v{d+r}, v{NEG}")
            a(f"{L2}:")
        else:
            a(ins)

    def unit_core(slow):
        qk(0, 0, 0, slow)
        qk(1, 1, 0, slow)
        vread(0)
        for i in range(0, 16, 2):
            a(f"  v_pk_mov_b32 v[{OA+i}:{OA+i+1}], v[252:253], v[252:253] op_sel:[0,0]")
        a(f"  v_mov_b32 v{MX}, v{NEG}")
        a(f"  v_mov_b32 v{MX2}, v{NEG}")
        for i in range(9):
            if i + 2 < 9:
                qk(i + 2, (i + 2) % 3, 0, slow)
            else:
                a("  s_nop 3")
            b = S + 16 * (i % 3)
            for r in range(0, 16, 2):
                m = MX if (r & 2) == 0 else MX2
                a(f"  v_max3_f32 v{m}, v{m}, v{b+r}, v{b+r+1}")
        a(f"""
  v_max_f32 v{MX}, v{MX}, v{MX2}
  v_mov_b32 v{MX2}, v{MX}
  s_nop 1
  v_permlane32_swap_b32 v{MX}, v{MX2}
  s_nop 1
  v_max_f32 v{MX}, v{MX}, v{MX2}
  v_sub_f32 v{MX}, 0, v{MX}
  v_mov_b32 v{MX+1}, v{MX}
""")
        for r in range(0, 16, 2):
            a(f"  v_pk_mov_b32 v[{CM+r}:{CM+r+1}], v[{MX}:{MX+1}], v[{MX}:{MX+1}] op_sel:[0,1]")
        for r in range(0, 16, 2):
            a(f"  v_pk_add_f32 v[{CF+r}:{CF+r+1}], v[{MF+r}:{MF+r+1}], v[{MX}:{MX+1}]")
        a("  s_nop 1")
        qk(0, 0, 1, slow)
        qk(1, 1, 1, slow)
        for r in range(0, 16, 2):
            a(f"  v_pk_add_f32 v[{CD+r}:{CD+r+1}], v[{MD+r}:{MD+r+1}], v[{MX}:{MX+1}]")
        a("  s_nop 3")
        def pv(i, half):
            b = S + 16 * (i % 3)
            r = VF + 8 * (i & 1)
            a(f"  {MFMA} v[{OA}:{OA+15}], v[{r+4*half}:{r+4*half+3}], v[{b+4*half}:{b+4*half+3}], v[{OA}:{OA+15}]")

        for i in range(9):
            b = S + 16 * (i % 3)
            for r in range(16):
                a(f"  v_exp_f32 v{b+r}, v{b+r}")
                if i > 0 and r == 1:
                    a(f"  s_waitcnt lgkmcnt(0)")
                    pv(i - 1, 0)
                if i > 0 and r == 6:
                    pv(i - 1, 1)
                    vread(i)
                if r == 11 and i + 2 < 9 and i > 0:
                    qk(i + 2, (i + 2) % 3, 1, slow)
                if r == 3 and i == 0:
                    qk(2, 2, 1, slow)
            a("  s_nop 0")
            for q in range(8):
                a(f"  v_cvt_pk_bf16_f32 v{b+q}, v{b+2*q}, v{b+2*q+1}")
        a(f"  s_waitcnt lgkmcnt(0)")
        pv(8, 0)
        pv(8, 1)

    a(f"""
  s_mov_b32 s73, s72                 ; qb
  s_mov_b32 s77, 0
L_a_unit:
  s_sub_u32 s76, 8, s73
  s_cmp_gt_u32 s73, 8
  s_cselect_b32 s76, 0, s76
  s_cmp_lg_u32 s76, 0
  s_cbranch_scc1 L_a_slow
""")
    unit_core(False)
    a("L_a_join:")
    for i in range(0, 36, 2):
        a(f"  v_pk_mov_b32 v[{KF+i}:{KF+i+1}], v[{KF+4+i}:{KF+5+i}], v[{KF+4+i}:{KF+5+i}] op_sel:[0,1]")
    for i in range(0, 4, 2):
        a(f"  v_pk_mov_b32 v[{QF+i}:{QF+i+1}], v[{QF+4+i}:{QF+5+i}], v[{QF+4+i}:{QF+5+i}] op_sel:[0,1]")
    a(f"""
  v_add_u32 v9, 0x400, v9
  s_lshl_b32 s83, s73, 15
  v_rcp_f32 v10, v{OA+8}
  s_nop 0
  v_mul_f32 v10, v10, v{GV}
""")
    for r in range(8):
        a(f"  v_mul_f32 v{OA+r}, v{OA+r}, v10")
    a(f"  s_cmp_eq_u32 s77, 0")
    a(f"  s_cbranch_scc0 L_a_unit2")
    for q in range(4):
        a(f"  v_cvt_pk_bf16_f32 v{12+q}, v{OA+2*q}, v{OA+2*q+1}")
    vm.issue("st", f"  buffer_store_dwordx4 v[12:15], v7, s[12:15], s83 offen sc1")
    a(f"  v_mov_b32 v{GV}, v{GV+1}")
    stamp(a, 4)
    a(f"""
  s_add_u32 s73, s73, 1
  s_mov_b32 s77, 1
  s_branch L_a_unit
L_a_unit2:
""")
    for q in range(4):
        a(f"  v_cvt_pk_bf16_f32 v{QF+q}, v{OA+2*q}, v{OA+2*q+1}")
    vm.issue("st", f"  buffer_store_dwordx4 v[{QF}:{QF+3}], v7, s[12:15], s83 offen sc1")
    stamp(a, 5)
    cstamp(a, 15)
    a("  s_setprio 2")
    a(f"""
  s_lshl_b32 s83, s70, 5
  s_lshr_b32 s84, s72, 1
  s_add_u32 s83, s83, s84
  s_lshl_b32 s83, s83, 6
  s_add_u32 s83, s83, {FL_AT:#x}
""")
    publish(a, vm, "st", "s83", 10, 252)
    stamp(a, 11)
    if STAMPS:
        a("  s_waitcnt vmcnt(0)")
    stamp(a, 12)
    stamp_flush(a)
    a("  s_endpgm")
    a("L_a_slow:")
    unit_core(True)
    a("  s_branch L_a_join")


def main():
    ref = open(f"cdna_kernels/{NAME}.s.ref").read().split("\n")
    hdr = [l for l in ref if l.startswith(";") and "@launch" not in l]
    a = Asm()
    for l in hdr:
        a(l)
    a(f"; @launch grid=(256,1,1) block=(512,1,1) lds={LDS_BYTES}")
    a('.amdgcn_target "amdgcn-amd-amdhsa--gfx950"')
    gen(a)
    a(f"""
.section .rodata,"a"
.p2align 6
.amdhsa_kernel {KN}
  .amdhsa_next_free_vgpr 256
  .amdhsa_next_free_sgpr 102
  .amdhsa_accum_offset 256
  .amdhsa_group_segment_fixed_size 0
  .amdhsa_kernarg_size 96
  .amdhsa_user_sgpr_count 2
  .amdhsa_user_sgpr_kernarg_segment_ptr 1
  .amdhsa_system_sgpr_workgroup_id_x 1
.end_amdhsa_kernel
""")
    out = sys.argv[1] if len(sys.argv) > 1 else f"cdna_kernels/{NAME}.s"
    txt = a.text()
    if "nosc1ld" in EXP:
        txt = "\n".join(l.replace(" sc1", "") if ("buffer_load_dwordx4" in l) else l for l in txt.split("\n"))
    open(out, "w").write(txt)


if __name__ == "__main__":
    main()
```

```python
import math
import os
import struct
import sys

NAME = "gated_mix__sliding_block__mixer_token_mlp__prompt"
KN = NAME + "_kernel"

WS_Q = 0x000000
WS_K = 0x200000
WS_V = 0x400000
WS_H = 0x600000
WS_G = 0x800000
WS_O = 0x900000
WS_U = 0xB00000
WS_FL = 0xD00000
FL_LN = WS_FL
FL_QKV = WS_FL + 256 * 64
FL_U = WS_FL + 1024 * 64
FL_AT = WS_FL + 1792 * 64
WS_DBG = 0xE00000
WS_END = 0x1000000

STAMPS = os.environ.get("STAMPS", "0") == "1"
MFMA = "v_mfma_f32_32x32x16_bf16"
SPIN_MAX = 60000
QSCALE = 0.25 * math.log2(math.e)
SLEEP = int(os.environ.get("SLEEP", "1"))
EXP = set(os.environ.get("EXP", "").split(","))

L_R0 = 0
L_QS = 40960
L_YB0 = L_QS + 65536
L_AV = L_QS + 98304
L_CNT = L_AV + 16384
LDS_BYTES = L_CNT + 256


def f32bits(x):
    return struct.unpack("<I", struct.pack("<f", x))[0]


class Asm:
    def __init__(self):
        self.l = []
        self.n = 0

    def __call__(self, s):
        for line in s.strip("\n").split("\n"):
            self.l.append(line)

    def label(self, base):
        self.n += 1
        return f"L_{base}_{self.n}"

    def text(self):
        return "\n".join(self.l) + "\n"


class VM:
    def __init__(self, a):
        self.a = a
        self.ops = []

    def issue(self, tag, text):
        self.a(text)
        self.ops.append(tag)

    def wait(self, tags, extra=""):
        if not isinstance(tags, (list, tuple, set)):
            tags = [tags]
        idx = [i for i, t in enumerate(self.ops) if t in tags]
        if not idx:
            if extra:
                self.a(f"  s_waitcnt {extra}")
            return
        last = max(idx)
        n = len(self.ops) - 1 - last
        self.a(f"  s_waitcnt vmcnt({min(n, 63)}) {extra}".rstrip())
        self.ops = self.ops[last + 1:]

    def drained(self):
        self.ops = []


def srd(a, dst, ptr, nbytes, off=0):
    if off:
        a(f"  s_add_u32 s{dst}, s{ptr}, {off:#x}")
        a(f"  s_addc_u32 s{dst+1}, s{ptr+1}, 0")
        a(f"  s_and_b32 s{dst+1}, s{dst+1}, 0xffff")
    else:
        a(f"  s_mov_b32 s{dst}, s{ptr}")
        a(f"  s_and_b32 s{dst+1}, s{ptr+1}, 0xffff")
    a(f"  s_mov_b32 s{dst+2}, {nbytes:#x}")
    a(f"  s_mov_b32 s{dst+3}, 0x00020000")


def stamp(a, k):
    if not STAMPS:
        return
    a(f"  s_memrealtime s[98:99]")
    a(f"  s_waitcnt lgkmcnt(0)")
    a(f"  v_writelane_b32 v255, s98, {k}")


def cstamp(a, k):
    if not STAMPS:
        return
    a(f"  s_memtime s[98:99]")
    a(f"  s_waitcnt lgkmcnt(0)")
    a(f"  v_writelane_b32 v255, s98, {k}")


def stamp_flush(a):
    if not STAMPS:
        return
    a(f"  s_lshl_b32 s96, s2, 9")
    a(f"  s_add_u32 s96, s96, {WS_DBG:#x}")
    a(f"  v_lshrrev_b32 v254, 6, v0")
    a(f"  v_lshlrev_b32 v254, 6, v254")
    a(f"  v_and_b32 v253, 63, v0")
    a(f"  v_lshl_add_u32 v254, v253, 2, v254")
    a(f"  v_cmp_gt_u32 vcc, 16, v253")
    a(f"  s_and_saveexec_b64 s[100:101], vcc")
    a(f"  buffer_store_dword v255, v254, s[12:15], s96 offen")
    a(f"  s_mov_b64 exec, s[100:101]")


P_X, P_WQKV, P_WO, P_BX, P_W1, P_B1, P_W2, P_B2, P_GATE, P_OUT, P_DBG, P_WS = [40 + 2 * i for i in range(12)]
S_WS = 12
S_DBG = 64
TOK = 68


def get_token(a, vm, vt, vz):
    L = a.label("tok")
    Ld = a.label("tokd")
    a(f"  s_mov_b32 s97, 0")
    a(f"{L}:")
    a(f"  buffer_load_dwordx2 v[{vt}:{vt+1}], v{vz}, s[{S_DBG}:{S_DBG+3}], 0 offen sc1")
    a(f"  s_waitcnt vmcnt(0)")
    a(f"  v_readfirstlane_b32 s{TOK}, v{vt}")
    a(f"  v_readfirstlane_b32 s{TOK+1}, v{vt+1}")
    a(f"  s_add_u32 s97, s97, 1")
    a(f"  s_cmp_lg_u32 s{TOK}, 0")
    a(f"  s_cbranch_scc1 {Ld}")
    a(f"  s_cmp_gt_u32 s97, {SPIN_MAX}")
    a(f"  s_cbranch_scc1 {Ld}")
    a(f"  s_sleep 1")
    a(f"  s_branch {L}")
    a(f"{Ld}:")
    vm.drained()


def flag_load(vm, tag, vt, vaddr):
    vm.issue(tag, f"  buffer_load_dwordx2 v[{vt}:{vt+1}], v{vaddr}, s[{S_WS}:{S_WS+3}], 0 offen sc1")


def publish_pending(a, vm, vt):
    a(f"  v_mov_b32 v{vt}, s{TOK}")
    a(f"  v_mov_b32 v{vt+1}, s{TOK+1}")
    a(f"  s_mov_b64 exec, 1")
    vm.issue("flagst", f"  buffer_store_dwordx2 v[{vt}:{vt+1}], v252, s[{S_WS}:{S_WS+3}], s91 offen sc1")
    a(f"  s_mov_b64 exec, -1")


def flag_check(a, vm, tag, vt, vaddr, pend=None):
    vm.wait(tag)
    if pend is not None:
        publish_pending(a, vm, pend)
    if "isoU" in EXP or "isoY" in EXP:
        return
    L = a.label("fl")
    L1 = a.label("fl1")
    L2 = a.label("fl2")
    Ld = a.label("fld")
    a(f"  s_mov_b32 s97, 0")
    a(f"  v_cmp_eq_u64 vcc, s[{TOK}:{TOK+1}], v[{vt}:{vt+1}]")
    a(f"  s_cmp_eq_u64 vcc, exec")
    a(f"  s_cbranch_scc1 {Ld}")
    a(f"  s_andn2_b64 s[94:95], exec, vcc")
    a(f"  s_ff1_i32_b64 s96, s[94:95]")
    a(f"  s_lshl_b64 s[94:95], 1, s96")
    a(f"  s_mov_b64 exec, s[94:95]")
    a(f"{L1}:")
    a(f"  s_sleep {SLEEP}")
    a(f"  buffer_load_dwordx2 v[{vt}:{vt+1}], v{vaddr}, s[{S_WS}:{S_WS+3}], 0 offen sc1")
    a(f"  s_add_u32 s97, s97, 1")
    a(f"  s_waitcnt vmcnt(0)")
    a(f"  v_cmp_eq_u64 vcc, s[{TOK}:{TOK+1}], v[{vt}:{vt+1}]")
    a(f"  s_cmp_eq_u64 vcc, exec")
    a(f"  s_cbranch_scc1 {L2}")
    a(f"  s_cmp_gt_u32 s97, {SPIN_MAX}")
    a(f"  s_cbranch_scc0 {L1}")
    a(f"{L2}:")
    a(f"  s_mov_b64 exec, -1")
    a(f"{L}:")
    a(f"  v_cmp_eq_u64 vcc, s[{TOK}:{TOK+1}], v[{vt}:{vt+1}]")
    a(f"  s_cmp_eq_u64 vcc, exec")
    a(f"  s_cbranch_scc1 {Ld}")
    a(f"  s_add_u32 s97, s97, 1")
    a(f"  s_cmp_gt_u32 s97, {SPIN_MAX}")
    a(f"  s_cbranch_scc1 {Ld}")
    a(f"  s_andn2_b64 exec, exec, vcc")
    a(f"  buffer_load_dwordx2 v[{vt}:{vt+1}], v{vaddr}, s[{S_WS}:{S_WS+3}], 0 offen sc1")
    a(f"  s_mov_b64 exec, -1")
    a(f"  s_waitcnt vmcnt(0)")
    a(f"  s_branch {L}")
    a(f"{Ld}:")


def publish(a, vm, tags, s_off, vt, vz):
    a(f"  v_mov_b32 v{vt}, s{TOK}")
    a(f"  v_mov_b32 v{vt+1}, s{TOK+1}")
    vm.wait(tags)
    a(f"  s_mov_b64 exec, 1")
    vm.issue("flagst", f"  buffer_store_dwordx2 v[{vt}:{vt+1}], v{vz}, s[{S_WS}:{S_WS+3}], {s_off} offen sc1")
    a(f"  s_mov_b64 exec, -1")


def lds_barrier(a, cnt_off, target, vaddr, vt):
    L = a.label("lb")
    Ld = a.label("lbd")
    a(f"  v_mov_b32 v{vt}, 1")
    a(f"  s_mov_b64 exec, 1")
    a(f"  ds_add_u32 v{vaddr}, v{vt} offset:{cnt_off}")
    a(f"  s_mov_b64 exec, -1")
    a(f"  s_mov_b32 s97, 0")
    a(f"{L}:")
    a(f"  ds_read_b32 v{vt+1}, v{vaddr} offset:{cnt_off}")
    a(f"  s_waitcnt lgkmcnt(0)")
    a(f"  v_readfirstlane_b32 s96, v{vt+1}")
    a(f"  s_add_u32 s97, s97, 1")
    a(f"  s_cmp_ge_u32 s96, {target}")
    a(f"  s_cbranch_scc1 {Ld}")
    a(f"  s_cmp_gt_u32 s97, {SPIN_MAX*4}")
    a(f"  s_cbranch_scc1 {Ld}")
    a(f"  s_branch {L}")
    a(f"{Ld}:")


def lds_wait(a, cnt_off, target, vaddr, vt):
    L = a.label("lw")
    Ld = a.label("lwd")
    a(f"  s_mov_b32 s97, 0")
    a(f"{L}:")
    a(f"  ds_read_b32 v{vt+1}, v{vaddr} offset:{cnt_off}")
    a(f"  s_waitcnt lgkmcnt(0)")
    a(f"  v_readfirstlane_b32 s96, v{vt+1}")
    a(f"  s_add_u32 s97, s97, 1")
    a(f"  s_cmp_ge_u32 s96, {target}")
    a(f"  s_cbranch_scc1 {Ld}")
    a(f"  s_cmp_gt_u32 s97, {SPIN_MAX*4}")
    a(f"  s_cbranch_scc1 {Ld}")
    a(f"  s_branch {L}")
    a(f"{Ld}:")


def lds_wait_sleep(a, cnt_off, target, vaddr, vt):
    L = a.label("lws")
    Ld = a.label("lwsd")
    a(f"  s_mov_b32 s97, 0")
    a(f"{L}:")
    a(f"  ds_read_b32 v{vt+1}, v{vaddr} offset:{cnt_off}")
    a(f"  s_waitcnt lgkmcnt(0)")
    a(f"  v_readfirstlane_b32 s96, v{vt+1}")
    a(f"  s_add_u32 s97, s97, 1")
    a(f"  s_cmp_ge_u32 s96, {target}")
    a(f"  s_cbranch_scc1 {Ld}")
    a(f"  s_cmp_gt_u32 s97, {SPIN_MAX*4}")
    a(f"  s_cbranch_scc1 {Ld}")
    a(f"  s_sleep 4")
    a(f"  s_branch {L}")
    a(f"{Ld}:")


def lds_signal(a, cnt_off, vaddr, vt):
    a(f"  v_mov_b32 v{vt}, 1")
    a(f"  s_mov_b64 exec, 1")
    a(f"  ds_add_u32 v{vaddr}, v{vt} offset:{cnt_off}")
    a(f"  s_mov_b64 exec, -1")


def cap(a, fn, *args):
    saved = a.l
    a.l = []
    fn(*args)
    out = a.l
    a.l = saved
    return out


def groups(lines):
    out, cur = [], []
    for l in lines:
        cur.append(l)
        if "buffer_load" in l:
            out.append("\n".join(cur))
            cur = []
    if cur:
        if out:
            out[-1] += "\n" + "\n".join(cur)
        else:
            out.append("\n".join(cur))
    return out


def weave(a, mf, fill):
    per = (len(fill) + len(mf) - 1) // len(mf) if fill else 0
    for i, m in enumerate(mf):
        a(m)
        for x in fill[i * per:(i + 1) * per]:
            a(x)


def gen(a):
    a(f"""
.text
.globl {KN}
.p2align 8
.type {KN},@function
{KN}:
  s_cmp_ge_u32 s2, 256
  s_cbranch_scc1 L_end
  s_load_dwordx16 s[40:55], s[0:1], 0
  s_load_dwordx8 s[56:63], s[0:1], 64
  v_lshrrev_b32 v1, 6, v0
  v_and_b32 v2, 63, v0
  v_mov_b32 v252, 0
""")
    if "nocodepf" not in EXP:
        a(f"""
  s_getpc_b64 s[84:85]
L_pc0:
  s_and_b32 s84, s84, 0xffffff00
  s_and_b32 s85, s85, 0xffff
  s_mov_b32 s86, L_end - {KN}
  s_mov_b32 s87, 0x00020000
  v_lshlrev_b32 v3, 7, v0
  buffer_load_dword v253, v3, s[84:87], 0 offen
""")
    a(f"""
  v_mov_b32 v251, {L_CNT}
  v_readfirstlane_b32 s3, v1
  v_lshlrev_b32 v4, 2, v2
  v_add_u32 v4, {L_CNT}, v4
  ds_write_b32 v4, v252
  s_and_b32 s81, s2, 7               ; xcd
  s_lshr_b32 s82, s2, 3              ; idx
  s_waitcnt lgkmcnt(0)
  s_barrier
""")
    srd(a, S_WS, P_WS, WS_END)
    srd(a, S_DBG, P_DBG, 256)
    stamp(a, 0)
    a("""
  s_cmp_ge_u32 s3, 4
  s_cbranch_scc1 L_attn
""")
    gwaves(a)
    awaves(a)
    a("""
L_end:
  s_endpgm
""")


DR = 16
LF = 80
ACC = 96
NY, NO, NU = 22, 8, 32
NYS = 17


def yslot(k):
    if k < 4:
        return 0, k * 2048
    if k < 12:
        return 1, (k - 4) * 2048
    return 2, (k - 12) * 2048


REG_M0 = {0: "s76", 1: "s77", 2: "s74"}
REG_TR = {0: 232, 1: 234, 2: 246}


def trreads(a, reg, off, buf):
    f = LF + 8 * buf
    base = REG_TR[reg]
    for b in range(2):
        a(f"  ds_read_b64_tr_b16 v[{f+4*b}:{f+4*b+1}], v{base+b} offset:{off}")
        a(f"  ds_read_b64_tr_b16 v[{f+4*b+2}:{f+4*b+3}], v{base+b} offset:{off+1024}")


def dma_y(a, vm, i):
    reg, off = yslot(i % NYS)
    if i < NY:
        a(f"  s_lshl_b32 s87, s46, 16")
        v0, sd = 242, 20
        adv = ["  s_add_u32 s46, s46, 1", "  s_cmp_eq_u32 s46, 22\n  s_cselect_b32 s46, 0, s46"]
    else:
        a(f"  s_lshl_b32 s87, s44, 14")
        v0, sd = 244, 24
        adv = ["  s_add_u32 s44, s44, 1", "  s_and_b32 s44, s44, 7"]
    a(f"  s_add_u32 m0, {REG_M0[reg]}, {off}")
    a(adv[0])
    nt = " nt" if ("w2nt" in EXP and i < NY) else ""
    vm.issue(("yd", i), f"  buffer_load_dwordx4 v{v0}, s[{sd}:{sd+3}], s87 offen{nt} lds")
    a(f"  s_add_u32 m0, {REG_M0[reg]}, {off+1024}")
    a(adv[1])
    vm.issue(("yd", i), f"  buffer_load_dwordx4 v{v0+1}, s[{sd}:{sd+3}], s87 offen{nt} lds")


def dma_u(a, vm, i):
    off = (i % 5) * 2048
    a(f"  s_mul_i32 s87, s42, {16*2752}")
    a(f"  s_add_u32 m0, s74, {off}")
    a(f"  s_add_u32 s42, s42, 1")
    nt = " nt" if "w1dnt" in EXP else ""
    vm.issue(("uw", i), f"  buffer_load_dwordx4 v240, s[16:19], s87 offen{nt} lds")
    a(f"  s_add_u32 m0, s74, {off+1024}")
    a(f"  s_and_b32 s42, s42, 31")
    vm.issue(("uw", i), f"  buffer_load_dwordx4 v241, s[16:19], s87 offen{nt} lds")


def gwaves(a):
    vm = VM(a)
    srd(a, 4, P_X, 2048 * 512 * 2)
    srd(a, 36, P_GATE, 1024)
    a(f"""
  s_cmp_ge_u32 s2, 192
  s_cbranch_scc0 L_g_noearly
  s_sub_u32 s90, s2, 192
  v_lshrrev_b32 v200, 3, v2
  v_and_b32 v201, 7, v2
  s_lshl_b32 s83, s90, 5
  s_lshl_b32 s84, s3, 3
  s_add_u32 s83, s83, s84
  v_add_u32 v200, s83, v200
  v_lshlrev_b32 v201, 4, v201
  v_lshl_add_u32 v200, v200, 10, v201
""")
    for i in range(8):
        a(f"  buffer_load_dwordx4 v[{16+4*i}:{16+4*i+3}], v200, s[4:7], 0 offen offset:{i*128}")
    for i in range(8):
        a(f"  buffer_load_dwordx4 v[{48+4*i}:{48+4*i+3}], v201, s[36:39], 0 offen offset:{i*128}")
    a(f"  buffer_load_dwordx2 v[144:145], v252, s[{S_DBG}:{S_DBG+3}], 0 offen sc1")
    a("L_g_noearly:")
    srd(a, 16, P_W1, 2048 * 1376 * 2)
    srd(a, 20, P_W2, 1376 * 2048 * 2)
    srd(a, 24, P_WO, 512 * 512 * 2)
    srd(a, 28, P_WS, 86 * 16 * 1024, WS_U)
    srd(a, 32, P_OUT, 2048 * 512 * 2)
    a(f"""
  s_and_b32 s83, s81, 3
  s_mul_i32 s83, s83, 22
  s_add_u32 s83, s83, s82
  s_lshr_b32 s70, s83, 2             ; U ft
  s_lshr_b32 s84, s81, 2
  s_lshl_b32 s84, s84, 2
  s_and_b32 s83, s83, 3
  s_add_u32 s71, s84, s83            ; U dt
  s_lshl_b32 s72, s81, 2
  s_and_b32 s83, s82, 3
  s_add_u32 s72, s72, s83            ; Y st
  s_lshr_b32 s73, s82, 2             ; Y dt
  s_mul_i32 s74, s3, 10240
  s_lshl_b32 s76, s3, 13
  s_add_u32 s76, s76, {L_YB0}
  s_lshl_b32 s77, s3, 14
  s_add_u32 s77, s77, {L_QS}
  v_lshlrev_b32 v250, 4, v2
  v_lshrrev_b32 v7, 3, v2
  v_and_b32 v8, 7, v2
  v_bfe_u32 v9, v7, 1, 1
  v_lshlrev_b32 v9, 2, v9
  v_xor_b32 v8, v8, v9
  v_lshlrev_b32 v8, 4, v8
  s_movk_i32 s83, 2752
  v_mul_lo_u32 v9, v7, s83
  v_add_u32 v9, v9, v8
  s_mul_i32 s83, s3, {512*2752}
  s_lshl_b32 s84, s70, 7
  s_add_u32 s83, s83, s84
  v_add_u32 v240, s83, v9
  v_add_u32 v241, {8*2752}, v240
  s_mul_i32 s42, s82, 3
  s_lshr_b32 s42, s42, 1
  s_and_b32 s42, s42, {0 if "norotU" in EXP else 31}
  s_mov_b32 s43, s42
  s_cmp_lt_u32 s2, 176
  s_cbranch_scc0 L_g_nopf
""")
    for i in range(5):
        dma_u(a, vm, i)
    if "now1t" not in EXP:
        a(f"""
  s_and_b32 s83, s81, 3
  s_mul_i32 s83, s83, 22
  s_lshr_b32 s83, s83, 2
  s_lshl_b32 s83, s83, 7
  s_lshl_b32 s84, s82, 2
  s_add_u32 s84, s84, s3
  s_mul_i32 s84, s84, 24
  v_add_u32 v13, s84, v7
  s_movk_i32 s85, 2752
  v_mul_lo_u32 v13, v13, s85
  v_add_u32 v13, s83, v13
  v_and_b32 v13, 0xffffff80, v13
  v_and_b32 v14, 7, v2
  v_lshl_add_u32 v13, v14, 7, v13
""")
        for k in range(3):
            a(f"  s_mov_b32 s85, {k*8*2752}")
            a(f"  buffer_load_dword v{208+k}, v13, s[16:19], s85 offen{' nt' if 'w1nt' in EXP else ''}")
    a(f"""
L_g_nopf:
  s_mul_i32 s83, s3, {22*16*4096}
  s_lshl_b32 s84, s72, 7
  s_add_u32 s83, s83, s84
  v_lshl_add_u32 v9, v7, 12, v8
  v_add_u32 v242, s83, v9
  v_add_u32 v243, 0x8000, v242
  s_lshl_b32 s83, s3, 17
  s_lshl_b32 s84, s73, 7
  s_add_u32 s83, s83, s84
  v_lshl_add_u32 v9, v7, 10, v8
  v_add_u32 v244, s83, v9
  v_add_u32 v245, 0x2000, v244
  v_and_b32 v7, 15, v2
  v_lshrrev_b32 v8, 2, v7
  v_lshrrev_b32 v9, 5, v2
  v_lshl_add_u32 v9, v9, 2, v8
  v_lshlrev_b32 v10, 7, v9
  v_bfe_u32 v9, v9, 1, 1
  v_lshl_add_u32 v10, v9, 6, v10
  v_bfe_u32 v9, v2, 4, 1
  v_lshl_add_u32 v10, v9, 5, v10
  v_and_b32 v7, 3, v7
  v_lshl_add_u32 v10, v7, 3, v10
  v_xor_b32 v11, 64, v10
  v_add_u32 v246, s74, v10
  v_add_u32 v247, s74, v11
  v_add_u32 v232, s76, v10
  v_add_u32 v233, s76, v11
  v_add_u32 v234, s77, v10
  v_add_u32 v235, s77, v11
  s_and_b32 s44, s82, 3
  s_lshl_b32 s44, s44, 1
  s_lshr_b32 s45, s82, 2
  s_add_u32 s44, s44, s45
  s_and_b32 s44, s44, {0 if "norotY" in EXP else 7}
  s_mov_b32 s45, s44
  s_mul_i32 s46, s82, {0 if "norotY" in EXP else 22}
  s_lshr_b32 s46, s46, 5
  s_mov_b32 s47, s46
  s_cmp_ge_u32 s2, 192
  s_cbranch_scc1 L_ln
""")
    get_token(a, vm, 4, 252)
    stamp(a, 4)
    a("""
  s_cmp_lt_u32 s2, 176
  s_cbranch_scc0 L_nou
""")
    uphase(a, vm)
    a("  s_branch L_ystart")
    ln(a, vm)
    stamp(a, 4)
    a("L_nou:")
    vm.ops = []
    a(f"""
  s_lshl_b32 s91, s2, 2
  s_add_u32 s91, s91, s3
  s_lshl_b32 s91, s91, 6
  s_add_u32 s91, s91, {WS_FL + 3000*64:#x}
  s_sub_u32 s83, s82, 22
  s_lshl_b32 s83, s83, 2
  s_add_u32 s83, s83, s3
  v_lshrrev_b32 v3, 2, v2
  v_and_b32 v4, 3, v2
  s_lshl_b32 s84, s83, 4
  v_add_u32 v3, s84, v3
  v_lshlrev_b32 v3, 12, v3
  v_lshl_add_u32 v3, v4, 7, v3
  s_lshl_b32 s84, s81, 9
  v_add_u32 v3, s84, v3
  s_lshl_b32 s84, s83, 13
  v_lshlrev_b32 v4, 7, v2
  v_add_u32 v4, s84, v4
""")
    if "nopf" not in EXP:
        for k in range(3):
            a(f"  s_mov_b32 s85, {k*640*4096}")
            a(f"  buffer_load_dword v{208+k}, v3, s[20:23], s85 offen")
        for k in range(2):
            a(f"  s_mov_b32 s85, {k*40*8192}")
            a(f"  buffer_load_dword v{212+k}, v4, s[24:27], s85 offen")
    lds_wait(a, 20, 4, 251, 10)
    for i in range(7):
        dma_y(a, vm, i)
    a("L_ystart:")
    vm.ops = []
    yphase(a, vm)


def uphase(a, vm):
    BIAS = 224
    srd(a, 36, P_B1, 1376 * 2)
    a(f"""
  v_and_b32 v3, 15, v2
  s_lshl_b32 s83, s3, 4
  v_add_u32 v3, s83, v3
  v_lshlrev_b32 v3, 2, v3
  s_lshr_b32 s83, s71, 1
  v_add_u32 v3, s83, v3
  v_lshlrev_b32 v3, 6, v3
  v_add_u32 v3, {FL_LN:#x}, v3
""")
    flag_load(vm, "fl", 4, 3)
    a(f"""
  s_lshl_b32 s83, s71, 18
  s_lshl_b32 s84, s3, 15
  s_add_u32 s83, s83, s84
  s_add_u32 s83, s83, {WS_H:#x}
  v_add_u32 v6, s83, v250
  v_add_u32 v7, 0x20000, v6
  v_lshrrev_b32 v8, 5, v2
  v_lshlrev_b32 v8, 3, v8
  s_lshl_b32 s83, s70, 7
  s_and_b32 s84, s3, 1
  s_lshl_b32 s84, s84, 6
  s_add_u32 s83, s83, s84
  v_add_u32 v8, s83, v8
""")
    for q in range(4):
        vm.issue("bias", f"  buffer_load_dwordx2 v[{BIAS+2*q}:{BIAS+2*q+1}], v8, s[36:39], 0 offen offset:{q*16}")
    flag_check(a, vm, "fl", 4, 3)
    if "uafterq" in EXP:
        lds_wait_sleep(a, int(os.environ.get("UQCNT", "20")), 4, 251, 10)
    stamp(a, 5)

    def direct(i):
        r = DR + 8 * (i % 8)
        a(f"  s_lshl_b32 s86, s43, 10")
        vm.issue(("ud", i), f"  buffer_load_dwordx4 v[{r}:{r+3}], v6, s[12:15], s86 offen sc1")
        a(f"  s_add_u32 s43, s43, 1")
        vm.issue(("ud", i), f"  buffer_load_dwordx4 v[{r+4}:{r+7}], v7, s[12:15], s86 offen sc1")
        a(f"  s_and_b32 s43, s43, 31")

    for i in range(8):
        direct(i)
    trreads(a, 2, 0, 0)
    vm.wait([("ud", 0)])
    for i in range(NU):
        if i + 1 < NU:
            vm.wait([("ud", i + 1), ("uw", i + 1)], "lgkmcnt(0)")
        else:
            a(f"  s_waitcnt lgkmcnt(0)")
        if i == 26:
            lds_wait(a, 20, 4, 251, 10)
        if i == int(os.environ.get("ADSTEP", "28")):
            lds_signal(a, 36, 251, 10)
        r = DR + 8 * (i % 8)
        f = LF + 8 * (i & 1)
        mf = []
        for b in range(2):
            for aa in range(2):
                d = ACC + 16 * (aa + 2 * b)
                c = "0" if i == 0 else f"v[{d}:{d+15}]"
                mf.append(f"  {MFMA} v[{d}:{d+15}], v[{f+4*aa}:{f+4*aa+3}], v[{r+4*b}:{r+4*b+3}], {c}")
        fill = []
        if i + 1 < NU:
            fill += cap(a, trreads, a, 2, ((i + 1) % 5) * 2048, (i + 1) & 1)
        if i + 5 < NU:
            fill += groups(cap(a, dma_u, a, vm, i + 5))
        if 27 <= i < 31:
            fill += groups(cap(a, dma_y, a, vm, i - 27))
        weave(a, mf, fill)
        if i + 8 < NU:
            direct(i + 8)
    stamp(a, 6)
    a(f"""
  v_add_u32 v8, s77, v250
  s_lshl_b32 s83, s3, 12
  s_add_u32 s83, s83, {L_QS}
  v_add_u32 v9, s83, v250
  s_nop 7
  s_nop 7
""")
    for tau in range(4):
        for q in range(4):
            a(f"  ds_write_b128 v8, v[{ACC+16*tau+4*q}:{ACC+16*tau+4*q+3}] offset:{tau*4096 + q*1024}")
    a("  s_waitcnt lgkmcnt(0)")
    lds_barrier(a, 0, 4, 251, 10)
    R = DR
    for sg in range(4):
        for q in range(4):
            a(f"  ds_read_b128 v[{R+16*sg+4*q}:{R+16*sg+4*q+3}], v9 offset:{sg*16384 + q*1024}")
    for q in range(4):
        a(f"  v_lshlrev_b32 v{ACC+4*q}, 16, v{BIAS+2*q}")
        a(f"  v_and_b32 v{ACC+4*q+1}, 0xffff0000, v{BIAS+2*q}")
        a(f"  v_lshlrev_b32 v{ACC+4*q+2}, 16, v{BIAS+2*q+1}")
        a(f"  v_and_b32 v{ACC+4*q+3}, 0xffff0000, v{BIAS+2*q+1}")
    a("  s_waitcnt lgkmcnt(0)")
    lds_signal(a, 12, 251, 10)
    for i in range(16):
        a(f"  v_add_f32 v{R+i}, v{R+i}, v{R+16+i}")
        a(f"  v_add_f32 v{R+32+i}, v{R+32+i}, v{R+48+i}")
        a(f"  v_add_f32 v{ACC+i}, v{ACC+i}, v{R+i}")
        a(f"  v_add_f32 v{ACC+i}, v{ACC+i}, v{R+32+i}")
    k = math.sqrt(2.0 / math.pi)
    c1 = -2.0 * k * math.log2(math.e)
    c2 = c1 * 0.044715
    a(f"  s_mov_b32 s83, {f32bits(c2):#x}")
    a(f"  v_mov_b32 v10, {f32bits(c1):#x}")
    for i in range(16):
        a(f"  v_mul_f32 v{R+i}, v{ACC+i}, v{ACC+i}")
    for i in range(16):
        a(f"  v_fma_f32 v{R+i}, v{R+i}, s83, v10")
    for i in range(16):
        a(f"  v_mul_f32 v{R+i}, v{R+i}, v{ACC+i}")
    for i in range(16):
        a(f"  v_exp_f32 v{R+i}, v{R+i}")
    for i in range(16):
        a(f"  v_add_f32 v{R+i}, 1.0, v{R+i}")
    for i in range(16):
        a(f"  v_rcp_f32 v{R+i}, v{R+i}")
    for i in range(16):
        a(f"  v_mul_f32 v{R+i}, v{R+i}, v{ACC+i}")
    for i in range(8):
        a(f"  v_cvt_pk_bf16_f32 v{R+16+i}, v{R+2*i}, v{R+2*i+1}")
    a(f"""
  s_lshl_b32 s83, s70, 1
  s_and_b32 s84, s3, 1
  s_add_u32 s83, s83, s84
  s_lshl_b32 s84, s71, 1
  s_lshr_b32 s85, s3, 1
  s_add_u32 s84, s84, s85
  s_lshl_b32 s85, s83, 15
  s_lshl_b32 s86, s84, 10
  s_add_u32 s85, s85, s86
  v_add_u32 v8, s85, v250
  s_movk_i32 s86, 0x4000
""")
    vm.issue("st", f"  buffer_store_dwordx4 v[{R+16}:{R+19}], v8, s[28:31], 0 offen sc1")
    vm.issue("st", f"  buffer_store_dwordx4 v[{R+20}:{R+23}], v8, s[28:31], s86 offen sc1")
    a(f"""
  s_lshl_b32 s83, s83, 4
  s_add_u32 s83, s83, s84
  s_lshl_b32 s83, s83, 6
  s_add_u32 s91, s83, {FL_U:#x}
""")
    lds_wait(a, 12, 4, 251, 10)
    for i in range(4, 7):
        dma_y(a, vm, i)
    publish(a, vm, "st", "s91", 10, 252)
    stamp(a, 7)


def yphase(a, vm):
    NS = NY + NO
    GV = 224
    srd(a, 36, P_B2, 2048 * 2)
    a(f"""
  v_min_u32 v3, 21, v2
  v_lshrrev_b32 v4, 1, v3
  s_mul_i32 s83, s3, 11
  v_add_u32 v4, s83, v4
  v_min_u32 v4, 42, v4
  v_lshlrev_b32 v4, 4, v4
  v_and_b32 v3, 1, v3
  s_lshl_b32 s83, s73, 1
  v_add3_u32 v3, v3, v4, s83
  v_lshlrev_b32 v3, 6, v3
  v_add_u32 v3, {FL_U:#x}, v3
  v_subrev_u32 v4, 22, v2
  v_and_b32 v4, 7, v4
  s_lshl_b32 s83, s72, 3
  v_add_u32 v4, s83, v4
  v_lshlrev_b32 v4, 6, v4
  v_add_u32 v4, {FL_LN:#x}, v4
  v_cmp_lt_u32 vcc, 21, v2
  s_nop 1
  v_cndmask_b32 v3, v3, v4, vcc
""")
    flag_load(vm, "fl", 4, 3)
    for i in range(7, NYS):
        dma_y(a, vm, i)
    a(f"""
  v_and_b32 v8, 7, v2
  s_lshl_b32 s83, s3, 3
  v_add_u32 v8, s83, v8
  v_lshlrev_b32 v8, 5, v8
  v_add_u32 v8, s72, v8
  v_lshlrev_b32 v8, 6, v8
  v_add_u32 v8, {FL_AT:#x}, v8
  s_mul_i32 s83, s3, {22*16384}
  s_lshl_b32 s84, s73, 11
  s_add_u32 s83, s83, s84
  v_add_u32 v12, s83, v250
  s_lshl_b32 s83, s72, 16
  s_lshl_b32 s84, s3, 13
  s_add_u32 s83, s83, s84
  s_add_u32 s83, s83, {WS_O:#x}
  v_add_u32 v13, s83, v250
  v_add_u32 v14, 0x8000, v13
  v_and_b32 v7, 31, v2
  s_lshl_b32 s83, s72, 6
  v_add_u32 v7, s83, v7
  v_lshlrev_b32 v9, 1, v7
""")
    vm.issue("g", f"  buffer_load_ushort v{GV+2}, v9, s[36:39], 0 offen")
    vm.issue("g", f"  buffer_load_ushort v{GV+3}, v9, s[36:39], 0 offen offset:64")
    flag_check(a, vm, "fl", 4, 3)
    stamp(a, 8)
    a(f"""
  v_lshlrev_b32 v9, 2, v7
  v_add_u32 v9, {WS_G:#x}, v9
""")
    vm.issue("g", f"  buffer_load_dword v{GV}, v9, s[12:15], 0 offen sc1")
    vm.issue("g", f"  buffer_load_dword v{GV+1}, v9, s[12:15], 0 offen offset:128 sc1")

    def direct(i):
        r = DR + 8 * (i % 8)
        if i < NY:
            a(f"  s_lshl_b32 s86, s47, 14")
            vm.issue(("yr", i), f"  buffer_load_dwordx4 v[{r}:{r+3}], v12, s[28:31], s86 offen sc1")
            a(f"  s_add_u32 s47, s47, 1")
            vm.issue(("yr", i), f"  buffer_load_dwordx4 v[{r+4}:{r+7}], v12, s[28:31], s86 offen offset:1024 sc1")
            a(f"  s_cmp_eq_u32 s47, 22")
            a(f"  s_cselect_b32 s47, 0, s47")
        else:
            a(f"  s_lshl_b32 s86, s45, 10")
            vm.issue(("yr", i), f"  buffer_load_dwordx4 v[{r}:{r+3}], v13, s[12:15], s86 offen sc1")
            a(f"  s_add_u32 s45, s45, 1")
            vm.issue(("yr", i), f"  buffer_load_dwordx4 v[{r+4}:{r+7}], v14, s[12:15], s86 offen sc1")
            a(f"  s_and_b32 s45, s45, 7")

    for i in range(8):
        direct(i)
    ACHK = int(os.environ.get("ACHK", "18"))
    nextd = 8
    vm.wait([("yr", 0), ("yd", 0)])
    trreads(a, *yslot(0), 0)
    for i in range(NS):
        if i + 1 < NS:
            vm.wait([("yr", i + 1), ("yd", i + 1)], "lgkmcnt(0)")
        else:
            a(f"  s_waitcnt lgkmcnt(0)")
        r = DR + 8 * (i % 8)
        f = LF + 8 * (i & 1)
        if i == NY:
            stamp(a, 9)
            a("  s_nop 7")
            a("  s_nop 7")
            a(f"  v_sub_f32 v{GV+4}, 1.0, v{GV}")
            a(f"  v_sub_f32 v{GV+5}, 1.0, v{GV+1}")
            for b in range(2):
                for aa in range(2):
                    d = ACC + 16 * (aa + 2 * b)
                    for q in range(16):
                        a(f"  v_mul_f32 v{d+q}, v{d+q}, v{GV+4+b}")
            a("  s_nop 1")
        mf = []
        for b in range(2):
            for aa in range(2):
                d = ACC + 16 * (aa + 2 * b)
                c = "0" if i == 0 else f"v[{d}:{d+15}]"
                if i < NY:
                    A = f"v[{r+4*aa}:{r+4*aa+3}]"
                    B = f"v[{f+4*b}:{f+4*b+3}]"
                else:
                    A = f"v[{f+4*aa}:{f+4*aa+3}]"
                    B = f"v[{r+4*b}:{r+4*b+3}]"
                mf.append(f"  {MFMA} v[{d}:{d+15}], {A}, {B}, {c}")
        fill = []
        if i + 1 < NS:
            fill += cap(a, trreads, a, *yslot((i + 1) % NYS), (i + 1) & 1)
        if i + NYS < NS:
            fill += groups(cap(a, dma_y, a, vm, i + NYS))
        weave(a, mf, fill)
        if i == ACHK - 4:
            flag_load(vm, "fa", 10, 8)
        if i == ACHK:
            if "chainB" not in EXP:
                flag_check(a, vm, "fa", 10, 8)
            stamp(a, 13)
        while nextd <= i + 8 and nextd < NS and (nextd < NY or i >= ACHK):
            direct(nextd)
            nextd += 1
    stamp(a, 10)
    a(f"""
  v_add_u32 v8, s77, v250
  s_lshl_b32 s83, s3, 12
  s_add_u32 s83, s83, {L_QS}
  v_add_u32 v9, s83, v250
  s_nop 7
  s_nop 7
""")
    for i in range(16):
        a(f"  ds_write_b128 v8, v[{ACC+4*i}:{ACC+4*i+3}] offset:{i*1024}")
    a("  s_waitcnt lgkmcnt(0)")
    lds_barrier(a, 4, 4, 251, 10)
    R = DR
    for sg in range(4):
        for q in range(4):
            a(f"  ds_read_b128 v[{R+16*sg+4*q}:{R+16*sg+4*q+3}], v9 offset:{sg*16384 + q*1024}")
    a(f"""
  s_lshr_b32 s83, s3, 1
  s_cmp_eq_u32 s83, 0
  s_cselect_b64 vcc, -1, 0
  v_cndmask_b32 v10, v{GV+5}, v{GV+4}, vcc
  v_cndmask_b32 v11, v{GV+3}, v{GV+2}, vcc
  v_lshlrev_b32 v11, 16, v11
  v_mul_f32 v10, v10, v11
  s_lshl_b32 s84, s83, 5
  v_add_u32 v7, s84, v7
  v_lshlrev_b32 v7, 10, v7
  s_lshl_b32 s84, s73, 7
  s_and_b32 s85, s3, 1
  s_lshl_b32 s85, s85, 6
  s_add_u32 s84, s84, s85
  v_add_u32 v7, s84, v7
  v_lshrrev_b32 v8, 5, v2
  v_lshl_add_u32 v7, v8, 4, v7
  s_waitcnt lgkmcnt(0)
""")
    for i in range(16):
        a(f"  v_add_f32 v{R+i}, v{R+i}, v{R+16+i}")
        a(f"  v_add_f32 v{R+32+i}, v{R+32+i}, v{R+48+i}")
        a(f"  v_add_f32 v{R+i}, v{R+i}, v10")
        a(f"  v_add_f32 v{R+i}, v{R+i}, v{R+32+i}")
    P = R + 16
    for q in range(4):
        a(f"  v_cvt_pk_bf16_f32 v{P+2*q}, v{R+4*q}, v{R+4*q+1}")
        a(f"  v_cvt_pk_bf16_f32 v{P+2*q+1}, v{R+4*q+2}, v{R+4*q+3}")
    a("  s_nop 1")
    for q in (0, 2):
        a(f"  v_permlane32_swap_b32 v{P+2*q}, v{P+2*q+2}")
        a(f"  v_permlane32_swap_b32 v{P+2*q+1}, v{P+2*q+3}")
    a(f"  buffer_store_dwordx4 v[{P}:{P+3}], v7, s[32:35], 0 offen")
    a(f"  buffer_store_dwordx4 v[{P+4}:{P+7}], v7, s[32:35], 0 offen offset:32")
    stamp(a, 11)
    if STAMPS:
        a("  s_waitcnt vmcnt(0)")
    stamp(a, 12)
    stamp_flush(a)
    if "dbgspan" in EXP:
        a(f"""
  s_waitcnt vmcnt(0)
  s_memrealtime s[98:99]
  s_waitcnt lgkmcnt(0)
  s_sub_u32 s98, s98, s{TOK}
  v_mov_b32 v10, s98
  s_mov_b64 exec, 1
  buffer_atomic_umax v10, v252, s[{S_DBG}:{S_DBG+3}], 0 offen offset:8
""")
    a("  s_endpgm")


def qkv(a):
    srd(a, 4, P_X, 2048 * 512 * 2)
    srd(a, 8, P_WQKV, 512 * 1536 * 2)
    a(f"""
  s_and_b32 s83, s81, 3
  s_lshl_b32 s83, s83, 2
  s_and_b32 s84, s82, 3
  s_add_u32 s36, s83, s84            ; st
  s_lshr_b32 s83, s81, 2
  s_mul_i32 s83, s83, 6
  s_lshr_b32 s84, s82, 2
  s_add_u32 s37, s83, s84            ; nt
  s_lshl_b32 s38, s3, 12
  s_add_u32 s38, s38, {L_QS}
""")
    VXA, VWA = 4, 8
    a("  v_lshrrev_b32 v3, 3, v2")
    a("  v_and_b32 v12, 7, v2")
    a("  s_lshl_b32 s83, s36, 17")
    for i in range(4):
        a(f"  s_lshl_b32 s84, s3, 5")
        a(f"  s_add_u32 s84, s84, {8*i}")
        a(f"  v_add_u32 v13, s84, v3")
        a(f"  v_lshrrev_b32 v14, 1, v13")
        a(f"  v_and_b32 v14, 7, v14")
        a(f"  v_xor_b32 v14, v14, v12")
        a(f"  v_lshlrev_b32 v14, 4, v14")
        a(f"  v_lshl_add_u32 v14, v13, 10, v14")
        a(f"  v_add_u32 v{VXA+i}, s83, v14")
    a("""
  v_lshrrev_b32 v3, 4, v2
  v_and_b32 v12, 15, v2
  v_lshrrev_b32 v13, 2, v12
  v_xor_b32 v13, v13, v3
  v_lshlrev_b32 v13, 2, v13
  v_and_b32 v12, 3, v12
  v_or_b32 v13, v13, v12
  v_lshlrev_b32 v13, 4, v13
  s_lshl_b32 s83, s37, 8
  v_add_u32 v13, s83, v13
  s_movk_i32 s85, 3072
""")
    for i in range(4):
        a(f"  s_lshl_b32 s84, s3, 4")
        a(f"  s_add_u32 s84, s84, {4*i}")
        a(f"  v_add_u32 v14, s84, v3")
        a(f"  v_mul_lo_u32 v14, v14, s85")
        a(f"  v_add_u32 v{VWA+i}, v14, v13")
    a(f"  s_and_b32 s39, s82, {0 if 'norotQ' in EXP else 7}")
    a("  s_mov_b32 s16, 0")

    def issue_chunk():
        a(f"  s_mul_i32 s87, s39, 196608")
        a(f"  s_lshl_b32 s86, s39, 7")
        a(f"  s_add_u32 s17, s38, s16")
        for i in range(4):
            a(f"  s_add_u32 m0, s17, {i*1024}")
            a(f"  s_nop 0")
            a(f"  buffer_load_dwordx4 v{VXA+i}, s[4:7], s86 offen lds")
            a(f"  s_add_u32 m0, s17, {16384 + i*1024}")
            a(f"  s_nop 0")
            a(f"  buffer_load_dwordx4 v{VWA+i}, s[8:11], s87 offen lds")
        a(f"  s_add_u32 s39, s39, 1")
        a(f"  s_and_b32 s39, s39, 7")
        a(f"  s_add_u32 s16, s16, 32768")
        a(f"  s_cmp_eq_u32 s16, 98304")
        a(f"  s_cselect_b32 s16, 0, s16")

    for c in range(3):
        issue_chunk()
    VXB, VWB, VXR, VWR = 16, 20, 22, 26
    a(f"""
  buffer_load_dwordx2 v[28:29], v252, s[{S_DBG}:{S_DBG+3}], 0 offen sc1
  s_and_b32 s88, s3, 1
  s_lshr_b32 s89, s3, 1
  v_and_b32 v3, 31, v2
  v_lshrrev_b32 v12, 5, v2
  s_lshl_b32 s84, s88, 6
  v_add_u32 v13, s84, v3
  v_lshrrev_b32 v14, 1, v13
  v_and_b32 v14, 7, v14
  v_lshlrev_b32 v13, 7, v13
  v_add_u32 v13, {L_QS}, v13
""")
    for ks in range(4):
        a(f"  v_or_b32 v15, {2*ks}, v12")
        a(f"  v_xor_b32 v15, v15, v14")
        a(f"  v_lshl_add_u32 v{VXB+ks}, v15, 4, v13")
        a(f"  v_mov_b32 v{VXR+ks}, v{VXB+ks}")
    a(f"""
  v_and_b32 v3, 15, v2
  v_lshrrev_b32 v13, 2, v3
  v_lshlrev_b32 v14, 11, v12
  v_lshl_add_u32 v14, v13, 8, v14
  v_bfe_u32 v15, v2, 4, 1
  v_lshl_add_u32 v14, v15, 5, v14
  v_and_b32 v15, 3, v3
  v_lshl_add_u32 v14, v15, 3, v14
  v_add_u32 v14, {L_QS + 0x4000}, v14
  s_lshl_b32 s84, s89, 1
""")
    for b in range(2):
        a(f"  s_add_u32 s85, s84, {b}")
        a(f"  v_xor_b32 v15, s85, v13")
        a(f"  v_lshl_add_u32 v{VWB+b}, v15, 6, v14")
        a(f"  v_mov_b32 v{VWR+b}, v{VWB+b}")
    FR, QA = 32, 96
    for i in range(0, 64, 2):
        a(f"  v_pk_mov_b32 v[{QA+i}:{QA+i+1}], v[252:253], v[252:253] op_sel:[0,0]")

    def reads(ks):
        f = FR + 16 * ks
        for aa in range(2):
            a(f"  ds_read_b128 v[{f+4*aa}:{f+4*aa+3}], v{VXR+ks} offset:{aa*4096}")
        for b in range(2):
            a(f"  ds_read_b64_tr_b16 v[{f+8+4*b}:{f+8+4*b+1}], v{VWR+b} offset:{ks*4096}")
            a(f"  ds_read_b64_tr_b16 v[{f+8+4*b+2}:{f+8+4*b+3}], v{VWR+b} offset:{ks*4096 + 1024}")

    def mfmas(ks, vmode):
        f = FR + 16 * ks
        for b in range(2):
            for aa in range(2):
                d = QA + 16 * (aa + 2 * b)
                xa = f"v[{f+4*aa}:{f+4*aa+3}]"
                wb = f"v[{f+8+4*b}:{f+8+4*b+3}]"
                if vmode:
                    a(f"  {MFMA} v[{d}:{d+15}], {xa}, {wb}, v[{d}:{d+15}]")
                else:
                    a(f"  {MFMA} v[{d}:{d+15}], {wb}, {xa}, v[{d}:{d+15}]")

    def poll(target_sgpr):
        L, Ld = a.label("qp"), a.label("qpd")
        a(f"  s_mov_b32 s97, 0")
        a(f"{L}:")
        a(f"  ds_read_b32 v31, v251 offset:16")
        a(f"  s_waitcnt lgkmcnt(0)")
        a(f"  v_readfirstlane_b32 s96, v31")
        a(f"  s_add_u32 s97, s97, 1")
        a(f"  s_cmp_ge_u32 s96, {target_sgpr}")
        a(f"  s_cbranch_scc1 {Ld}")
        a(f"  s_cmp_gt_u32 s97, {SPIN_MAX*4}")
        a(f"  s_cbranch_scc0 {L}")
        a(f"{Ld}:")

    def mainloop(vmode):
        L, L1, L2, L3 = a.label("qkv"), a.label("q1"), a.label("q2"), a.label("q3")
        stamp(a, 6)
        a("  s_waitcnt vmcnt(17)")
        lds_signal(a, 16, 251, 30)
        a("  s_mov_b32 s18, 4")
        poll("s18")
        stamp(a, 7)
        reads(0)
        reads(1)
        a("  s_mov_b32 s90, 0")
        a("  s_mov_b32 s19, 0")
        a(f"{L}:")
        a("  s_waitcnt lgkmcnt(6)")
        weave(a, cap(a, mfmas, 0, vmode), cap(a, reads, 2))
        a("  s_waitcnt lgkmcnt(6)")
        weave(a, cap(a, mfmas, 1, vmode), cap(a, reads, 3))
        a(f"  s_cmp_lt_u32 s90, 6")
        a(f"  s_cbranch_scc1 {L1}")
        a("  s_waitcnt vmcnt(0)")
        a(f"{L1}:")
        a("  s_waitcnt vmcnt(8) lgkmcnt(0)")
        lds_signal(a, 16, 251, 30)
        a("  s_add_u32 s18, s18, 4")
        a("  s_add_u32 s19, s19, 32768")
        a("  s_cmp_eq_u32 s19, 98304")
        a("  s_cselect_b32 s19, 0, s19")
        adv = [f"  v_add_u32 v{VXR+k}, s19, v{VXB+k}" for k in range(4)] + [f"  v_add_u32 v{VWR+k}, s19, v{VWB+k}" for k in range(2)]
        weave(a, cap(a, mfmas, 2, vmode), adv)
        poll("s18")
        weave(a, cap(a, mfmas, 3, vmode), cap(a, reads, 0) + cap(a, reads, 1))
        a(f"  s_cmp_lt_u32 s90, 5")
        a(f"  s_cbranch_scc0 {L2}")
        issue_chunk()
        a(f"{L2}:")
        a(f"  s_add_u32 s90, s90, 1")
        a(f"  s_cmp_lt_u32 s90, 8")
        a(f"  s_cbranch_scc1 {L}")
        a("  s_waitcnt lgkmcnt(0)")
        lds_signal(a, 20, 251, 30)
        stamp(a, 8)

    ST = 160
    vm = VM(a)

    def finish():
        Lok = a.label("tokok")
        a(f"  v_readfirstlane_b32 s{TOK}, v28")
        a(f"  v_readfirstlane_b32 s{TOK+1}, v29")
        a(f"  s_cmp_lg_u32 s{TOK}, 0")
        a(f"  s_cbranch_scc1 {Lok}")
        keep = list(vm.ops)
        get_token(a, vm, 28, 252)
        vm.ops = keep
        a(f"{Lok}:")
        a(f"""
  s_lshl_b32 s83, s37, 1
  s_add_u32 s83, s83, s89
  s_lshl_b32 s83, s83, 5
  s_lshl_b32 s84, s36, 1
  s_add_u32 s84, s84, s88
  s_add_u32 s83, s83, s84
  s_lshl_b32 s83, s83, 6
  s_add_u32 s91, s83, {FL_QKV:#x}
""")
        publish(a, vm, "st", "s91", 28, 252)
        lds_signal(a, 40, 251, 30)
        stamp(a, 9)
        a("  s_branch L_a_p1done")

    a("  s_cmp_ge_u32 s37, 8")
    a("  s_cbranch_scc1 L_vpath")
    mainloop(False)
    a("""
  v_and_b32 v3, 31, v2
  v_lshrrev_b32 v12, 5, v2
  s_lshl_b32 s83, s36, 7
  s_lshl_b32 s84, s88, 6
  s_add_u32 s83, s83, s84
  v_add_u32 v3, s83, v3
  v_lshlrev_b32 v3, 5, v3
  v_lshl_add_u32 v3, v12, 4, v3
  s_and_b32 s83, s37, 3
  s_lshl_b32 s83, s83, 3
  s_lshl_b32 s84, s89, 2
  s_add_u32 s83, s83, s84
  s_lshl_b32 s83, s83, 16
  s_lshr_b32 s84, s37, 2
  s_lshl_b32 s84, s84, 21
  s_add_u32 s83, s83, s84
  v_add_u32 v3, s83, v3
  s_cmp_ge_u32 s37, 4
  s_cbranch_scc1 L_noqs
""")
    a(f"  v_mov_b32 v4, {f32bits(QSCALE):#x}")
    a(f"  v_mov_b32 v5, {f32bits(QSCALE):#x}")
    for i in range(0, 64, 2):
        a(f"  v_pk_mul_f32 v[{QA+i}:{QA+i+1}], v[{QA+i}:{QA+i+1}], v[4:5]")
    a("L_noqs:")
    vm.ops = []
    for b in range(2):
        for aa in range(2):
            d = QA + 16 * (aa + 2 * b)
            for hh in range(2):
                t = ST + 4 * (2 * (aa + 2 * b) + hh)
                for q in range(4):
                    a(f"  v_cvt_pk_bf16_f32 v{t+q}, v{d+8*hh+2*q}, v{d+8*hh+2*q+1}")
                a(f"  s_mov_b32 s85, {(2*b+hh)*65536}")
                vm.issue("st", f"  buffer_store_dwordx4 v[{t}:{t+3}], v3, s[12:15], s85 offen offset:{aa*1024} sc1")
    finish()
    a("L_vpath:")
    mainloop(True)
    a(f"""
  v_and_b32 v3, 15, v2
  v_lshrrev_b32 v12, 5, v2
  v_lshlrev_b32 v3, 4, v3
  v_lshl_add_u32 v3, v12, 8, v3
  v_bfe_u32 v12, v2, 4, 1
  v_lshl_add_u32 v3, v12, 16, v3
  s_and_b32 s83, s37, 3
  s_lshl_b32 s83, s83, 3
  s_lshl_b32 s84, s89, 2
  s_add_u32 s83, s83, s84
  s_lshl_b32 s83, s83, 16
  s_lshl_b32 s84, s36, 2
  s_lshl_b32 s85, s88, 1
  s_add_u32 s84, s84, s85
  s_lshl_b32 s84, s84, 10
  s_add_u32 s83, s83, s84
  s_add_u32 s83, s83, {WS_V:#x}
  v_add_u32 v3, s83, v3
""")
    vm.ops = []
    for b in range(2):
        for aa in range(2):
            d = QA + 16 * (aa + 2 * b)
            for tt in range(2):
                t = ST + 4 * (2 * (aa + 2 * b) + tt)
                for q in range(4):
                    a(f"  v_cvt_pk_bf16_f32 v{t+q}, v{d+8*tt+2*q}, v{d+8*tt+2*q+1}")
                a(f"  s_mov_b32 s85, {2*b*65536}")
                vm.issue("st", f"  buffer_store_dwordx4 v[{t}:{t+3}], v3, s[12:15], s85 offen offset:{aa*1024 + tt*512} sc1")
    finish()


def ln(a, vm):
    vm.ops = []
    HOFF = L_QS
    XR, GR, FX = 16, 48, 80
    srd_ = []
    a("L_ln:")
    srd(a, 36, P_GATE, 1024)
    a(f"""
  s_sub_u32 s90, s2, 192             ; a
  v_lshrrev_b32 v3, 3, v2
  v_and_b32 v4, 7, v2
  s_lshl_b32 s83, s90, 5
  s_lshl_b32 s84, s3, 3
  s_add_u32 s83, s83, s84
  v_add_u32 v5, s83, v3              ; row
  v_lshlrev_b32 v6, 4, v4
  v_lshl_add_u32 v7, v5, 10, v6
""")
    vm.ops = ["x"] * 16 + ["tok"]
    stamp(a, 1)
    vm.wait("x")
    stamp(a, 2)
    for i in range(32):
        a(f"  v_lshlrev_b32 v{FX+2*i}, 16, v{XR+i}")
        a(f"  v_and_b32 v{FX+2*i+1}, 0xffff0000, v{XR+i}")
    for c in range(4):
        a(f"  v_add_f32 v{9+c}, v{FX+c}, v{FX+4+c}")
    for i in range(8, 64):
        a(f"  v_add_f32 v{9+(i&3)}, v{9+(i&3)}, v{FX+i}")
    a(f"  v_mov_b32 v13, 0")
    a(f"  v_mov_b32 v14, 0")
    for i in range(32):
        a(f"  v_dot2_f32_bf16 v{13+(i&1)}, v{XR+i}, v{GR+i}, v{13+(i&1)}")
    a("""
  v_add_f32 v9, v9, v10
  v_add_f32 v11, v11, v12
  v_add_f32 v9, v9, v11
  s_nop 2
  v_add_f32 v13, v13, v14
""")

    def red8(r):
        a(f"  s_nop 1")
        a(f"  v_add_f32_dpp v{r}, v{r}, v{r} quad_perm:[1,0,3,2] row_mask:0xf bank_mask:0xf")
        a(f"  s_nop 1")
        a(f"  v_add_f32_dpp v{r}, v{r}, v{r} quad_perm:[2,3,0,1] row_mask:0xf bank_mask:0xf")
        a(f"  s_nop 1")
        a(f"  v_add_f32_dpp v{r}, v{r}, v{r} row_half_mirror row_mask:0xf bank_mask:0xf")

    red8(9)
    red8(13)
    a(f"  v_mul_f32 v9, {f32bits(1.0/512):#x}, v9")
    for i in range(64):
        a(f"  v_sub_f32 v{FX+i}, v{FX+i}, v9")
    for c in range(4):
        a(f"  v_mul_f32 v{9+c}, v{FX+c}, v{FX+c}")
    for i in range(4, 64):
        a(f"  v_fmac_f32 v{9+(i&3)}, v{FX+i}, v{FX+i}")
    a("""
  v_add_f32 v9, v9, v10
  v_add_f32 v11, v11, v12
  v_add_f32 v9, v9, v11
""")
    red8(9)
    a(f"""
  v_mov_b32 v10, {f32bits(1e-5):#x}
  v_fmac_f32 v10, {f32bits(1.0/512):#x}, v9
  v_rsq_f32 v10, v10
  v_mul_f32 v13, {f32bits(-math.log2(math.e)):#x}, v13
  v_exp_f32 v13, v13
  s_nop 0
  v_add_f32 v13, 1.0, v13
  v_rcp_f32 v13, v13
  v_lshlrev_b32 v5, 2, v5
  v_add_u32 v5, {WS_G:#x}, v5
  v_cmp_eq_u32 vcc, 0, v4
  s_and_saveexec_b64 s[84:85], vcc
""")
    vm.issue("st", "  buffer_store_dword v13, v5, s[12:15], 0 offen sc1")
    a("  s_mov_b64 exec, -1")
    for i in range(64):
        a(f"  v_mul_f32 v{FX+i}, v{FX+i}, v10")
    for i in range(32):
        a(f"  v_cvt_pk_bf16_f32 v{XR+i}, v{FX+2*i}, v{FX+2*i+1}")
    a(f"""
  s_lshl_b32 s84, s3, 3
  v_add_u32 v3, s84, v3
  s_movk_i32 s85, 1088
  v_mul_lo_u32 v3, v3, s85
  v_add_u32 v3, v3, v6
  v_add_u32 v3, {HOFF}, v3
""")
    for i in range(8):
        a(f"  ds_write_b128 v3, v[{XR+4*i}:{XR+4*i+3}] offset:{i*128}")
    a(f"""
  v_and_b32 v3, 15, v2
  v_lshrrev_b32 v4, 2, v3
  v_lshrrev_b32 v5, 5, v2
  v_lshl_add_u32 v4, v5, 2, v4
  v_bfe_u32 v5, v2, 4, 1
  v_lshlrev_b32 v5, 5, v5
  v_and_b32 v3, 3, v3
  v_lshl_add_u32 v5, v3, 3, v5
  s_movk_i32 s85, 1088
  v_mul_lo_u32 v6, v4, s85
  v_add_u32 v6, v6, v5
  s_lshl_b32 s84, s3, 8
  s_add_u32 s84, s84, {HOFF}
  v_add_u32 v6, s84, v6
  s_lshl_b32 s83, s90, 11
  s_lshl_b32 s84, s3, 19
  s_add_u32 s84, s84, s83
  s_add_u32 s84, s84, {WS_H:#x}
  v_add_u32 v9, s84, v250
  s_waitcnt lgkmcnt(0)
""")
    lds_barrier(a, 24, 4, 251, 10)
    T = 16
    n = 0
    for db in range(4):
        for t in range(2):
            off = t * 17408 + db * 64
            a(f"  ds_read_b64_tr_b16 v[{T+4*n}:{T+4*n+1}], v6 offset:{off}")
            a(f"  ds_read_b64_tr_b16 v[{T+4*n+2}:{T+4*n+3}], v6 offset:{off+8*1088}")
            n += 1
    a("  s_waitcnt lgkmcnt(0)")
    lds_signal(a, 28, 251, 10)
    n = 0
    for db in range(4):
        for t2 in range(2):
            a(f"  s_mov_b32 s85, {db*131072}")
            vm.issue("st", f"  buffer_store_dwordx4 v[{T+4*n}:{T+4*n+3}], v9, s[12:15], s85 offen offset:{t2*1024} sc1")
            n += 1
    stamp(a, 3)
    vm.wait("tok")
    Lok = a.label("tokok")
    a(f"  v_readfirstlane_b32 s{TOK}, v144")
    a(f"  v_readfirstlane_b32 s{TOK+1}, v145")
    a(f"  s_cmp_lg_u32 s{TOK}, 0")
    a(f"  s_cbranch_scc1 {Lok}")
    keep = list(vm.ops)
    get_token(a, vm, 144, 252)
    vm.ops = keep
    a(f"{Lok}:")
    a(f"""
  s_lshl_b32 s83, s90, 2
  s_add_u32 s83, s83, s3
  s_lshl_b32 s83, s83, 6
  s_add_u32 s83, s83, {FL_LN:#x}
""")
    a("  s_mov_b32 s91, s83")
    publish(a, vm, "st", "s83", 144, 252)
    lds_signal(a, 32, 251, 10)
    lds_wait(a, 28, 4, 251, 10)


def awaves(a):
    vm = VM(a)
    S = 32
    MF, MD = 80, 96
    CM, CF, CD = 112, 128, 144
    KF = 160
    QF = 200
    VF = 208
    OA = 224
    NEG, GV, MX, MX2 = 240, 242, 244, 246
    CS = 248
    mask_pairs = [4, 6, 8, 10] + list(range(16, 40, 2))
    assert len(mask_pairs) == 16
    cscale = 0.25 * math.log2(math.e)
    a(f"""
L_attn:
  s_sub_u32 s3, s3, 4                ; aw
  s_setprio {os.environ.get("QPRIO", "2")}
  s_or_b32 s83, s2, s3
  s_cmp_lg_u32 s83, 0
  s_cbranch_scc1 L_a_notok
  s_memrealtime s[70:71]
  s_waitcnt lgkmcnt(0)
  s_or_b32 s70, s70, 1
  v_mov_b32 v4, s70
  v_mov_b32 v5, s71
  s_mov_b64 exec, 1
  buffer_store_dwordx2 v[4:5], v252, s[{S_DBG}:{S_DBG+3}], 0 offen sc1
  s_mov_b64 exec, -1
L_a_notok:
  s_cmp_lt_u32 s2, 192
  s_cbranch_scc0 L_a_noqkv
""")
    if "chainB" in EXP:
        lds_signal(a, 20, 251, 30)
        a("  s_endpgm")
    qkv(a)
    a("L_a_noqkv:")
    lds_signal(a, 20, 251, 30)
    if "nomall" not in EXP:
        srd(a, 76, P_W1, 2048 * 1376 * 2)
        srd(a, 84, P_W2, 1376 * 2048 * 2)
        srd(a, 88, P_WO, 512 * 512 * 2)
        a(f"""
  s_setprio 0
  s_sub_u32 s92, s2, 192
  s_lshl_b32 s92, s92, 2
  s_add_u32 s92, s92, s3
  s_mul_i32 s93, s92, 22016
  v_lshlrev_b32 v13, 7, v2           ; one lane per 128B line
  s_lshl_b32 s94, s92, 11
""")
        lds_wait(a, int(os.environ.get("PFCNT", "32")), 4, 251, 30)
        for k in range(3 if "now1t" in EXP else 0):
            a(f"  s_add_u32 s95, s93, {k*8192}")
            a(f"  buffer_load_dword v{32+k}, v13, s[76:79], s95 offen")
        for k in range(0 if "w2nt" in EXP else 3):
            a(f"  s_add_u32 s95, s93, {k*8192}")
            a(f"  buffer_load_dword v{36+k}, v13, s[84:87], s95 offen")
        a(f"  v_cmp_gt_u32 vcc, 16, v2")
        a(f"  s_and_saveexec_b64 s[92:93], vcc")
        a(f"  buffer_load_dword v40, v13, s[88:91], s94 offen")
        a(f"  s_mov_b64 exec, -1")
    a("L_a_p1done:")
    if "chainB" in EXP:
        a("  s_endpgm")
    a(f"""
  s_setprio 2
  s_lshl_b32 s70, s81, 2
  s_lshr_b32 s83, s82, 3
  s_add_u32 s70, s70, s83            ; head
  s_and_b32 s83, s82, 7
  s_lshl_b32 s71, s83, 3             ; qb0
  s_lshl_b32 s83, s3, 1
  s_add_u32 s72, s71, s83
  v_and_b32 v3, 31, v2
  v_lshrrev_b32 v4, 5, v2
  v_lshlrev_b32 v5, 5, v3
  v_lshl_add_u32 v5, v4, 4, v5
  s_lshl_b32 s83, s70, 16
  v_add_u32 v5, s83, v5
  v_and_b32 v6, 15, v2
  v_lshlrev_b32 v6, 4, v6
  v_lshl_add_u32 v6, v4, 8, v6
  v_add_u32 v9, {L_AV}, v6
  v_add_u32 v6, s83, v6
  v_add_u32 v6, {WS_V:#x}, v6
  v_lshlrev_b32 v7, 4, v2
  s_lshl_b32 s83, s70, 10
  s_add_u32 s83, s83, {WS_O:#x}
  v_add_u32 v7, s83, v7
  v_lshlrev_b32 v8, 2, v3
  v_add_u32 v8, {WS_G:#x}, v8        ; g base (+qb*128)
  v_mov_b32 v{NEG}, {f32bits(-1e30):#x}
  v_mov_b32 v{CS}, {f32bits(cscale):#x}
  v_mov_b32 v{CS+1}, {f32bits(cscale):#x}
  v_lshlrev_b32 v10, 2, v4
""")
    for r in range(16):
        a(f"  v_add_u32 v11, {(r&3) + 8*(r>>2)}, v10")
        a(f"  v_cmp_le_u32 vcc, v11, v3")
        a(f"  s_nop 1")
        a(f"  v_cndmask_b32 v{MF+r}, 0, v{NEG}, vcc")
        a(f"  v_cndmask_b32 v{MD+r}, v{NEG}, v252, vcc")
    for i in range(16):
        a(f"  v_mov_b32 v{VF+i}, 0x3f803f80")
    a(f"  v_cmp_gt_u32 s[74:75], 16, v3")
    a(f"""
  s_lshr_b32 s84, s70, 2
  s_lshr_b32 s85, s72, 1
  s_lshl_b32 s86, s84, 5
  s_add_u32 s86, s86, s85
  s_lshl_b32 s86, s86, 6
  s_add_u32 s86, s86, {FL_QKV:#x}    ; Q flag
  v_mov_b32 v12, s86
""")
    lane = 1
    for t in range(5):
        a(f"  s_add_u32 s86, s85, {t}")
        a(f"  s_max_u32 s86, s86, 4")
        a(f"  s_sub_u32 s86, s86, 4")
        a(f"  s_add_u32 s87, s84, 8")
        a(f"  s_lshl_b32 s87, s87, 5")
        a(f"  s_add_u32 s86, s86, s87")
        a(f"  s_lshl_b32 s86, s86, 6")
        a(f"  s_add_u32 s86, s86, {FL_QKV:#x}")
        a(f"  v_writelane_b32 v12, s86, {lane}")
        lane += 1
    for t in range(2):
        a(f"  s_lshr_b32 s86, s71, 1")
        a(f"  s_lshl_b32 s87, s3, 1")
        a(f"  s_add_u32 s86, s86, s87")
        a(f"  s_add_u32 s86, s86, {t}")
        a(f"  s_max_u32 s86, s86, 4")
        a(f"  s_sub_u32 s86, s86, 4")
        a(f"  s_add_u32 s87, s84, 16")
        a(f"  s_lshl_b32 s87, s87, 5")
        a(f"  s_add_u32 s86, s86, s87")
        a(f"  s_lshl_b32 s86, s86, 6")
        a(f"  s_add_u32 s86, s86, {FL_QKV:#x}")
        a(f"  v_writelane_b32 v12, s86, {lane}")
        lane += 1
    for t in range(8):
        a(f"  s_lshl_b32 s86, s72, 2")
        a(f"  s_add_u32 s86, s86, {t}")
        a(f"  s_lshl_b32 s86, s86, 6")
        a(f"  s_add_u32 s86, s86, {FL_LN:#x}")
        a(f"  v_writelane_b32 v12, s86, {lane}")
        lane += 1
    stamp(a, 1)
    get_token(a, vm, 14, 252)
    flag_load(vm, "fl", 14, 12)
    flag_check(a, vm, "fl", 14, 12)
    vm.drained()
    stamp(a, 2)
    a(f"  s_mov_b64 exec, s[74:75]")
    for jj in range(4):
        a(f"  s_lshl_b32 s83, s3, 2")
        a(f"  s_add_u32 s83, s83, s71")
        a(f"  s_add_u32 s83, s83, {jj}")
        a(f"  s_max_u32 s83, s83, 8")
        a(f"  s_sub_u32 s83, s83, 8")
        a(f"  s_lshl_b32 s83, s83, 10")
        vm.issue("v", f"  buffer_load_dwordx4 v[{S+8*jj}:{S+8*jj+3}], v6, s[12:15], s83 offen sc1")
        vm.issue("v", f"  buffer_load_dwordx4 v[{S+8*jj+4}:{S+8*jj+7}], v6, s[12:15], s83 offen offset:512 sc1")
    a(f"  s_mov_b64 exec, -1")
    a(f"  s_lshl_b32 s83, s72, 10")
    vm.issue("q", f"  buffer_load_dwordx4 v[{QF}:{QF+3}], v5, s[12:15], s83 offen sc1")
    vm.issue("q", f"  buffer_load_dwordx4 v[{QF+4}:{QF+7}], v5, s[12:15], s83 offen offset:1024 sc1")
    for i in range(10):
        a(f"  s_add_u32 s83, s72, {i}")
        a(f"  s_max_u32 s83, s83, 8")
        a(f"  s_sub_u32 s83, s83, 8")
        a(f"  s_lshl_b32 s83, s83, 10")
        a(f"  s_add_u32 s83, s83, {WS_K:#x}")
        vm.issue(("k", i), f"  buffer_load_dwordx4 v[{KF+4*i}:{KF+4*i+3}], v5, s[12:15], s83 offen sc1")
    a(f"  s_lshl_b32 s83, s72, 7")
    vm.issue("g", f"  buffer_load_dword v{GV}, v8, s[12:15], s83 offen sc1")
    vm.issue("g", f"  buffer_load_dword v{GV+1}, v8, s[12:15], s83 offen offset:128 sc1")
    vm.wait("v")
    a(f"  s_lshl_b32 s83, s3, 12")
    a(f"  v_add_u32 v11, s83, v9")
    a(f"  s_mov_b64 exec, s[74:75]")
    for jj in range(4):
        a(f"  ds_write_b128 v11, v[{S+8*jj}:{S+8*jj+3}] offset:{jj*1024}")
        a(f"  ds_write_b128 v11, v[{S+8*jj+4}:{S+8*jj+7}] offset:{jj*1024+512}")
    a(f"  s_mov_b64 exec, -1")
    a(f"  s_waitcnt lgkmcnt(0)")
    lds_barrier(a, 8, 4, 251, 14)
    vm.wait("g")
    if "hiprio" not in EXP:
        a("  s_setprio 0")
    if "adelay" in EXP:
        Lnd = a.label("nodelay")
        a("  s_cmp_lt_u32 s2, 176")
        a(f"  s_cbranch_scc0 {Lnd}")
        lds_wait_sleep(a, 36, 4, 251, 14)
        a(f"{Lnd}:")
    stamp(a, 3)
    cstamp(a, 14)
    a(f"  s_lshl_b32 s83, s3, 11")
    a(f"  v_add_u32 v9, s83, v9")

    def vread(i):
        r = VF + 8 * (i & 1)
        a(f"  s_mov_b64 exec, s[74:75]")
        a(f"  ds_read_b128 v[{r}:{r+3}], v9 offset:{i*1024}")
        a(f"  ds_read_b128 v[{r+4}:{r+7}], v9 offset:{i*1024+512}")
        a(f"  s_mov_b64 exec, -1")

    def qk(i, buf, cmode, slow):
        d = S + 16 * buf
        if i == 0:
            c = MF if cmode == 0 else CF
        elif i == 8:
            c = MD if cmode == 0 else CD
        else:
            c = None if cmode == 0 else CM
        cs = "0" if c is None else f"v[{c}:{c+15}]"
        ins = f"  {MFMA} v[{d}:{d+15}], v[{KF+4*i}:{KF+4*i+3}], v[{QF}:{QF+3}], {cs}"
        if slow and i < 8:
            L1, L2 = a.label("inv"), a.label("invd")
            a(f"  s_cmp_gt_u32 s76, {i}")
            a(f"  s_cbranch_scc1 {L1}")
            a(ins)
            a(f"  s_branch {L2}")
            a(f"{L1}:")
            a("  s_nop 7")
            a("  s_nop 7")
            for r in range(16):
                a(f"  v_mov_b32 v{d+r}, v{NEG}")
            a(f"{L2}:")
        else:
            a(ins)

    def unit_core(slow):
        qk(0, 0, 0, slow)
        qk(1, 1, 0, slow)
        vread(0)
        for i in range(0, 16, 2):
            a(f"  v_pk_mov_b32 v[{OA+i}:{OA+i+1}], v[252:253], v[252:253] op_sel:[0,0]")
        a(f"  v_mov_b32 v{MX}, v{NEG}")
        a(f"  v_mov_b32 v{MX2}, v{NEG}")
        for i in range(9):
            if i + 2 < 9:
                qk(i + 2, (i + 2) % 3, 0, slow)
            else:
                a("  s_nop 3")
            b = S + 16 * (i % 3)
            for r in range(0, 16, 2):
                m = MX if (r & 2) == 0 else MX2
                a(f"  v_max3_f32 v{m}, v{m}, v{b+r}, v{b+r+1}")
        a(f"""
  v_max_f32 v{MX}, v{MX}, v{MX2}
  v_mov_b32 v{MX2}, v{MX}
  s_nop 1
  v_permlane32_swap_b32 v{MX}, v{MX2}
  s_nop 1
  v_max_f32 v{MX}, v{MX}, v{MX2}
  v_sub_f32 v{MX}, 0, v{MX}
  v_mov_b32 v{MX+1}, v{MX}
""")
        for r in range(0, 16, 2):
            a(f"  v_pk_mov_b32 v[{CM+r}:{CM+r+1}], v[{MX}:{MX+1}], v[{MX}:{MX+1}] op_sel:[0,1]")
        for r in range(0, 16, 2):
            a(f"  v_pk_add_f32 v[{CF+r}:{CF+r+1}], v[{MF+r}:{MF+r+1}], v[{MX}:{MX+1}]")
        a("  s_nop 1")
        qk(0, 0, 1, slow)
        qk(1, 1, 1, slow)
        for r in range(0, 16, 2):
            a(f"  v_pk_add_f32 v[{CD+r}:{CD+r+1}], v[{MD+r}:{MD+r+1}], v[{MX}:{MX+1}]")
        a("  s_nop 3")
        def pv(i, half):
            b = S + 16 * (i % 3)
            r = VF + 8 * (i & 1)
            a(f"  {MFMA} v[{OA}:{OA+15}], v[{r+4*half}:{r+4*half+3}], v[{b+4*half}:{b+4*half+3}], v[{OA}:{OA+15}]")

        for i in range(9):
            b = S + 16 * (i % 3)
            for r in range(16):
                a(f"  v_exp_f32 v{b+r}, v{b+r}")
                if i > 0 and r == 1:
                    a(f"  s_waitcnt lgkmcnt(0)")
                    pv(i - 1, 0)
                if i > 0 and r == 6:
                    pv(i - 1, 1)
                    vread(i)
                if r == 11 and i + 2 < 9 and i > 0:
                    qk(i + 2, (i + 2) % 3, 1, slow)
                if r == 3 and i == 0:
                    qk(2, 2, 1, slow)
            a("  s_nop 0")
            for q in range(8):
                a(f"  v_cvt_pk_bf16_f32 v{b+q}, v{b+2*q}, v{b+2*q+1}")
        a(f"  s_waitcnt lgkmcnt(0)")
        pv(8, 0)
        pv(8, 1)

    a(f"""
  s_mov_b32 s73, s72                 ; qb
  s_mov_b32 s77, 0
L_a_unit:
  s_sub_u32 s76, 8, s73
  s_cmp_gt_u32 s73, 8
  s_cselect_b32 s76, 0, s76
  s_cmp_lg_u32 s76, 0
  s_cbranch_scc1 L_a_slow
""")
    unit_core(False)
    a("L_a_join:")
    for i in range(0, 36, 2):
        a(f"  v_pk_mov_b32 v[{KF+i}:{KF+i+1}], v[{KF+4+i}:{KF+5+i}], v[{KF+4+i}:{KF+5+i}] op_sel:[0,1]")
    for i in range(0, 4, 2):
        a(f"  v_pk_mov_b32 v[{QF+i}:{QF+i+1}], v[{QF+4+i}:{QF+5+i}], v[{QF+4+i}:{QF+5+i}] op_sel:[0,1]")
    a(f"""
  v_add_u32 v9, 0x400, v9
  s_lshl_b32 s83, s73, 15
  v_rcp_f32 v10, v{OA+8}
  s_nop 0
  v_mul_f32 v10, v10, v{GV}
""")
    for r in range(8):
        a(f"  v_mul_f32 v{OA+r}, v{OA+r}, v10")
    a(f"  s_cmp_eq_u32 s77, 0")
    a(f"  s_cbranch_scc0 L_a_unit2")
    for q in range(4):
        a(f"  v_cvt_pk_bf16_f32 v{12+q}, v{OA+2*q}, v{OA+2*q+1}")
    vm.issue("st", f"  buffer_store_dwordx4 v[12:15], v7, s[12:15], s83 offen sc1")
    a(f"  v_mov_b32 v{GV}, v{GV+1}")
    stamp(a, 4)
    a(f"""
  s_add_u32 s73, s73, 1
  s_mov_b32 s77, 1
  s_branch L_a_unit
L_a_unit2:
""")
    for q in range(4):
        a(f"  v_cvt_pk_bf16_f32 v{QF+q}, v{OA+2*q}, v{OA+2*q+1}")
    vm.issue("st", f"  buffer_store_dwordx4 v[{QF}:{QF+3}], v7, s[12:15], s83 offen sc1")
    stamp(a, 5)
    cstamp(a, 15)
    a("  s_setprio 2")
    a(f"""
  s_lshl_b32 s83, s70, 5
  s_lshr_b32 s84, s72, 1
  s_add_u32 s83, s83, s84
  s_lshl_b32 s83, s83, 6
  s_add_u32 s83, s83, {FL_AT:#x}
""")
    publish(a, vm, "st", "s83", 10, 252)
    stamp(a, 11)
    if STAMPS:
        a("  s_waitcnt vmcnt(0)")
    stamp(a, 12)
    stamp_flush(a)
    a("  s_endpgm")
    a("L_a_slow:")
    unit_core(True)
    a("  s_branch L_a_join")


def main():
    ref = open(f"cdna_kernels/{NAME}.s.ref").read().split("\n")
    hdr = [l for l in ref if l.startswith(";") and "@launch" not in l]
    a = Asm()
    for l in hdr:
        a(l)
    a(f"; @launch grid=(256,1,1) block=(512,1,1) lds={LDS_BYTES}")
    a('.amdgcn_target "amdgcn-amd-amdhsa--gfx950"')
    gen(a)
    a(f"""
.section .rodata,"a"
.p2align 6
.amdhsa_kernel {KN}
  .amdhsa_next_free_vgpr 256
  .amdhsa_next_free_sgpr 102
  .amdhsa_accum_offset 256
  .amdhsa_group_segment_fixed_size 0
  .amdhsa_kernarg_size 96
  .amdhsa_user_sgpr_count 2
  .amdhsa_user_sgpr_kernarg_segment_ptr 1
  .amdhsa_system_sgpr_workgroup_id_x 1
.end_amdhsa_kernel
""")
    out = sys.argv[1] if len(sys.argv) > 1 else f"cdna_kernels/{NAME}.s"
    txt = a.text()
    if "nosc1ld" in EXP:
        txt = "\n".join(l.replace(" sc1", "") if ("buffer_load_dwordx4" in l) else l for l in txt.split("\n"))
    open(out, "w").write(txt)


if __name__ == "__main__":
    main()
```
